```python
import torch

def _softmax(x, axis=-1):
    return torch.softmax(x, dim=axis)
def _gelu(x):
    return torch.nn.functional.gelu(x, approximate="tanh")
def _silu(x):
    return torch.nn.functional.silu(x)
def _sigmoid(x):
    return torch.sigmoid(x)
def _layernorm(x, axis=-1, eps=1e-5):
    m = x.mean(dim=axis, keepdim=True)
    v = x.var(dim=axis, keepdim=True, unbiased=False)
    return (x - m) / torch.sqrt(v + eps)
def _scatter_add(tgt, idx, src, axis=0):
    return tgt.clone().index_add_(axis, idx, src)
def _segment_sum(src, seg, n):
    out = torch.zeros((n,) + src.shape[1:], dtype=src.dtype)
    return out.index_add_(0, seg, src)
def _pad(x, pw):
    flat = tuple(v for pair in reversed(pw) for v in pair)
    return torch.nn.functional.pad(x, flat)

kernel_name = 'recurrent_scan__linear_kernel_hedgehog__swiglu_ffn__prompt'

def setup_inputs():

    _w = (lambda a: (lambda t: t.to(torch.bfloat16) if t.is_floating_point() else t)(torch.as_tensor(a)))
    def _A_setup():
        B, S, D, H = 1, 2048, 576, 32
        Dh = D // H
        return {
            "x": _w((lambda *s: torch.randn(*s, dtype=torch.bfloat16) * 0.05)(B, S, D)),
            "wqkv": _w((lambda *s: torch.randn(*s, dtype=torch.bfloat16) * 0.2)(D, 3 * D)),
            "w_phi": _w((lambda *s: torch.randn(*s, dtype=torch.bfloat16) * 0.2)(H, Dh, Dh) * (Dh ** -0.5)),
            "wo": _w((lambda *s: torch.randn(*s, dtype=torch.bfloat16) * 0.05)(D, D)),
        }
    _A_in = _A_setup()

    def _B_setup():
        B, S, D, F = 1, 2048, 576, 4608
        return {
            "x": _w((lambda *s: torch.randn(*s, dtype=torch.bfloat16) * 0.05)(B, S, D)),
            "w_gate": _w((lambda *s: torch.randn(*s, dtype=torch.bfloat16) * 0.05)(D, F)),
            "w_up": _w((lambda *s: torch.randn(*s, dtype=torch.bfloat16) * 0.05)(D, F)),
            "w_down": _w((lambda *s: torch.randn(*s, dtype=torch.bfloat16) * 0.05)(F, D)),
        }
    _B_in = _B_setup()

    return {
        "A_x": _A_in["x"],
        "A_wqkv": _A_in["wqkv"],
        "A_w_phi": _A_in["w_phi"],
        "A_wo": _A_in["wo"],
        "B_x": _B_in["x"],
        "B_w_gate": _B_in["w_gate"],
        "B_w_up": _B_in["w_up"],
        "B_w_down": _B_in["w_down"],
    }

def reference(A_x, A_wqkv, A_w_phi, A_wo, B_x, B_w_gate, B_w_up, B_w_down):
    def _A_ref(x, wqkv, w_phi, wo):
        B, S, D = x.shape
        H = 32; Dh = D // H
        qkv = (lambda x, *d: x.permute(*d))((x @ wqkv).reshape(B, S, 3, H, Dh), 2, 0, 3, 1, 4)
        q, k, v = qkv[0], qkv[1], qkv[2]
        pq = torch.einsum("bhsd,hdf->bhsf", q, w_phi)
        pk = torch.einsum("bhsd,hdf->bhsf", k, w_phi)
        phi_q = torch.concatenate([_softmax(pq, axis=-1), _softmax(-pq, axis=-1)], axis=-1)
        phi_k = torch.concatenate([_softmax(pk, axis=-1), _softmax(-pk, axis=-1)], axis=-1)
        kv = torch.einsum("bhsf,bhsd->bhfd", phi_k, v)
        z  = torch.einsum("bhsf->bhf", phi_k)
        num = torch.einsum("bhqf,bhfd->bhqd", phi_q, kv)
        den = torch.einsum("bhqf,bhf->bhq", phi_q, z)[..., None] + 1e-6
        o = num / den
        return (lambda x, *d: x.permute(*d))(o, 0, 2, 1, 3).reshape(B, S, D) @ wo

    def _B_ref(x, w_gate, w_up, w_down):
        g = _silu(x @ w_gate)
        u = x @ w_up
        return (g * u) @ w_down

    x = A_x
    xn = _layernorm(x, axis=-1)
    s = _A_ref(xn, A_wqkv, A_w_phi, A_wo)
    g = _silu(_B_ref(xn, B_w_gate, B_w_up, B_w_down))
    return x + s * g
```

```python
import re

TRANS = ("v_exp_f32", "v_log_f32", "v_rcp_f32", "v_rsq_f32", "v_sqrt_f32", "v_sin_f32", "v_cos_f32")

def _regs(tok):
    tok = tok.strip()
    neg = tok.lstrip("-")
    if neg.startswith("abs(") or neg.startswith("|"):
        neg = neg.replace("abs(", "").replace(")", "").replace("|", "")
    tok = neg
    m = re.fullmatch(r"([vas])\[(\d+):(\d+)\]", tok)
    if m:
        return [f"{m.group(1)}{i}" for i in range(int(m.group(2)), int(m.group(3)) + 1)]
    m = re.fullmatch(r"([vas])(\d+)", tok)
    if m:
        return [tok]
    if tok in ("vcc", "exec", "m0", "scc"):
        return [tok]
    if tok in ("vcc_lo", "vcc_hi"):
        return ["vcc"]
    if tok in ("exec_lo", "exec_hi"):
        return ["exec"]
    return []

class I:
    __slots__ = ("text", "op", "kind", "rd", "wr", "tag", "cost", "mf_c", "mf_ab", "passes", "lds_rd", "nwait", "comment", "dpp")
    def __init__(self, text, tag=None, comment=None):
        self.text = text.strip()
        self.tag = tag
        self.comment = comment
        self.mf_c = []; self.mf_ab = []; self.passes = 0; self.nwait = 1; self.dpp = False
        self.parse()
    def parse(self):
        t = self.text
        if t.endswith(":"):
            self.op = "label"; self.kind = "label"; self.rd = set(); self.wr = set(); self.cost = 0; self.nwait = 0
            return
        parts = t.split(None, 1)
        op = parts[0]
        self.op = op
        rest = parts[1] if len(parts) > 1 else ""
        ops = [o.strip() for o in re.split(r",(?![^\[]*\])", rest)] if rest else []
        mods = ""
        if ops:
            lp = ops[-1].split(None, 1)
            ops[-1] = lp[0]
            mods = lp[1] if len(lp) > 1 else ""
        rd = set(); wr = set()
        R = lambda k: set(_regs(ops[k])) if k < len(ops) else set()
        allr = lambda ks: set().union(*[R(k) for k in ks]) if ks else set()
        n = len(ops)
        cost = 1
        if op.startswith("v_mfma"):
            kind = "mfma"
            wr = R(0); rd = allr([1, 2, 3])
            self.mf_ab = R(1) | R(2); self.mf_c = R(3)
            self.passes = 8 if "32x32x16" in op else 4 if "16x16x32" in op else None
            assert self.passes
        elif op.startswith("ds_read") or op.startswith("ds_bpermute") or op.startswith("ds_swizzle"):
            kind = "dsr"; wr = R(0); rd = allr(range(1, n))
        elif op.startswith("ds_write") or op.startswith("ds_add"):
            kind = "dsw"; rd = allr(range(n))
        elif op.startswith("buffer_load") or op.startswith("global_load"):
            if " lds" in (" " + mods) or "_lds_" in op:
                kind = "dma"; rd = allr(range(n)) | {"m0"}
            else:
                kind = "vld"; wr = R(0); rd = allr(range(1, n))
                if "d16" in op:
                    rd |= R(0)
        elif op.startswith("buffer_store") or op.startswith("global_store"):
            kind = "vst"; rd = allr(range(n))
        elif op.startswith("buffer_atomic") or op.startswith("global_atomic"):
            kind = "vst"; rd = allr(range(n))
            if "sc0" in mods.split():
                kind = "vld"; wr = R(0)
        elif op in ("buffer_inv", "buffer_wbl2"):
            kind = "vst"
        elif op.startswith("s_load") or op in ("s_memtime", "s_memrealtime"):
            kind = "smem"; wr = R(0); rd = allr(range(1, n))
        elif op == "s_waitcnt":
            kind = "wait"
        elif op == "s_barrier":
            kind = "bar"
        elif op == "s_nop":
            kind = "nop"; self.nwait = int(ops[0], 0) + 1; cost = self.nwait
        elif op.startswith("s_cbranch") or op in ("s_branch", "s_endpgm", "s_setpc_b64"):
            kind = "branch"
            if "scc" in op: rd = {"scc"}
            if "vcc" in op: rd = {"vcc"}
            if "exec" in op: rd = {"exec"}
        elif op.startswith("s_cmp"):
            kind = "salu"; rd = allr(range(n)); wr = {"scc"}
        elif op in ("s_sleep", "s_setprio"):
            kind = "salu"
        elif op.startswith("s_"):
            kind = "salu"; wr = R(0); rd = allr(range(1, n))
            if op.startswith(("s_add", "s_sub", "s_and", "s_or", "s_xor", "s_lshl", "s_lshr", "s_ashr", "s_min", "s_max", "s_bfe", "s_not", "s_andn2")):
                wr |= {"scc"}
            if op.startswith(("s_addc", "s_subb", "s_cselect")):
                rd |= {"scc"}
            if "saveexec" in op:
                rd |= {"exec"}; wr |= {"exec", "scc"}
            if op in ("s_addk_i32", "s_mulk_i32"):
                rd |= R(0)
        elif op.startswith("v_"):
            base = re.sub(r"_(e32|e64|dpp|sdwa)$", "", op)
            kind = "trans" if base in TRANS else "valu"
            if kind == "trans": cost = 2
            if op.startswith("v_cmp"):
                wr = R(0); rd = allr(range(1, n))
            elif op.startswith(("v_readfirstlane", "v_readlane")):
                wr = R(0); rd = allr(range(1, n))
            elif op.startswith("v_permlane") and "swap" in op:
                wr = R(0) | R(1); rd = R(0) | R(1)
            elif base in ("v_add_co_u32", "v_sub_co_u32"):
                wr = R(0) | R(1); rd = allr(range(2, n))
            elif base in ("v_addc_co_u32",):
                wr = R(0) | R(1); rd = allr(range(2, n))
            else:
                wr = R(0); rd = allr(range(1, n))
                if base in ("v_fmac_f32", "v_dot2c_f32_bf16", "v_writelane_b32") or op.endswith("_dpp"):
                    rd |= R(0)
                if base == "v_cndmask_b32" and n == 3:
                    rd |= {"vcc"}
            if op.endswith("_dpp"):
                self.dpp = True
            rd |= {"exec"}
        else:
            raise ValueError("unknown instruction: " + t)
        self.kind = kind; self.rd = rd; self.wr = wr; self.cost = cost
    def __repr__(self):
        return self.text

class WaitTag:
    def __init__(self, vm=(), lg=()):
        self.vm = set(vm); self.lg = set(lg)
        self.kind = "waittag"; self.cost = 1; self.rd = set(); self.wr = set()

class Bundle:
    def __init__(self, items):
        self.items = items; self.kind = "bundle"; self.cost = sum(i.cost for i in items)

def flat(lst):
    out = []
    for i in lst:
        if i.kind == "bundle": out += i.items
        else: out.append(i)
    return out

class Raw:
    def __init__(self, text):
        self.text = text; self.kind = "raw"; self.cost = 0; self.rd = set(); self.wr = set()

VMK = ("vld", "vst", "dma")
LGK = ("dsr", "dsw", "smem")

def insert_waits(prog, vm0=None, lg0=None):
    out = []
    vm = list(vm0 or [])
    lg = list(lg0 or [])
    def need(lst, pred):
        idx = -1
        for i, e in enumerate(lst):
            if pred(e): idx = i
        return idx
    for ins in prog:
        if ins.kind == "raw":
            out.append(ins); continue
        wv = wl = None
        if ins.kind == "waittag":
            i = need(vm, lambda e: e[1] in ins.vm)
            if i >= 0: wv = len(vm) - 1 - i
            i = need(lg, lambda e: e[1] in ins.lg)
            if i >= 0: wl = len(lg) - 1 - i
        elif ins.kind == "wait":
            m = re.search(r"vmcnt\((\d+)\)", ins.text)
            if m:
                k = int(m.group(1)); vm = vm[len(vm) - k:] if k < len(vm) else vm
            m = re.search(r"lgkmcnt\((\d+)\)", ins.text)
            if m:
                k = int(m.group(1)); lg = lg[len(lg) - k:] if k < len(lg) else lg
            out.append(ins); continue
        else:
            touch = ins.rd | ins.wr
            if ins.kind == "vld" and "d16" in ins.op:
                touch = ins.rd - ins.wr
            i = need(vm, lambda e: e[0] & touch)
            if i >= 0: wv = len(vm) - 1 - i
            i = need(lg, lambda e: e[0] & touch)
            if i >= 0: wl = len(lg) - 1 - i
        if wl is not None and any(e[2] == "smem" for e in lg):
            wl = 0
        if wv is not None or wl is not None:
            s = []
            if wv is not None:
                assert wv <= 63
                s.append(f"vmcnt({wv})"); vm = vm[len(vm) - wv:] if wv else []
            if wl is not None:
                wl = min(wl, 15)
                s.append(f"lgkmcnt({wl})"); lg = lg[len(lg) - wl:] if wl else []
            out.append(I("s_waitcnt " + " ".join(s)))
        if ins.kind == "waittag":
            continue
        if ins.kind in VMK:
            if len(vm) >= 63:
                out.append(I("s_waitcnt vmcnt(62)")); vm = vm[len(vm) - 62:]
            vm.append((set(ins.wr), ins.tag, ins.kind))
        elif ins.kind in LGK:
            if len(lg) >= 15:
                out.append(I("s_waitcnt lgkmcnt(14)")); lg = lg[len(lg) - 14:]
                if any(e[2] == "smem" for e in lg): raise ValueError("smem overflow")
            lg.append((set(ins.wr), ins.tag, ins.kind))
        out.append(ins)
    return out

def _isv(r): return r[0] in "va" and r not in ("vcc",)
def _iss(r): return r[0] == "s" and r != "scc" or r == "vcc"

def required_states(p, c):
    n = 0
    pv = p.kind in ("valu", "trans")
    cv = c.kind in ("valu", "trans")
    cmem = c.kind in ("vld", "vst", "dma", "dsr", "dsw")
    if pv:
        vw = {r for r in p.wr if _isv(r)}
        sw = {r for r in p.wr if _iss(r)}
        if c.kind == "mfma" and vw & c.rd: n = max(n, 2)
        if p.kind == "trans" and c.kind == "valu" and vw & c.rd: n = max(n, 1)
        if p.kind == "trans" and cmem and vw & c.rd: n = max(n, 1)
        if cv and c.op.startswith(("v_readlane", "v_readfirstlane")) and vw & c.rd: n = max(n, 1)
        if cv and c.op.startswith("v_permlane") and vw & c.rd: n = max(n, 2)
        if cv and c.dpp and vw & c.rd: n = max(n, 2)
        if sw:
            if cv and sw & c.rd: n = max(n, 4 if c.op.startswith(("v_readlane", "v_writelane")) else 2)
            if c.kind in ("vld", "vst", "dma") and sw & c.rd: n = max(n, 5)
            if c.kind in ("salu", "branch") and sw & c.rd: n = max(n, 1)
        if "exec" in p.wr:
            n = max(n, 5)
    if p.kind == "mfma":
        big = p.passes == 8
        if c.kind == "mfma":
            if p.wr & c.mf_ab: n = max(n, 12 if big else 8)
            if p.wr & c.mf_c:
                same = (p.wr == c.mf_c and p.passes == c.passes)
                if not same: n = max(n, 10 if big else 6)
            elif p.wr & c.wr:
                n = max(n, 0 if p.wr == c.wr and p.passes == c.passes else (10 if big else 6))
        elif cv or cmem:
            if p.wr & (c.rd | c.wr): n = max(n, 12 if big else 8)
            if cv and p.mf_c & c.wr: n = max(n, 7 if big else 3)
    if p.kind == "salu" and "m0" in p.wr and c.kind == "dma": n = max(n, 1)
    if p.kind == "vst" and ("x4" in p.op or "x3" in p.op):
        dat = set(_regs(re.split(r",(?![^\[]*\])", p.text.split(None, 1)[1])[0 if p.op.startswith("buffer") else 1]))
        if dat & c.wr: n = max(n, 2 if cv else 1)
    if p.kind == "dsw" and ("b128" in p.op or "b96" in p.op):
        if (p.rd & c.wr) and cv: n = max(n, 1)
    return n

def pad_hazards(prog, lookback=14):
    out = []
    for ins in prog:
        if ins.kind in ("raw", "label"):
            out.append(ins); continue
        need = 0; dist = 0
        for p in reversed(out):
            if p.kind in ("raw", "label"): continue
            if dist >= lookback: break
            r = required_states(p, ins)
            if r > dist: need = max(need, r - dist)
            dist += p.nwait
        while need > 0:
            k = min(need, 16)
            out.append(I(f"s_nop {k-1}")); need -= k
        out.append(ins)
    return out

def render(prog):
    lines = []
    for i in prog:
        if i.kind == "raw": lines.append(i.text)
        elif i.kind == "label": lines.append(i.text)
        else: lines.append("    " + i.text + (f"    ; {i.comment}" if getattr(i, "comment", None) else ""))
    return "\n".join(lines) + "\n"

def finalize(prog):
    return render(pad_hazards(insert_waits(flat(prog))))

class Prog:
    def __init__(self):
        self.l = []
    def __call__(self, text, tag=None, comment=None):
        for line in text.strip().split("\n"):
            line = line.split(";")[0].strip()
            if line:
                self.l.append(I(line, tag, comment))
        return self
    def b(self, *texts, tag=None):
        self.l.append(Bundle([I(t, tag) for t in texts])); return self
    def add(self, x):
        if isinstance(x, Prog): self.l += x.l
        elif isinstance(x, list): self.l += x
        else: self.l.append(x)
        return self
    def wait(self, vm=(), lg=()):
        self.l.append(WaitTag(vm, lg)); return self

def weave(main, sides):
    n = len(main)
    buckets = [[] for _ in range(n)]
    info = []
    for (a, b, lst) in sides:
        lst = flat(lst.l if isinstance(lst, Prog) else lst)
        rd = set().union(*[i.rd for i in lst]) - {"exec", "scc"}
        wr = set().union(*[i.wr for i in lst]) - {"exec", "scc"}
        info.append((a, b, rd, wr))
    for x in range(len(info)):
        for y in range(x + 1, len(info)):
            a, b, rd, wr = info[x]; a2, b2, rd2, wr2 = info[y]
            if a < b2 and a2 < b:
                c = (wr & (rd2 | wr2)) | (wr2 & rd)
                assert not c, f"streams {x} {(a,b)} and {y} {(a2,b2)} conflict on {sorted(c)}"
    for (a, b, lst) in sides:
        lst = lst.l if isinstance(lst, Prog) else lst
        tot = sum(max(i.cost, 0.01) for i in lst)
        if tot == 0: continue
        cum = 0.0
        for i in lst:
            pos = a + int((cum / tot) * (b - a))
            pos = min(max(pos, a), b - 1)
            buckets[pos].append(i)
            cum += max(i.cost, 0.01)
    out = []
    loads = []
    for g in range(n):
        out += main[g]
        out += buckets[g]
        loads.append(sum(i.cost for i in main[g] if i.kind != "mfma") + sum(i.cost for i in buckets[g]))
    return out, loads

KD = """.section .rodata,"a"
.p2align 6
.amdhsa_kernel {name}
  .amdhsa_next_free_vgpr {vgpr}
  .amdhsa_next_free_sgpr {sgpr}
  .amdhsa_accum_offset {acc}
  .amdhsa_group_segment_fixed_size 0
  .amdhsa_kernarg_size 88
  .amdhsa_user_sgpr_count 2
  .amdhsa_user_sgpr_kernarg_segment_ptr 1
  .amdhsa_system_sgpr_workgroup_id_x 1
.end_amdhsa_kernel
.text
"""
def kd(name, vgpr, sgpr=102, acc=None):
    if acc is None: acc = min(256, (vgpr + 3) // 4 * 4)
    return KD.format(name=name, vgpr=vgpr, sgpr=sgpr, acc=acc)
def entry(name):
    return f".globl {name}\n.p2align 8\n.type {name},@function\n{name}:\n"
```

```python
S, D, H, DH, F = 2048, 576, 32, 18, 4608
XF_OFF = 0x000000;  XF_SZ = 64*36*1024
WF_OFF = 0x240000;  WF_SZ = 32*2*36*1024
WO_OFF = 0x480000;  WO_SZ = 36*18*1024
KV_OFF = 0x530000;  KV_SZ = 32*18*256
CT_OFF = KV_OFF + KV_SZ; CT_SZ = 4096
OF_OFF = 0x560000;  OF_SZ = 128*18*1024
HF_OFF = 0x7A0000;  HF_SZ = 128*144*1024
WS_USED = HF_OFF + HF_SZ
X_SZ = S*D*2
WQKV_SZ = D*3*D*2
WPHI_SZ = H*DH*DH*2
WOIN_SZ = D*D*2
WG_SZ = D*F*2
```

```python
from asmgen import *
from layout import *
from prep import srd, np_f32

G0, G1 = 0, 36864
U0, U1 = 73760, 73760 + 36864
SCR = 147488
SCR_W = 3840
LDS_BYTES = SCR + 4 * SCR_W
GB = (G0, G1); UB = (U0, U1)

S_XF, S_WF, S_WG, S_WU, S_HF, S_KV, S_OF, S_DBG = 4, 8, 12, 16, 20, 24, 28, 32
S_W, S_MT, S_J = 36, 37, 38
S_T0, S_T1, S_T2, S_T3 = 40, 41, 42, 43
S_M0W = 44
S_FB = 45
S_CG = 50
S_NL2E = 55
S_L2E = 56
S_PAR = 58
S_SO = 60
S_SO2 = 61
S_KVB = 62
S_POLL = 63
S_TM = 64

V_X0, V_X1, V_L0, V_L1, V_W, V_TR0, V_TR1, V_B0, V_B1, V_H, V_SW, V_SR = 1, 2, 3, 4, 5, 6, 7, 8, 9, 10, 11, 12
V_LANE = 13
V_A, V_Bq = 14, 15
XT = 16
ACC = 48
RING = 176
MV = 192
E = 208
SM = 218
KA = 224
EP = 248
MF = "v_mfma_f32_32x32x16_bf16"
MF16 = "v_mfma_f32_16x16x32_bf16"
L2E = 1.4426950408889634

STAMPS = [68, 70] + list(range(84, 102, 2))
def stamp(i): return [I(f"s_memtime s[{STAMPS[i]}:{STAMPS[i]+1}]")]
def xreg(tt, s):
    if tt == 0: b = 4 * s; return f"a[{b}:{b+3}]"
    if s < 28: b = 144 + 4 * s; return f"a[{b}:{b+3}]"
    b = XT + 4 * (s - 28); return f"v[{b}:{b+3}]"

def acc(st, tt): return ACC + 32 * st + 16 * tt
def vr(b, n): return f"v[{b}:{b+n-1}]"

def setup(p, opts):
    p("s_cmp_ge_u32 s2, 256")
    p("s_cbranch_scc1 LA_end")
    p("s_load_dwordx4 s[72:75], s[0:1], 40")
    p("s_load_dwordx4 s[76:79], s[0:1], 72")
    if opts.get("time"):
        p(f"s_memrealtime s[{S_TM}:{S_TM+1}]")
        p(f"s_memtime s[{STAMPS[0]}:{STAMPS[0]+1}]")
    p("v_lshrrev_b32 v14, 6, v0")
    p(f"v_and_b32 v{V_LANE}, 63, v0")
    p(f"v_readfirstlane_b32 s{S_W}, v14")
    p("s_and_b32 s40, s2, 7")
    p("s_lshr_b32 s41, s2, 3")
    p("s_and_b32 s42, s40, 1")
    p("s_lshl_b32 s42, s42, 2")
    p("s_and_b32 s43, s41, 3")
    p(f"s_add_u32 s{S_MT}, s42, s43")
    p("s_lshr_b32 s42, s40, 1")
    p("s_lshl_b32 s42, s42, 3")
    p("s_lshr_b32 s43, s41, 2")
    p(f"s_add_u32 s{S_J}, s42, s43")
    p(f"s_lshl_b32 s{S_M0W}, s{S_W}, 10")
    L = V_LANE
    p(f"s_lshl_b32 s40, s{S_MT}, 3")
    p(f"s_lshl_b32 s41, s{S_W}, 1")
    p("s_add_u32 s40, s40, s41")
    p("s_mul_i32 s40, s40, 36864")
    p(f"v_lshlrev_b32 v{V_B0}, 4, v{L}")
    p(f"v_add_u32 v{V_X0}, s40, v{V_B0}")
    p(f"v_add_u32 v{V_X1}, 36864, v{V_X0}")
    p(f"s_mul_i32 s40, s{S_J}, 73728")
    p(f"s_add_u32 s40, s40, s{S_M0W}")
    p(f"v_add_u32 v{V_L0}, s40, v{V_B0}")
    p(f"v_add_u32 v{V_L1}, 36864, v{V_L0}")
    p(f"v_lshrrev_b32 v14, 2, v{L}")
    p(f"s_lshl_b32 s40, s{S_W}, 4")
    p("v_add_u32 v14, s40, v14")
    p("v_mul_u32_u24 v14, 9216, v14")
    p(f"v_and_b32 v15, 3, v{L}")
    p(f"v_lshl_add_u32 v{V_W}, v15, 4, v14")
    p(f"s_mul_i32 s40, s{S_J}, 144")
    p(f"s_and_b32 s41, s{S_J}, 1")
    p("s_lshl_b32 s42, s41, 4")
    p("s_add_u32 s42, s42, s40")
    p("s_cmp_eq_u32 s41, 0")
    p("s_cselect_b32 s43, 128, 0")
    p("s_add_u32 s43, s43, s40")
    for u in range(4):
        p(f"s_add_u32 s40, s42, {32*u}")
        p(f"s_lshl_b32 s{S_FB+u}, s40, 1")
        p(f"s_lshl_b32 s{S_CG+u}, s40, 5")
    p(f"s_lshl_b32 s{S_FB+4}, s43, 1")
    p(f"s_lshl_b32 s{S_CG+4}, s43, 5")
    p("s_waitcnt lgkmcnt(0)")
    srd(p, S_XF, 78, XF_OFF, XF_SZ)
    srd(p, S_WF, 78, WF_OFF, WF_SZ)
    srd(p, S_WG, 72, 0, WG_SZ)
    srd(p, S_WU, 74, 0, WG_SZ)

def setup2(p, opts):
    L = V_LANE
    srd(p, S_HF, 78, HF_OFF, HF_SZ)
    srd(p, S_KV, 78, KV_OFF, KV_SZ)
    srd(p, S_OF, 78, OF_OFF, OF_SZ)
    srd(p, S_DBG, 78, CT_OFF, CT_SZ)
    p(f"v_add_u32 v{V_B1}, {U0}, v{V_B0}")
    p(f"v_bfe_u32 v14, v{L}, 4, 1")
    p(f"v_mul_u32_u24 v14, {U0}, v14")
    p(f"v_lshrrev_b32 v15, 5, v{L}")
    p("v_lshl_add_u32 v14, v15, 9, v14")
    p(f"v_bfe_u32 v15, v{L}, 2, 2")
    p("v_lshl_add_u32 v14, v15, 6, v14")
    p(f"v_and_b32 v15, 3, v{L}")
    p(f"v_lshl_add_u32 v{V_TR0}, v15, 3, v14")
    p(f"v_add_u32 v{V_TR1}, 36864, v{V_TR0}")
    p(f"s_lshl_b32 s40, s{S_MT}, 4")
    p(f"s_lshl_b32 s41, s{S_W}, 2")
    p("s_add_u32 s40, s40, s41")
    p(f"v_bfe_u32 v14, v{L}, 4, 1")
    p("v_add_u32 v14, s40, v14")
    p("v_mul_u32_u24 v14, 147456, v14")
    p(f"v_and_b32 v15, 15, v{L}")
    p("v_lshl_add_u32 v14, v15, 4, v14")
    p(f"v_lshrrev_b32 v15, 5, v{L}")
    p(f"v_lshl_add_u32 v{V_H}, v15, 8, v14")
    p(f"s_mul_i32 s40, s{S_W}, {SCR_W}")
    p(f"s_add_u32 s40, s40, {SCR}")
    p(f"v_and_b32 v14, 31, v{L}")
    p("v_mul_u32_u24 v14, 120, v14")
    p("v_lshl_add_u32 v14, v15, 3, v14")
    p(f"v_add_u32 v{V_SW}, s40, v14")
    p(f"v_lshrrev_b32 v14, 4, v{L}")
    p(f"v_bfe_u32 v15, v{L}, 2, 2")
    p("v_lshl_add_u32 v14, v14, 3, v15")
    p("v_mul_u32_u24 v14, 120, v14")
    p(f"v_and_b32 v15, 3, v{L}")
    p("v_lshl_add_u32 v14, v15, 3, v14")
    p(f"v_add_u32 v{V_SR}, s40, v14")
    p(f"s_mov_b32 s{S_NL2E}, 0x{np_f32(-L2E):08x}")
    p(f"s_mov_b32 s{S_L2E}, 0x{np_f32(L2E):08x}")
    p(f"s_and_b32 s40, s{S_J}, 1")
    p("s_cmp_eq_u32 s40, 1")
    p(f"s_cselect_b64 s[{S_PAR}:{S_PAR+1}], -1, 0")
    p(f"s_mul_i32 s{S_KVB}, s{S_J}, 4608")
    p(f"v_lshrrev_b32 v15, 5, v{L}")
    p("v_cmp_ne_u32 vcc, s40, v15")
    p("v_mov_b32 v14, 1.0")
    p("v_cndmask_b32 v0, 0, v14, vcc")

def dma_unit_group(u, g):
    b = (u + 1) & 1
    q = Prog()
    q(f"s_add_u32 m0, s{S_M0W}, {GB[b] + g*4096}")
    q(f"s_add_u32 s{S_SO}, s{S_FB+u}, {g*589824}")
    q(f"buffer_load_dwordx4 v{V_W}, s[{S_WG}:{S_WG+3}], s{S_SO} offen lds", tag=f"U{u}g{g}")
    q(f"s_add_u32 m0, s{S_M0W}, {UB[b] + g*4096}")
    q(f"buffer_load_dwordx4 v{V_W}, s[{S_WU}:{S_WU+3}], s{S_SO} offen lds", tag=f"U{u}g{g}")
    return q

def startup_group(g):
    q = Prog()
    q(f"s_add_u32 m0, s{S_M0W}, {U0 + g*4096}")
    q(f"s_mov_b32 s{S_SO2}, {g*4096}")
    q(f"buffer_load_dwordx4 v{V_L1}, s[{S_WF}:{S_WF+3}], s{S_SO2} offen lds", tag=f"S{g}")
    q(f"s_add_u32 m0, s{S_M0W}, {G0 + g*4096}")
    q(f"buffer_load_dwordx4 v{V_L0}, s[{S_WF}:{S_WF+3}], s{S_SO2} offen lds", tag=f"S{g}")
    q.add(dma_unit_group(0, g))
    for s in range(4*g, 4*g+4):
        for tt in range(2):
            q(f"buffer_load_dwordx4 {xreg(tt, s)}, v{V_X0+tt}, s[{S_XF}:{S_XF+3}], s{S_SO2} offen offset:{(s&3)*1024}")
    return q

def ffn_epi(st, u, xy, opts):
    q = Prog()
    pol = opts.get("hpol", "")
    for tt in range(2):
        a = acc(st, tt)
        for r in range(8): q(f"v_mul_f32 v{EP+r}, s{S_NL2E}, v{a+r}")
        for r in range(8): q(f"v_exp_f32 v{EP+r}, v{EP+r}")
        for r in range(8): q(f"v_mul_f32 v{a+r}, v{a+r}, v{a+8+r}")
        for r in range(8): q(f"v_add_f32 v{EP+r}, 1.0, v{EP+r}")
        for r in range(8): q(f"v_rcp_f32 v{EP+r}, v{EP+r}")
        q(f"s_add_u32 s{S_SO2}, s{S_CG+u}, {xy*512 + tt*294912}")
        for r in range(8): q(f"v_mul_f32 v{a+r}, v{a+r}, v{EP+r}")
        for r in range(4): q(f"v_cvt_pk_bf16_f32 v{a+8+r}, v{a+2*r}, v{a+2*r+1}")
        q(f"buffer_store_dwordx4 {vr(a+8,4)}, v{V_H}, s[{S_HF}:{S_HF+3}], s{S_SO2} offen {pol}", tag="hst")
    return q

def softmax2(q, src, outs):
    m, n, t, c1, c2, t2 = SM, SM+1, SM+2, SM+3, SM+4, SM+5
    q(f"v_max3_f32 v{m}, v{src[0]}, v{src[1]}, v{src[2]}")
    q(f"v_max3_f32 v{n}, -v{src[0]}, -v{src[1]}, -v{src[2]}")
    q(f"v_max3_f32 v{c1}, v{src[3]}, v{src[4]}, v{src[5]}")
    q(f"v_max3_f32 v{c2}, -v{src[3]}, -v{src[4]}, -v{src[5]}")
    q(f"v_max3_f32 v{t}, v{src[6]}, v{src[7]}, v{src[8]}")
    q(f"v_max3_f32 v{t2}, -v{src[6]}, -v{src[7]}, -v{src[8]}")
    q(f"v_max3_f32 v{m}, v{m}, v{c1}, v{t}")
    q(f"v_max3_f32 v{n}, v{n}, v{c2}, v{t2}")
    q(f"v_permlane32_swap_b32 v{m}, v{n}")
    q(f"v_max_f32 v{m}, v{m}, v{n}")
    q(f"v_mul_f32 v{m}, s{S_NL2E}, v{m}")
    q(f"v_mov_b32 v{n}, v{m}")
    q(f"v_permlane32_swap_b32 v{m}, v{n}")
    for i in range(9): q(f"v_fma_f32 v{E+i}, -v{src[i]}, s{S_L2E}, v{n}")
    for i in range(9): q(f"v_fma_f32 v{src[i]}, v{src[i]}, s{S_L2E}, v{m}")
    for i in range(9): q(f"v_exp_f32 v{E+i}, v{E+i}")
    for i in range(9): q(f"v_exp_f32 v{src[i]}, v{src[i]}")
    q(f"v_add_f32 v{n}, v{E}, v{E+1}")
    q(f"v_add_f32 v{c2}, v{E+2}, v{E+3}")
    q(f"v_add_f32 v{m}, v{src[0]}, v{src[1]}")
    q(f"v_add_f32 v{c1}, v{src[2]}, v{src[3]}")
    for i in (4, 6):
        q(f"v_add_f32 v{n}, v{n}, v{E+i}")
        q(f"v_add_f32 v{c2}, v{c2}, v{E+i+1}")
        q(f"v_add_f32 v{m}, v{m}, v{src[i]}")
        q(f"v_add_f32 v{c1}, v{c1}, v{src[i+1]}")
    q(f"v_add_f32 v{n}, v{n}, v{E+8}")
    q(f"v_add_f32 v{m}, v{m}, v{src[8]}")
    q(f"v_add_f32 v{n}, v{n}, v{c2}")
    q(f"v_add_f32 v{m}, v{m}, v{c1}")
    q(f"v_permlane32_swap_b32 v{m}, v{n}")
    q(f"v_add_f32 v{m}, v{m}, v{n}")
    q(f"v_rcp_f32 v{m}, v{m}")
    q(f"v_mov_b32 v{n}, v{m}")
    q(f"v_permlane32_swap_b32 v{m}, v{n}")
    for i in range(9): q(f"v_mul_f32 v{src[i]}, v{src[i]}, v{m}")
    for i in range(9): q(f"v_mul_f32 v{E+i}, v{E+i}, v{n}")
    allv = list(src) + [E + i for i in range(9)]
    for i in range(9): q(f"v_cvt_pk_bf16_f32 v{outs[i]}, v{allv[2*i]}, v{allv[2*i+1]}")

def moves_a2():
    q = Prog()
    for tt in range(2):
        a = acc(1, tt); m = MV + 8 * tt
        q(f"v_add_f32 v{a+10}, v{a+10}, v0")
        q(f"v_mov_b32 v{m+6}, v{a}")
        q(f"v_mov_b32 v{m+7}, v{a+1}")
        for r in range(5): q(f"v_cvt_pk_bf16_f32 v{m+r}, v{a+2+2*r}, v{a+3+2*r}")
    return q

def k_part():
    q = Prog()
    KF = E
    for tt in range(2):
        a = acc(0, tt); m = MV + 8 * tt
        src = [a+9+i for i in range(7)] + [m+6, m+7]
        outs = [a+10, a+11, a+12, a+13, a+14, a+15, E, E+1, m+5]
        softmax2(q, src, outs)
        for off, r in ((0, a+10), (16, a+12), (32, a+14), (48, E), (64, m), (80, m+2), (96, m+4)):
            q(f"ds_write_b64 v{V_SW}, {vr(r,2)} offset:{off}")
        for f, cb in enumerate((0, 16, 32, 48)):
            for sec in range(2):
                q(f"ds_read_b64_tr_b16 {vr(KF+4*f+2*sec,2)}, v{V_SR} offset:{sec*480 + cb*2}")
        for rt, fa in enumerate((0, 1, 3)):
            for ct, fb in enumerate((2, 3)):
                d = KA + 4 * (2*rt + ct)
                c = vr(d, 4) if tt else "0"
                q(f"{MF16} {vr(d,4)}, {vr(KF+4*fa,4)}, {vr(KF+4*fb,4)}, {c}")
    L = V_LANE; A1, A2, A3 = V_X0, V_X1, V_L0
    q(f"s_mul_i32 s40, s{S_W}, {SCR_W}")
    q(f"s_add_u32 s40, s40, {SCR}")
    q(f"v_lshl_add_u32 v{A1}, v{L}, 4, s40")
    q(f"v_lshrrev_b32 v{V_A}, 4, v{L}")
    q(f"v_and_b32 v{V_Bq}, 15, v{L}")
    q(f"v_lshl_add_u32 v{V_A}, v{V_A}, 3, v{V_Bq}")
    q(f"v_cmp_gt_u32 vcc, 8, v{V_Bq}")
    q(f"v_mov_b32 v{A3}, {(3456-2048)//16}")
    q(f"v_cndmask_b32 v{A2}, v{A3}, v{V_A}, vcc")
    q(f"v_lshl_add_u32 v{V_L1}, v{A2}, 4, s40")
    q(f"ds_write_b128 v{A1}, {vr(KA,4)}")
    q(f"ds_write_b128 v{A1}, {vr(KA+8,4)} offset:1024")
    q(f"ds_write_b128 v{V_L1}, {vr(KA+4,4)} offset:2048")
    q(f"v_mov_b32 v{A3}, {(3456-2560)//16}")
    q(f"v_cndmask_b32 v{A3}, v{A3}, v{V_A}, vcc")
    q(f"v_lshl_add_u32 v{A3}, v{A3}, 4, s40")
    q(f"ds_write_b128 v{A3}, {vr(KA+12,4)} offset:2560")
    q(f"v_cmp_gt_u32 s[42:43], 32, v{L}")
    q(f"v_mov_b32 v{A3}, {(3456-3072)//8}")
    q(f"v_cndmask_b32 v{A3}, v{A3}, v{L}, s[42:43]")
    q(f"v_lshl_add_u32 v{A3}, v{A3}, 3, s40")
    q(f"ds_write_b64 v{A3}, {vr(KA+18,2)} offset:3072")
    q(f"s_and_b64 vcc, vcc, s[42:43]")
    q(f"v_mov_b32 v{A3}, {(3456-3328)//8}")
    q(f"v_cndmask_b32 v{A3}, v{A3}, v{V_A}, vcc")
    q(f"v_lshl_add_u32 v{A3}, v{A3}, 3, s40")
    q(f"ds_write_b64 v{A3}, {vr(KA+22,2)} offset:3328", tag="part")
    return q

OOB = 0x7ff00000
def kv_reduce():
    q = Prog()
    L = V_LANE; A1, A2, G1_, G2_ = V_X0, V_X1, V_L0, V_L1
    T = KA
    q(f"s_and_b32 s40, s{S_W}, 1")
    q(f"s_lshr_b32 s41, s{S_W}, 1")
    q.b("s_cmp_eq_u32 s41, 0", "s_cselect_b64 vcc, -1, 0")
    q(f"v_cndmask_b32 v{A1}, v{V_A}, v{L}, vcc")
    q("s_lshl_b32 s42, s40, 10")
    q("s_lshl_b32 s43, s40, 9")
    q("s_add_u32 s43, s43, 2048")
    q.b("s_cmp_eq_u32 s41, 0", "s_cselect_b32 s42, s42, s43")
    q(f"s_add_u32 s42, s42, {SCR}")
    q(f"v_lshl_add_u32 v{A1}, v{A1}, 4, s42")
    for w in range(4):
        q(f"ds_read_b128 {vr(T+4*w,4)}, v{A1} offset:{w*SCR_W}")
    q.b("s_cmp_eq_u32 s40, 0", "s_cselect_b64 vcc, -1, 0")
    q(f"v_cndmask_b32 v{A2}, v{V_A}, v{L}, vcc")
    q("s_lshl_b32 s42, s40, 8")
    q(f"s_add_u32 s42, s42, {SCR+3072}")
    q(f"v_lshl_add_u32 v{A2}, v{A2}, 3, s42")
    for w in range(4):
        q(f"ds_read_b64 {vr(T+16+2*w,2)}, v{A2} offset:{w*SCR_W}")
    q(f"v_lshrrev_b32 v{G1_}, 5, v{L}")
    q(f"v_lshlrev_b32 v{G1_}, 10, v{G1_}")
    q(f"v_bfe_u32 v{G2_}, v{L}, 4, 1")
    q(f"v_lshlrev_b32 v{G2_}, 7, v{G2_}")
    q(f"v_lshl_add_u32 v{G2_}, v{V_Bq}, 2, v{G2_}")
    q("s_lshl_b32 s42, s40, 11")
    q("s_lshl_b32 s43, s41, 6")
    q("s_add_u32 s42, s42, s43")
    q(f"v_add3_u32 v{G1_}, v{G1_}, v{G2_}, s42")
    q("s_lshl_b32 s43, s41, 3")
    q("s_sub_u32 s43, 16, s43")
    q(f"v_cmp_gt_u32 vcc, s43, v{V_Bq}")
    q(f"v_mov_b32 v{A1}, {OOB}")
    q(f"v_cndmask_b32 v{G1_}, v{A1}, v{G1_}, vcc")
    q("s_lshl_b32 s42, s40, 6")
    q("s_add_u32 s42, s42, 4096")
    q(f"v_add_u32 v{G2_}, s42, v{G2_}")
    q("s_lshl_b32 s43, s40, 3")
    q("s_sub_u32 s43, 16, s43")
    q.b("s_cmp_eq_u32 s41, 0", "s_cselect_b32 s43, s43, 0")
    q(f"v_cmp_gt_u32 vcc, s43, v{V_Bq}")
    q(f"v_cmp_gt_u32 s[42:43], 32, v{L}")
    q("s_and_b64 vcc, vcc, s[42:43]")
    q(f"v_cndmask_b32 v{G2_}, v{A1}, v{G2_}, vcc")
    for i in range(4):
        q(f"v_add_f32 v{T+i}, v{T+i}, v{T+4+i}")
        q(f"v_add_f32 v{T+8+i}, v{T+8+i}, v{T+12+i}")
    for i in range(2):
        q(f"v_add_f32 v{T+16+i}, v{T+16+i}, v{T+18+i}")
        q(f"v_add_f32 v{T+20+i}, v{T+20+i}, v{T+22+i}")
    for i in range(4): q(f"v_add_f32 v{T+i}, v{T+i}, v{T+8+i}")
    for i in range(2): q(f"v_add_f32 v{T+16+i}, v{T+16+i}, v{T+20+i}")
    for i in range(4):
        q(f"buffer_atomic_add_f32 v{T+i}, v{G1_}, s[{S_KV}:{S_KV+3}], s{S_KVB} offen offset:{i*256}", tag="atom")
    for i in range(2):
        q(f"buffer_atomic_add_f32 v{T+16+i}, v{G2_}, s[{S_KV}:{S_KV+3}], s{S_KVB} offen offset:{i*256}", tag="atom")
    return q

def counter_inc():
    q = Prog()
    L = V_LANE
    q(f"s_lshl_b32 s40, s{S_J}, 7")
    q(f"v_cmp_eq_u32 vcc, 0, v{L}")
    q(f"v_mov_b32 v{V_X0}, {OOB}")
    q(f"v_mov_b32 v{V_X1}, s40")
    q(f"v_cndmask_b32 v{V_X0}, v{V_X0}, v{V_X1}, vcc")
    q(f"v_mov_b32 v{V_L0}, 1")
    q.wait(vm=["atom"])
    q(f"buffer_atomic_add v{V_L0}, v{V_X0}, s[{S_DBG}:{S_DBG+3}], 0 offen")
    return q

def q_part():
    q = Prog()
    for tt in range(2):
        a = acc(0, tt)
        softmax2(q, [a+i for i in range(9)], [a+i for i in range(9)])
        for r in (9, 10, 11): q(f"v_mov_b32 v{a+r}, 0")
    return q

OA = MV
def o_addr():
    q = Prog()
    L = V_LANE
    q(f"s_lshr_b32 s40, s{S_J}, 1")
    q("s_mul_i32 s40, s40, 9")
    q(f"v_lshrrev_b32 v{V_A}, 5, v{L}")
    q(f"v_sub_u32 v{V_Bq}, 5, v{V_A}")
    q(f"v_mov_b32 v{OA+5}, 0")
    q(f"v_cndmask_b32 v{V_Bq}, v{OA+5}, v{V_Bq}, s[{S_PAR}:{S_PAR+1}]")
    q(f"v_add_u32 v{V_Bq}, s40, v{V_Bq}")
    q(f"s_lshl_b32 s40, s{S_MT}, 4")
    q(f"s_lshl_b32 s41, s{S_W}, 2")
    q("s_add_u32 s40, s40, s41")
    q(f"v_bfe_u32 v{OA+5}, v{L}, 4, 1")
    q(f"v_add_u32 v{OA+5}, s40, v{OA+5}")
    q(f"v_mul_u32_u24 v{OA+5}, 18432, v{OA+5}")
    q(f"v_lshl_add_u32 v{OA+5}, v{V_A}, 8, v{OA+5}")
    q(f"v_and_b32 v{OA+6}, 15, v{L}")
    q(f"v_lshl_add_u32 v{OA+5}, v{OA+6}, 4, v{OA+5}")
    for i in range(5):
        q(f"v_add_u32 v{OA+6}, {i}, v{V_Bq}")
        q(f"v_lshrrev_b32 v{OA+7}, 2, v{OA+6}")
        q(f"v_and_b32 v{OA+6}, 3, v{OA+6}")
        q(f"v_lshl_add_u32 v{OA+7}, v{OA+7}, 9, v{OA+5}")
        q(f"v_lshl_add_u32 v{OA+i}, v{OA+6}, 2, v{OA+7}")
    q("v_cmp_eq_f32 vcc, 0, v0")
    q(f"v_mov_b32 v{OA+6}, {OOB}")
    q(f"v_cndmask_b32 v{OA+4}, v{OA+6}, v{OA+4}, vcc")
    q(f"v_lshlrev_b32 v{OA+8}, 2, v{L}")
    q(f"s_lshl_b32 s40, s{S_J}, 7")
    q(f"v_mov_b32 v{OA+9}, s40")
    return q

def poll_issue():
    q = Prog()
    q(f"buffer_load_dword v{OA+10}, v{OA+9}, s[{S_DBG}:{S_DBG+3}], 0 offen sc1")
    return q

def poll_check_and_load():
    q = Prog()
    q(f"v_readfirstlane_b32 s{S_POLL}, v{OA+10}")
    q(f"s_cmp_ge_u32 s{S_POLL}, 32")
    q("s_cbranch_scc0 LA_slow")
    q("LA_back:")
    for s in range(18):
        if s == 16: q(f"s_add_u32 s40, s{S_KVB}, 4096")
        so = f"s{S_KVB}" if s < 16 else "s40"
        q(f"buffer_load_dword v{KA+s}, v{OA+8}, s[{S_KV}:{S_KV+3}], {so} offen offset:{(s&15)*256} sc1")
    return q

def o_finish(opts):
    q = Prog()
    for i in range(9): q(f"v_cvt_pk_bf16_f32 v{E+i}, v{KA+2*i}, v{KA+2*i+1}")
    for r in (9, 10, 11): q(f"v_mov_b32 v{E+r}, 0")
    D_ = (acc(2, 0), acc(2, 1))
    for f in range(3):
        for tt in range(2):
            c = vr(D_[tt], 16) if f else "0"
            q(f"{MF} {vr(D_[tt],16)}, {vr(E+4*f,4)}, {vr(acc(0,tt)+4*f,4)}, {c}")
    for tt in range(2):
        d = D_[tt]
        q(f"v_mov_b32 v{d+12}, v{d+8}")
        q(f"v_mov_b32 v{d+13}, v{d+8}")
    for tt in range(2):
        d = D_[tt]
        q(f"v_permlane32_swap_b32 v{d+12}, v{d+13}")
    for tt in range(2):
        d = D_[tt]
        q(f"v_cndmask_b32 v{d+12}, v{d+13}, v{d+12}, s[{S_PAR}:{S_PAR+1}]")
        q(f"v_add_f32 v{d+12}, 0x{np_f32(1e-6):08x}, v{d+12}")
        q(f"v_rcp_f32 v{d+12}, v{d+12}")
    for tt in range(2):
        d = D_[tt]
        for r in range(10): q(f"v_mul_f32 v{d+r}, v{d+r}, v{d+12}")
        q(f"s_mov_b32 s40, {tt*2*18432}")
        for r in range(5):
            q(f"v_cvt_pk_bf16_f32 v{d+r}, v{d+2*r}, v{d+2*r+1}")
        for r in range(5):
            q(f"buffer_store_dword v{d+r}, v{OA+r}, s[{S_OF}:{S_OF+3}], s40 offen")
    return q

def gen(name, opts):
    out = entry(name)
    p = Prog()
    setup(p, opts)
    NUP = opts.get('nup', 2)
    for g in range(NUP): p.add(startup_group(g))
    setup2(p, opts)
    frags = []
    def trfrag(u, xy, s):
        b = (u + 1) & 1
        va = V_TR0 + b
        return [("ds_read_b64_tr_b16", 0, 2, va, s*1024 + xy*32), ("ds_read_b64_tr_b16", 2, 2, va, s*1024 + 256 + xy*32)]
    for s in range(36):
        frags.append(([("ds_read_b128", 0, 4, V_B1, s*1024)], 1, s))
        frags.append(([("ds_read_b128", 0, 4, V_B0, s*1024)], 0, s))
        frags.append((trfrag(0, 0, s), 2, s))
        frags.append((trfrag(0, 1, s), 3, s))
    chain_set = {2: 1, 3: 2, 4: 3, 5: 1, 6: 2, 7: 3, 8: 1}
    chain_start = {}
    for c in range(2, 9):
        chain_start[c] = len(frags)
        for s in range(36):
            frags.append((trfrag(c // 2, c & 1, s), chain_set[c], s))
    NF = len(frags)
    bars = {0: ["S0", "U0g0"]}
    for g in range(1, 9): bars[16*g] = [f"S{g}", f"U0g{g}"]
    bars[chain_start[2]] = [f"U1g{g}" for g in range(4)]
    bars[chain_start[2] + 16] = [f"U1g{g}" for g in range(4, 7)]
    bars[chain_start[2] + 28] = ["U1g7", "U1g8"]
    bars[chain_start[4]] = [f"U2g{g}" for g in range(9)]
    bars[chain_start[6]] = [f"U3g{g}" for g in range(9)]
    bars[chain_start[8]] = [f"U4g{g}" for g in range(9)]
    def reads(n):
        r = []
        slot = RING + 4 * (n & 3)
        for (op, o, cnt, va, off) in frags[n][0]:
            r.append(I(f"{op} {vr(slot+o,cnt)}, v{va} offset:{off}"))
        return r
    def barrier(n):
        return [WaitTag(vm=bars[n]), I("s_waitcnt lgkmcnt(0)"), I("s_barrier")]
    p.add(barrier(0))
    for n in range(3): p.add(reads(n))
    main = []
    for n in range(NF):
        _, st, s = frags[n]
        slot = RING + 4 * (n & 3)
        mf = []
        for tt in range(2):
            c = vr(acc(st, tt), 16) if s else "0"
            mf.append(I(f"{MF} {vr(acc(st,tt),16)}, {vr(slot,4)}, {xreg(tt,s)}, {c}"))
        m = n + 3
        if m < NF and m in bars:
            main.append([mf[0]])
            main.append(barrier(m) + reads(m) + [mf[1]])
        elif m < NF:
            main.append(reads(m) + [mf[0]])
            main.append([mf[1]])
        else:
            main.append([mf[0]]); main.append([mf[1]])
    C = {c: 2 * chain_start[c] for c in chain_start}; C[9] = 2 * NF
    sides = []
    for g in range(9 - NUP): sides.append((32*g, 32*g + 28, startup_group(g + NUP)))
    for g, ul in (((5, (0, 1)), (6, (2, 3)), (7, (4, 5)), (8, (6,))) if NUP == 4 else ((7, (0, 1, 2, 3)), (8, (4, 5, 6))) if NUP == 2 else ((6, (0, 1, 2)), (7, (3, 4)), (8, (5, 6)))):
        q = Prog()
        for x in ul: q.add(dma_unit_group(1, x))
        sides.append((32*g, 32*g + 24, q))
    sides.append((C[2] - 5, C[2], moves_a2()))
    q = Prog(); q.add(dma_unit_group(1, 7)); q.add(dma_unit_group(1, 8))
    sides.append((C[2], C[2] + 8, q))
    q = Prog()
    for g in range(9): q.add(dma_unit_group(2, g))
    sides.append((C[2] + 40, C[3] + 30, q))
    for u, c in ((3, 4), (4, 6)):
        q = Prog()
        for g in range(9): q.add(dma_unit_group(u, g))
        sides.append((C[c], C[c] + 50, q))
    setof = dict(chain_set); setof[0] = 2; setof[1] = 3
    for c in range(2, 8):
        e = c - 2
        sides.append((C[c] + 3, C[c+1] - 1, ffn_epi(setof[e], e // 2, e & 1, opts)))
    sides.append((C[8] + 0, C[8] + 36, ffn_epi(setof[6], 3, 0, opts)))
    sides.append((C[8] + 36, C[9], ffn_epi(setof[7], 3, 1, opts)))
    sides.append((C[2] + 3, C[6] - 8, k_part()))
    sides.append((C[6] - 2, C[6] + 30, kv_reduce()))
    qp = q_part()
    sides.append((C[6] + 30, C[8] - 10, qp))
    sides.append((C[7] + 20, C[7] + 24, counter_inc()))
    sides.append((C[8] - 10, C[8] + 20, o_addr()))
    sides.append((C[8] + 40, C[8] + 41, poll_issue()))
    if opts.get("time") == 2:
        main[0] = stamp(1) + main[0]
        for c in range(2, 9): main[C[c]] = stamp(c) + main[C[c]]
    if opts.get("time") == 3:
        main[0] = stamp(1) + main[0]
        main[C[2]] = stamp(2) + main[C[2]]
        main[C[8]] = stamp(3) + main[C[8]]
    woven, loads = weave(main, sides)
    if opts.get("verbose"):
        import sys
        for c0 in range(0, len(loads), 72):
            print("gap loads", c0, sum(loads[c0:c0+72]), max(loads[c0:c0+72]), file=sys.stderr)
    p.add(woven)
    if opts.get("time") == 2: p.add(stamp(9))
    T3 = opts.get("time") == 3
    if T3: p.add(stamp(4))
    p.add(poll_check_and_load())
    if T3: p.add(stamp(5))
    p.add(ffn_epi(setof[8], 4, 0, opts))
    if T3: p.add(stamp(6))
    of = o_finish(opts)
    if T3: of.l.insert(1, stamp(7)[0])
    p.add(of)
    if T3: p.add(stamp(8)); p(f"s_mov_b32 s{STAMPS[9]}, s{S_POLL}") if 0 else p.add(stamp(9))
    if opts.get("time"):
        p("s_waitcnt vmcnt(0)")
        p(f"s_memrealtime s[{S_TM+2}:{S_TM+3}]")
        srd(p, 80, 78, WS_USED, 49152 + 65536)
        p("s_waitcnt lgkmcnt(0)")
        for i in range(4): p(f"v_mov_b32 v{16+i}, s{S_TM+i}")
        p(f"s_lshl_b32 s40, s2, 2")
        p(f"s_add_u32 s40, s40, s{S_W}")
        p(f"s_lshl_b32 s40, s40, 4")
        p("v_mov_b32 v20, s40")
        p("buffer_store_dwordx4 v[16:19], v20, s[80:83], 0 offen")
        p.add(stamp(10))
        p("s_waitcnt lgkmcnt(0)")
        for i in range(11): p(f"v_mov_b32 v{24+i}, s{STAMPS[i]}")
        p("s_lshl_b32 s40, s40, 2")
        p("s_add_u32 s40, s40, 49152")
        p("v_mov_b32 v20, s40")
        for i in range(3): p(f"buffer_store_dwordx4 v[{24+4*i}:{27+4*i}], v20, s[80:83], 0 offen offset:{16*i}")
    p("s_endpgm")
    out += finalize(p.l)
    p = Prog()
    p("LA_slow:")
    p("s_mov_b32 s41, 0")
    p("LA_spin:")
    p("s_sleep 8")
    p(f"buffer_load_dword v{OA+10}, v{OA+9}, s[{S_DBG}:{S_DBG+3}], 0 offen sc1")
    p("s_waitcnt vmcnt(0)")
    p(f"v_readfirstlane_b32 s{S_POLL}, v{OA+10}")
    p("s_add_u32 s41, s41, 1")
    p(f"s_cmp_ge_u32 s{S_POLL}, 32")
    p("s_cbranch_scc1 LA_back")
    p("s_cmp_lt_u32 s41, 200000")
    p("s_cbranch_scc1 LA_spin")
    p("s_branch LA_back")
    p("LA_end:")
    p("s_endpgm")
    out += finalize(p.l)
    out += kd(name, 512, 102, 256)
    return out
```

```python
from asmgen import *
from layout import *
from prep import srd, np_f32

GRID = 234
NSLOT = 6
LDS_BYTES = 122880
MF16 = "v_mfma_f32_16x16x32_bf16"
L2E = 1.4426950408889634
S_HF, S_WD, S_OF, S_WO, S_X, S_OUT = 4, 8, 12, 16, 20, 24
S_W, S_M, S_N = 28, 29, 30
S_HO, S_WDO, S_LB, S_IT = 32, 33, 34, 35
S_OO, S_WOO = 36, 37
S_NL2E = 38
S_TM = 64
V_LANE = 1
V_H = 2
V_D = 7
V_T = 11
V_O = 12
V_WO = 17
V_XO = 18
V_R = 21
XR = 24
AF = 36
ACC1 = 72
ACC2 = 152
TMP = 232
def vr(b, n): return f"v[{b}:{b+n-1}]"
def ar(b, n): return f"a[{b}:{b+n-1}]"
def hreg(slot, tt): return ar(20*slot + 4*tt, 4)
def accr(base, tt, nt): return base + 16*tt + 4*nt

def issue_down(p, slot):
    for i in range(4):
        p(f"s_add_u32 m0, s{S_LB}, {slot*4096 + i*1024}")
        if i == 0: p(f"buffer_load_dwordx4 {hreg(slot,0)}, v{V_H}, s[{S_HF}:{S_HF+3}], s{S_HO} offen")
        else: p(f"buffer_load_dwordx4 {hreg(slot,i)}, v{V_H+i}, s[{S_HF}:{S_HF+3}], s{S_HO} offen")
        p(f"buffer_load_dwordx4 v{V_D+i}, s[{S_WD}:{S_WD+3}], s{S_WDO} offen lds")
    p(f"buffer_load_dwordx4 {hreg(slot,4)}, v{V_H+4}, s[{S_HF}:{S_HF+3}], s{S_HO} offen")
    p(f"s_add_u32 s{S_HO}, s{S_HO}, 4096")
    p(f"s_add_u32 s{S_WDO}, s{S_WDO}, {4*32*1152}")

def issue_s(p, slot, i):
    if i == 4:
        p(f"s_cmp_lt_u32 s{S_W}, 2")
        p(f"s_cselect_b32 s{S_WOO}, s{S_WOO}, 0x7ff00000")
    for tt in range(5):
        p(f"buffer_load_dwordx4 {hreg(slot,tt)}, v{V_O+tt}, s[{S_OF}:{S_OF+3}], s{S_OO} offen")
    for nt in range(4):
        p(f"s_add_u32 s40, s{S_WOO}, {nt*18432}")
        p(f"buffer_load_dwordx4 {ar(120+16*i+4*nt,4)}, v{V_WO}, s[{S_WO}:{S_WO+3}], s40 offen")
    p(f"s_add_u32 s{S_OO}, s{S_OO}, 4096")
    p(f"s_add_u32 s{S_WOO}, s{S_WOO}, 4096")

def compute_down(p, slot, first):
    af = AF + 16*(slot & 1)
    for nt in range(4):
        for sec in range(2):
            p(f"ds_read_b64_tr_b16 {vr(af+4*nt+2*sec,2)}, v{V_T} offset:{slot*4096 + nt*8 + sec*1024}")
    for nt in range(4):
        p(f"s_waitcnt lgkmcnt({6-2*nt})")
        for tt in range(5):
            d = accr(ACC1, tt, nt)
            p(f"{MF16} {vr(d,4)}, {vr(af+4*nt,4)}, {hreg(slot,tt)}, {vr(d,4)}")

def gen(name, opts):
    out = entry(name)
    p = Prog()
    p(f"s_cmp_ge_u32 s2, {GRID}")
    p("s_cbranch_scc1 LB_end")
    p("s_load_dwordx2 s[72:73], s[0:1], 0")
    p("s_load_dwordx4 s[76:79], s[0:1], 56")
    p("s_load_dwordx2 s[74:75], s[0:1], 80")
    if opts.get("time"): p(f"s_memrealtime s[{S_TM}:{S_TM+1}]")
    p("v_lshrrev_b32 v2, 6, v0")
    p(f"v_and_b32 v{V_LANE}, 63, v0")
    p(f"v_readfirstlane_b32 s{S_W}, v2")
    L = V_LANE
    p("s_and_b32 s40, s2, 7")
    p("s_lshr_b32 s41, s2, 3")
    p("s_mul_i32 s42, s40, 29")
    p("s_min_u32 s43, s40, 2")
    p("s_add_u32 s42, s42, s43")
    p("s_add_u32 s42, s42, s41")
    p("s_mul_i32 s43, s42, 7282")
    p(f"s_lshr_b32 s{S_M}, s43, 16")
    p(f"s_mul_i32 s43, s{S_M}, 9")
    p(f"s_sub_u32 s{S_N}, s42, s43")
    p(f"v_lshlrev_b32 v{V_H}, 4, v{L}")
    for tt in range(1, 5): p(f"v_add_u32 v{V_H+tt}, {tt*147456}, v{V_H}")
    p(f"v_lshrrev_b32 v22, 3, v{L}")
    p("v_mul_u32_u24 v22, 1152, v22")
    p(f"v_and_b32 v23, 7, v{L}")
    p(f"v_lshl_add_u32 v{V_D}, v23, 4, v22")
    for i in range(1, 4): p(f"v_add_u32 v{V_D+i}, {i*9216}, v{V_D}")
    p(f"s_mul_i32 s{S_HO}, s{S_M}, {5*147456}")
    p(f"s_lshl_b32 s40, s{S_W}, 10")
    p(f"s_add_u32 s{S_HO}, s{S_HO}, s40")
    p(f"s_mul_i32 s{S_OO}, s{S_M}, {5*18432}")
    p(f"s_add_u32 s{S_OO}, s{S_OO}, s40")
    p(f"s_mul_i32 s{S_WOO}, s{S_N}, {4*18432}")
    p(f"s_add_u32 s{S_WOO}, s{S_WOO}, s40")
    p(f"s_mul_i32 s{S_WDO}, s{S_W}, {32*1152}")
    p(f"s_lshl_b32 s40, s{S_N}, 7")
    p(f"s_add_u32 s{S_WDO}, s{S_WDO}, s40")
    p(f"s_mul_i32 s{S_LB}, s{S_W}, {NSLOT*4096}")
    p("s_waitcnt lgkmcnt(0)")
    srd(p, S_HF, 74, HF_OFF, HF_SZ)
    srd(p, S_WD, 76, 0, WG_SZ)
    for s in range(NSLOT - 1): issue_down(p, s)
    srd(p, S_OF, 74, OF_OFF, OF_SZ)
    srd(p, S_WO, 74, WO_OFF, WO_SZ)
    srd(p, S_X, 72, 0, X_SZ)
    srd(p, S_OUT, 78, 0, X_SZ)
    p(f"s_mov_b32 s{S_NL2E}, 0x{np_f32(-L2E):08x}")
    p(f"v_lshrrev_b32 v22, 5, v{L}")
    p("v_lshlrev_b32 v22, 11, v22")
    p(f"v_bfe_u32 v23, v{L}, 4, 1")
    p("v_lshl_add_u32 v22, v23, 9, v22")
    p(f"v_bfe_u32 v23, v{L}, 2, 2")
    p("v_lshl_add_u32 v22, v23, 7, v22")
    p(f"v_and_b32 v23, 3, v{L}")
    p("v_lshl_add_u32 v22, v23, 5, v22")
    p(f"v_add_u32 v{V_T}, s{S_LB}, v22")
    p(f"v_mov_b32 v{V_O}, v{V_H}")
    for tt in range(1, 5): p(f"v_add_u32 v{V_O+tt}, {tt*18432}, v{V_H}")
    p(f"v_mov_b32 v{V_WO}, v{V_H}")
    p(f"v_mov_b32 v{V_R}, v{V_H}")
    p(f"s_mul_i32 s40, s{S_M}, 80")
    p(f"v_and_b32 v22, 15, v{L}")
    p("v_add_u32 v22, s40, v22")
    p("v_mul_u32_u24 v22, 1152, v22")
    p(f"v_lshrrev_b32 v23, 4, v{L}")
    p("v_lshl_add_u32 v22, v23, 5, v22")
    p(f"s_lshl_b32 s40, s{S_N}, 7")
    p(f"s_lshr_b32 s41, s{S_W}, 1")
    p(f"s_mul_i32 s41, s41, {16*1152}")
    p("s_add_u32 s40, s40, s41")
    p(f"s_and_b32 s41, s{S_W}, 1")
    p("s_lshl_b32 s41, s41, 4")
    p("s_add_u32 s40, s40, s41")
    p(f"v_add_u32 v{V_XO}, s40, v22")
    p(f"v_add_u32 v{V_XO+1}, {32*1152}, v{V_XO}")
    p(f"v_add_u32 v{V_XO+2}, {64*1152}, v{V_XO}")
    for r in range(160): p(f"v_mov_b32 v{ACC1+r}, 0")
    p(f"s_mov_b32 s{S_IT}, 0")
    out += finalize(p.l)
    p = Prog()
    p("LB_loop:")
    for s in range(NSLOT):
        p(f"s_waitcnt vmcnt({9*(NSLOT-2)})")
        issue_down(p, (s + NSLOT - 1) % NSLOT)
        compute_down(p, s, False)
    p(f"s_add_u32 s{S_IT}, s{S_IT}, 1")
    p(f"s_cmp_lt_u32 s{S_IT}, 5")
    p("s_cbranch_scc1 LB_loop")
    for s in range(NSLOT):
        p(f"s_waitcnt vmcnt({9*(NSLOT-2)})")
        if s == 0: issue_down(p, NSLOT - 1)
        else: issue_s(p, s - 1, s - 1)
        compute_down(p, s, False)
    for u in range(3):
        p(f"buffer_load_dwordx4 {vr(XR+4*u,4)}, v{V_XO+u}, s[{S_X}:{S_X+3}], 0 offen")
    for i in range(5):
        p(f"s_waitcnt vmcnt({9*(4-i)+3})")
        for nt in range(4):
            for tt in range(5):
                d = accr(ACC2, tt, nt)
                p(f"{MF16} {vr(d,4)}, {ar(120+16*i+4*nt,4)}, {hreg(i,tt)}, {vr(d,4)}")
    p("s_barrier")
    p("s_nop 7")
    for w in range(1, 4):
        p(f"s_cmp_eq_u32 s{S_W}, {w}")
        p(f"s_cbranch_scc1 LB_w{w}")
    out += render(pad_hazards(p.l))
    for w in range(4):
        p = Prog()
        if w: p(f"LB_w{w}:")
        for u in range(10):
            o = u % 4
            if o == w: continue
            tt, np_ = u >> 1, u & 1
            sl = (w - o - 1) % 4
            base = (u*3 + sl) * 4096
            p(f"v_add_u32 v22, {base}, v{V_R}")
            for k, accb in enumerate((ACC1, ACC2)):
                for h_ in range(2):
                    p(f"ds_write_b128 v22, {vr(accr(accb,tt,2*np_+h_),4)} offset:{(2*k+h_)*1024}")
        p("s_waitcnt lgkmcnt(0)")
        p("s_barrier")
        own = [u for u in range(10) if u % 4 == w]
        for ui, u in enumerate(own):
            tt, np_ = u >> 1, u & 1
            p(f"v_add_u32 v22, {u*3*4096}, v{V_R}")
            for k, accb in enumerate((ACC1, ACC2)):
                a = accr(accb, tt, 2*np_)
                for sl in range(3):
                    for h_ in range(2):
                        p(f"ds_read_b128 {vr(TMP+8*sl+4*h_,4)}, v22 offset:{sl*4096+(2*k+h_)*1024}")
                for sl in range(3):
                    for r in range(8):
                        p(f"v_add_f32 v{a+r}, v{a+r}, v{TMP+8*sl+r}")
            f = accr(ACC1, tt, 2*np_); s_ = accr(ACC2, tt, 2*np_); x = XR + 4*ui
            for r in range(8): p(f"v_mul_f32 v{TMP+r}, s{S_NL2E}, v{f+r}")
            for r in range(8): p(f"v_exp_f32 v{TMP+r}, v{TMP+r}")
            for r in range(8): p(f"v_mul_f32 v{f+r}, v{f+r}, v{s_+r}")
            for r in range(8): p(f"v_add_f32 v{TMP+r}, 1.0, v{TMP+r}")
            for r in range(8): p(f"v_rcp_f32 v{TMP+r}, v{TMP+r}")
            if ui == 0: p("s_waitcnt vmcnt(0)")
            for r in range(4):
                p(f"v_lshlrev_b32 v{TMP+8+2*r}, 16, v{x+r}")
                p(f"v_and_b32 v{TMP+9+2*r}, 0xffff0000, v{x+r}")
            for r in range(8): p(f"v_fma_f32 v{f+r}, v{f+r}, v{TMP+r}, v{TMP+8+r}")
            for r in range(4): p(f"v_cvt_pk_bf16_f32 v{x+r}, v{f+2*r}, v{f+2*r+1}")
            p(f"buffer_store_dwordx4 {vr(x,4)}, v{V_XO+ui}, s[{S_OUT}:{S_OUT+3}], 0 offen")
        if opts.get("time"):
            p("s_waitcnt vmcnt(0)")
            p(f"s_memrealtime s[{S_TM+2}:{S_TM+3}]")
            srd(p, 80, 74, WS_USED + 16384, 16384)
            p("s_waitcnt lgkmcnt(0)")
            for i in range(4): p(f"v_mov_b32 v{24+i}, s{S_TM+i}")
            p(f"s_lshl_b32 s40, s2, 2")
            p(f"s_add_u32 s40, s40, s{S_W}")
            p(f"s_lshl_b32 s40, s40, 4")
            p("v_mov_b32 v28, s40")
            p("buffer_store_dwordx4 v[24:27], v28, s[80:83], 0 offen")
        p("s_endpgm")
        out += finalize(p.l)
    out += "LB_end:\n    s_endpgm\n"
    out += kd(name, 456, 96, 256)
    return out
```

```python
from asmgen import *
from layout import *

def srd(p, d, base, off, size):
    if off:
        p(f"s_add_u32 s{d}, s{base}, {off}")
        p(f"s_addc_u32 s{d+1}, s{base+1}, 0")
    else:
        p(f"s_mov_b32 s{d}, s{base}")
        p(f"s_mov_b32 s{d+1}, s{base+1}")
    p(f"s_mov_b32 s{d+2}, {size}")
    p(f"s_mov_b32 s{d+3}, 0x20000")

N_FOLD, N_LN, N_WO, N_Z = 576, 512, 648, 37
J_LN = N_FOLD; J_WO = J_LN + N_LN; J_Z = J_WO + N_WO; J_END = J_Z + N_Z
PREP_GRID = (J_END + 3) // 4

def fold_job(p):
    p("s_mul_i32 s21, s20, 3641")
    p("s_lshr_b32 s21, s21, 16")
    p("s_mul_i32 s22, s21, 18")
    p("s_sub_u32 s22, s20, s22")
    srd(p, 24, 8, 0, WQKV_SZ)
    srd(p, 28, 10, 0, WPHI_SZ)
    srd(p, 32, 14, WF_OFF, WF_SZ)
    p("v_and_b32 v2, 31, v1")
    p("v_lshrrev_b32 v3, 5, v1")
    p("v_and_b32 v4, 0x13, v2")
    p("v_and_b32 v5, 4, v2")
    p("v_lshl_or_b32 v4, v5, 1, v4")
    p("v_and_b32 v5, 8, v2")
    p("v_lshrrev_b32 v5, 1, v5")
    p("v_or_b32 v4, v4, v5")
    p("s_lshl_b32 s23, s22, 5")
    p("v_add_u32 v4, s23, v4")
    p("v_mul_u32_u24 v4, 3456, v4")
    p("s_mul_i32 s23, s21, 36")
    p("v_add_u32 v4, s23, v4")
    p("v_lshl_add_u32 v5, v3, 4, v4")
    for i, src in enumerate((0, 1, 2)):
        p(f"buffer_load_dwordx4 v[{16+4*i}:{19+4*i}], v5, s[24:27], 0 offen offset:{1152*src}")
    for i, src in enumerate((0, 1, 2)):
        p(f"buffer_load_dword v{28+4*i}, v4, s[24:27], 0 offen offset:{1152*src+32}")
        for r in (1, 2, 3):
            p(f"v_mov_b32 v{28+4*i+r}, 0")
    p("v_bfe_u32 v6, v2, 2, 1")
    p("v_lshrrev_b32 v7, 3, v2")
    p("v_and_b32 v8, 3, v2")
    p("v_lshl_or_b32 v7, v7, 2, v8")
    p("v_mul_u32_u24 v8, 9, v6")
    p("v_cmp_gt_u32 s[40:41], 9, v7")
    p("v_subrev_u32 v9, 9, v7")
    p("v_cndmask_b32 v9, v9, v7, s[40:41]")
    p("v_add_u32 v9, v9, v8")
    p("v_cmp_gt_u32 s[42:43], 2, v7")
    p("v_add_u32 v10, 7, v7")
    p("v_add_u32 v10, v10, v8")
    p("v_mov_b32 v11, 0")
    p("v_cndmask_b32 v10, v11, v10, s[42:43]")
    p("s_mul_i32 s23, s21, 648")
    p("v_mul_u32_u24 v11, 288, v3")
    p("v_lshl_add_u32 v12, v9, 1, s23")
    p("v_lshl_add_u32 v13, v10, 1, s23")
    p("v_add_u32 v14, v12, v11")
    p("v_add_u32 v15, v13, v11")
    for (dst, va, vb, tmp) in ((40, 14, 12, 96), (48, 15, 13, 112)):
        for e in range(8):
            p(f"buffer_load_ushort v{tmp+e}, v{va}, s[28:31], 0 offen offset:{e*36}")
        p(f"buffer_load_ushort v{tmp+8}, v{vb}, s[28:31], 0 offen offset:{16*36}")
        p(f"buffer_load_ushort v{tmp+9}, v{vb}, s[28:31], 0 offen offset:{17*36}")
    p("s_and_b32 s23, s21, 1")
    p("v_cmp_eq_u32 s[44:45], s23, v6")
    p("v_subrev_u32 v9, 2, v7")
    p("v_add_u32 v10, 10, v9")
    p("v_cndmask_b32 v10, v10, v9, s[44:45]")
    p("v_mov_b32 v11, 8")
    p("v_mov_b32 v12, 10")
    p("v_cndmask_b32 v11, v11, v12, s[44:45]")
    p("v_cmp_lt_u32 vcc, v9, v11")
    p("v_mov_b32 v12, 255")
    p("v_cndmask_b32 v10, v12, v10, vcc")
    p("v_lshlrev_b32 v11, 3, v3")
    p("v_sub_u32 v10, v10, v11")
    p("v_mov_b32 v13, 0x3f80")
    p("v_mov_b32 v14, 0")
    for r, dst, sub in ((0, 56, 0), (1, 57, 2), (2, 58, 4), (3, 59, 6), (4, 60, 16)):
        p(f"v_subrev_u32 v11, {sub}, v10")
        p(f"v_lshlrev_b32 v12, 4, v11")
        p(f"v_lshlrev_b32 v12, v12, v13")
        p(f"v_cmp_gt_u32 vcc, 2, v11")
        p(f"v_cndmask_b32 v{dst}, v14, v12, vcc")
    for r in (61, 62, 63):
        p(f"v_mov_b32 v{r}, 0")
    for (dst, tmp) in ((40, 96), (48, 112)):
        for r in range(5):
            p(f"v_lshl_or_b32 v{dst+r}, v{tmp+2*r+1}, 16, v{tmp+2*r}")
    p("v_cmp_eq_u32 vcc, 0, v3")
    p("v_cndmask_b32 v44, v14, v44, vcc")
    p("v_cndmask_b32 v52, v14, v52, vcc")
    for r in range(4):
        p(f"v_cndmask_b32 v{64+r}, v14, v{40+r}, s[40:41]")
        p(f"v_cndmask_b32 v{72+r}, v{40+r}, v14, s[40:41]")
        p(f"v_cndmask_b32 v{80+r}, v14, v{48+r}, s[42:43]")
    p("v_cndmask_b32 v68, v14, v44, s[40:41]")
    p("v_cndmask_b32 v76, v44, v14, s[40:41]")
    p("v_cndmask_b32 v84, v14, v52, s[42:43]")
    for b in (68, 76, 84):
        for r in (1, 2, 3):
            p(f"v_mov_b32 v{b+r}, 0")
    M = "v_mfma_f32_32x32x16_bf16"
    p(f"{M} v[96:111], v[16:19], v[64:67], 0")
    p(f"{M} v[112:127], v[20:23], v[80:83], 0")
    p(f"{M} v[96:111], v[28:31], v[68:71], v[96:111]")
    p(f"{M} v[112:127], v[32:35], v[84:87], v[112:127]")
    p(f"{M} v[96:111], v[20:23], v[72:75], v[96:111]")
    p(f"{M} v[112:127], v[24:27], v[56:59], v[112:127]")
    p(f"{M} v[96:111], v[32:35], v[76:79], v[96:111]")
    p(f"{M} v[112:127], v[36:39], v[60:63], v[112:127]")
    p("s_mul_i32 s23, s21, 72")
    p("s_lshl_b32 s36, s22, 1")
    p("s_add_u32 s23, s23, s36")
    p("s_lshl_b32 s23, s23, 10")
    p("s_add_u32 s36, s23, 36864")
    p("v_lshlrev_b32 v2, 4, v1")
    for t, (acc, so) in enumerate(((96, 23), (112, 36))):
        for j in range(2):
            d = 16 + 8 * t + 4 * j
            for r in range(4):
                p(f"v_cvt_pk_bf16_f32 v{d+r}, v{acc+8*j+2*r}, v{acc+8*j+2*r+1}")
            p(f"buffer_store_dwordx4 v[{d}:{d+3}], v2, s[32:35], s{so} offen offset:{1024*j}")

def row16_allreduce(p, v, t):
    for r in (8, 4, 2, 1):
        p(f"v_add_f32_dpp v{v}, v{v}, v{v} row_ror:{r} row_mask:0xf bank_mask:0xf")

def bf16_round(p, v):
    p(f"v_cvt_pk_bf16_f32 v{v}, v{v}, v{v}")
    p(f"v_and_b32 v{v}, 0xffff0000, v{v}")

def ln_job(p):
    srd(p, 24, 4, 0, X_SZ)
    srd(p, 28, 14, XF_OFF, XF_SZ)
    p("v_lshrrev_b32 v2, 4, v1")
    p("s_lshl_b32 s21, s20, 2")
    p("v_add_u32 v2, s21, v2")
    p("v_and_b32 v3, 15, v1")
    p("v_mul_u32_u24 v4, 1152, v2")
    p("v_lshl_add_u32 v4, v3, 3, v4")
    for i in range(9):
        p(f"buffer_load_dwordx2 v[{16+2*i}:{17+2*i}], v4, s[24:27], 0 offen offset:{128*i}")
    p("v_lshrrev_b32 v5, 5, v2")
    p("v_mul_u32_u24 v5, 36, v5")
    p("v_lshrrev_b32 v6, 2, v3")
    p("v_add_u32 v5, v5, v6")
    p("v_lshlrev_b32 v5, 10, v5")
    p("v_and_b32 v6, 31, v2")
    p("v_lshl_add_u32 v5, v6, 4, v5")
    p("v_bfe_u32 v6, v3, 1, 1")
    p("v_lshl_add_u32 v5, v6, 9, v5")
    p("v_and_b32 v6, 1, v3")
    p("v_lshl_add_u32 v5, v6, 3, v5")
    X = 40
    for i in range(18):
        p(f"v_lshlrev_b32 v{X+2*i}, 16, v{16+i}")
        p(f"v_and_b32 v{X+2*i+1}, 0xffff0000, v{16+i}")
    for c in range(4):
        p(f"v_add_f32 v{8+c}, v{X+c}, v{X+4+c}")
    for i in range(2, 9):
        for c in range(4):
            p(f"v_add_f32 v{8+c}, v{8+c}, v{X+4*i+c}")
    p("v_add_f32 v8, v8, v9")
    p("v_add_f32 v10, v10, v11")
    p("v_add_f32 v8, v8, v10")
    row16_allreduce(p, 8, 9)
    p(f"v_mul_f32 v8, 0x{np_f32(1/576):08x}, v8")
    for c in range(4):
        p(f"v_sub_f32 v{76+c}, v{X+c}, v8")
    for c in range(4):
        p(f"v_mul_f32 v{10+c}, v{76+c}, v{76+c}")
    for i in range(1, 9):
        for c in range(4):
            p(f"v_sub_f32 v{76+c}, v{X+4*i+c}, v8")
        for c in range(4):
            p(f"v_fmac_f32 v{10+c}, v{76+c}, v{76+c}")
    p("v_add_f32 v10, v10, v11")
    p("v_add_f32 v12, v12, v13")
    p("v_add_f32 v10, v10, v12")
    row16_allreduce(p, 10, 9)
    p(f"v_mul_f32 v10, 0x{np_f32(1/576):08x}, v10")
    bf16_round(p, 8)
    bf16_round(p, 10)
    p(f"v_add_f32 v10, 0x{np_f32(1e-5):08x}, v10")
    bf16_round(p, 10)
    p("v_sqrt_f32 v10, v10")
    bf16_round(p, 10)
    p("v_rcp_f32 v10, v10")
    for i in range(36):
        p(f"v_sub_f32 v{X+i}, v{X+i}, v8")
    for i in range(18):
        p(f"v_cvt_pk_bf16_f32 v{16+i}, v{X+2*i}, v{X+2*i+1}")
    for i in range(18):
        p(f"v_lshlrev_b32 v{X+2*i}, 16, v{16+i}")
        p(f"v_and_b32 v{X+2*i+1}, 0xffff0000, v{16+i}")
    for i in range(36):
        p(f"v_mul_f32 v{X+i}, v{X+i}, v10")
    for i in range(9):
        p(f"v_cvt_pk_bf16_f32 v{16+2*i}, v{X+4*i}, v{X+4*i+1}")
        p(f"v_cvt_pk_bf16_f32 v{17+2*i}, v{X+4*i+2}, v{X+4*i+3}")
        p(f"s_mov_b32 s21, {4096*i}")
        p(f"buffer_store_dwordx2 v[{16+2*i}:{17+2*i}], v5, s[28:31], s21 offen")

def wo_job(p):
    p("s_mul_i32 s21, s20, 3641")
    p("s_lshr_b32 s21, s21, 16")
    p("s_mul_i32 s22, s21, 18")
    p("s_sub_u32 s22, s20, s22")
    srd(p, 24, 12, 0, WOIN_SZ)
    srd(p, 28, 14, WO_OFF, WO_SZ)
    p("s_lshr_b32 s23, s21, 2")
    p("s_lshl_b32 s23, s23, 6")
    p("s_and_b32 s32, s21, 3")
    p("s_lshl_b32 s32, s32, 2")
    p("s_add_u32 s23, s23, s32")
    p("v_bfe_u32 v2, v1, 2, 2")
    p("v_lshlrev_b32 v2, 4, v2")
    p("v_and_b32 v3, 3, v1")
    p("v_add3_u32 v2, v2, v3, s23")
    p("v_lshlrev_b32 v2, 1, v2")
    p("v_bfe_u32 v3, v1, 4, 1")
    p("v_lshrrev_b32 v4, 5, v1")
    p("s_lshl_b32 s23, s22, 4")
    p("v_lshl_add_u32 v4, v4, 3, s23")
    p("v_cmp_eq_u32 s[40:41], 1, v3")
    p("v_mov_b32 v9, 10")
    for e in range(8):
        p(f"v_add_u32 v5, {e}, v4")
        p("v_mul_u32_u24 v6, 3641, v5")
        p("v_lshrrev_b32 v6, 16, v6")
        p("v_mul_u32_u24 v7, 18, v6")
        p("v_sub_u32 v8, v5, v7")
        p("v_cmp_le_u32 vcc, 10, v8")
        p("v_mov_b32 v10, 18")
        p("v_cndmask_b32 v10, 0, v10, vcc")
        p("v_cndmask_b32 v10, v10, v9, s[40:41]")
        p("v_add3_u32 v5, v5, v7, v10")
        p("v_mul_u32_u24 v5, 1152, v5")
        p(f"v_add_u32 v{20+e}, v5, v2")
        p(f"buffer_load_ushort v{30+e}, v{20+e}, s[24:27], 0 offen")
    p("v_lshlrev_b32 v2, 4, v1")
    p("s_lshl_b32 s23, s20, 10")
    for r in range(4):
        p(f"v_lshl_or_b32 v{16+r}, v{31+2*r}, 16, v{30+2*r}")
    p("buffer_store_dwordx4 v[16:19], v2, s[28:31], s23 offen")

def zero_job(p):
    srd(p, 28, 14, KV_OFF, KV_SZ + CT_SZ)
    for r in range(4):
        p(f"v_mov_b32 v{16+r}, 0")
    p("v_lshlrev_b32 v2, 4, v1")
    p("s_lshl_b32 s23, s20, 12")
    for i in range(4):
        p(f"buffer_store_dwordx4 v[16:19], v2, s[28:31], s23 offen offset:{1024*i} sc1")

import struct
def np_f32(x):
    return struct.unpack("<I", struct.pack("<f", x))[0]

def gen_prep(name):
    out = entry(name)
    p = Prog()
    p("s_load_dwordx4 s[4:7], s[0:1], 0")
    p("s_load_dwordx4 s[10:13], s[0:1], 16")
    p.l.pop()
    p("s_load_dwordx2 s[10:11], s[0:1], 16")
    p("s_load_dwordx2 s[12:13], s[0:1], 24")
    p("s_load_dwordx2 s[14:15], s[0:1], 80")
    p("v_lshrrev_b32 v2, 6, v0")
    p("v_and_b32 v1, 63, v0")
    p("v_readfirstlane_b32 s20, v2")
    p("s_lshl_b32 s21, s2, 2")
    p("s_add_u32 s20, s20, s21")
    p("s_waitcnt lgkmcnt(0)")
    p("s_mov_b32 s8, s6")
    p("s_mov_b32 s9, s7")
    p(f"s_cmp_ge_u32 s20, {J_LN}")
    p("s_cbranch_scc1 LP_ln")
    out += finalize(p.l)
    for lab, nxt, lo, hi, fn in (("", "LP_ln", 0, J_LN, fold_job), ("LP_ln", "LP_wo", J_LN, J_WO, ln_job),
                                 ("LP_wo", "LP_z", J_WO, J_Z, wo_job), ("LP_z", "LP_end", J_Z, J_END, zero_job)):
        p = Prog()
        if lab:
            p(f"{lab}:")
            p(f"s_cmp_ge_u32 s20, {hi}")
            p(f"s_cbranch_scc1 {nxt}")
            p(f"s_sub_u32 s20, s20, {lo}")
        fn(p)
        p("s_endpgm")
        out += finalize(p.l)
    out += "LP_end:\n    s_endpgm\n"
    out += kd(name, 128, 48)
    return out

if __name__ == "__main__":
    print(gen_prep("prep_kernel"))
```

```python
import sys, importlib
sys.path.insert(0, "gen")
from layout import *
import prep
NAME = "recurrent_scan__linear_kernel_hedgehog__swiglu_ffn__prompt"
HDR = open(f"cdna_kernels/{NAME}.s.ref").read().split("; Override launch geometry")[0]

def build(stages=("prep", "A", "B"), opts=None):
    opts = opts or {}
    launches = []; body = []
    if "prep" in stages:
        launches.append(f"; @launch kernel=prep_kernel grid=({prep.PREP_GRID},1,1) block=(256,1,1) lds=0")
        body.append(prep.gen_prep("prep_kernel"))
    if "A" in stages:
        import phase_a
        launches.append(f"; @launch kernel=phase_a_kernel grid=(256,1,1) block=(256,1,1) lds={phase_a.LDS_BYTES}")
        body.append(phase_a.gen("phase_a_kernel", opts))
    if "B" in stages:
        import phase_b
        launches.append(f"; @launch kernel=phase_b_kernel grid=({phase_b.GRID},1,1) block=(256,1,1) lds={phase_b.LDS_BYTES}")
        body.append(phase_b.gen("phase_b_kernel", opts))
    txt = HDR + "\n".join(launches) + "\n" + '.amdgcn_target "amdgcn-amd-amdhsa--gfx950"\n.text\n' + "\n".join(body)
    return txt

if __name__ == "__main__":
    out = sys.argv[1]
    stages = sys.argv[2].split(",") if len(sys.argv) > 2 else ("prep", "A", "B")
    opts = {}
    for a in sys.argv[3:]:
        k, v = a.split("=")
        opts[k] = int(v) if v.lstrip("-").isdigit() else v
    open(out, "w").write(build(stages, opts))
```

```python
import re

TRANS = ("v_exp_f32", "v_log_f32", "v_rcp_f32", "v_rsq_f32", "v_sqrt_f32", "v_sin_f32", "v_cos_f32")

def _regs(tok):
    tok = tok.strip()
    neg = tok.lstrip("-")
    if neg.startswith("abs(") or neg.startswith("|"):
        neg = neg.replace("abs(", "").replace(")", "").replace("|", "")
    tok = neg
    m = re.fullmatch(r"([vas])\[(\d+):(\d+)\]", tok)
    if m:
        return [f"{m.group(1)}{i}" for i in range(int(m.group(2)), int(m.group(3)) + 1)]
    m = re.fullmatch(r"([vas])(\d+)", tok)
    if m:
        return [tok]
    if tok in ("vcc", "exec", "m0", "scc"):
        return [tok]
    if tok in ("vcc_lo", "vcc_hi"):
        return ["vcc"]
    if tok in ("exec_lo", "exec_hi"):
        return ["exec"]
    return []

class I:
    __slots__ = ("text", "op", "kind", "rd", "wr", "tag", "cost", "mf_c", "mf_ab", "passes", "lds_rd", "nwait", "comment", "dpp")
    def __init__(self, text, tag=None, comment=None):
        self.text = text.strip()
        self.tag = tag
        self.comment = comment
        self.mf_c = []; self.mf_ab = []; self.passes = 0; self.nwait = 1; self.dpp = False
        self.parse()
    def parse(self):
        t = self.text
        if t.endswith(":"):
            self.op = "label"; self.kind = "label"; self.rd = set(); self.wr = set(); self.cost = 0; self.nwait = 0
            return
        parts = t.split(None, 1)
        op = parts[0]
        self.op = op
        rest = parts[1] if len(parts) > 1 else ""
        ops = [o.strip() for o in re.split(r",(?![^\[]*\])", rest)] if rest else []
        mods = ""
        if ops:
            lp = ops[-1].split(None, 1)
            ops[-1] = lp[0]
            mods = lp[1] if len(lp) > 1 else ""
        rd = set(); wr = set()
        R = lambda k: set(_regs(ops[k])) if k < len(ops) else set()
        allr = lambda ks: set().union(*[R(k) for k in ks]) if ks else set()
        n = len(ops)
        cost = 1
        if op.startswith("v_mfma"):
            kind = "mfma"
            wr = R(0); rd = allr([1, 2, 3])
            self.mf_ab = R(1) | R(2); self.mf_c = R(3)
            self.passes = 8 if "32x32x16" in op else 4 if "16x16x32" in op else None
            assert self.passes
        elif op.startswith("ds_read") or op.startswith("ds_bpermute") or op.startswith("ds_swizzle"):
            kind = "dsr"; wr = R(0); rd = allr(range(1, n))
        elif op.startswith("ds_write") or op.startswith("ds_add"):
            kind = "dsw"; rd = allr(range(n))
        elif op.startswith("buffer_load") or op.startswith("global_load"):
            if " lds" in (" " + mods) or "_lds_" in op:
                kind = "dma"; rd = allr(range(n)) | {"m0"}
            else:
                kind = "vld"; wr = R(0); rd = allr(range(1, n))
                if "d16" in op:
                    rd |= R(0)
        elif op.startswith("buffer_store") or op.startswith("global_store"):
            kind = "vst"; rd = allr(range(n))
        elif op.startswith("buffer_atomic") or op.startswith("global_atomic"):
            kind = "vst"; rd = allr(range(n))
            if "sc0" in mods.split():
                kind = "vld"; wr = R(0)
        elif op in ("buffer_inv", "buffer_wbl2"):
            kind = "vst"
        elif op.startswith("s_load") or op in ("s_memtime", "s_memrealtime"):
            kind = "smem"; wr = R(0); rd = allr(range(1, n))
        elif op == "s_waitcnt":
            kind = "wait"
        elif op == "s_barrier":
            kind = "bar"
        elif op == "s_nop":
            kind = "nop"; self.nwait = int(ops[0], 0) + 1; cost = self.nwait
        elif op.startswith("s_cbranch") or op in ("s_branch", "s_endpgm", "s_setpc_b64"):
            kind = "branch"
            if "scc" in op: rd = {"scc"}
            if "vcc" in op: rd = {"vcc"}
            if "exec" in op: rd = {"exec"}
        elif op.startswith("s_cmp"):
            kind = "salu"; rd = allr(range(n)); wr = {"scc"}
        elif op in ("s_sleep", "s_setprio"):
            kind = "salu"
        elif op.startswith("s_"):
            kind = "salu"; wr = R(0); rd = allr(range(1, n))
            if op.startswith(("s_add", "s_sub", "s_and", "s_or", "s_xor", "s_lshl", "s_lshr", "s_ashr", "s_min", "s_max", "s_bfe", "s_not", "s_andn2")):
                wr |= {"scc"}
            if op.startswith(("s_addc", "s_subb", "s_cselect")):
                rd |= {"scc"}
            if "saveexec" in op:
                rd |= {"exec"}; wr |= {"exec", "scc"}
            if op in ("s_addk_i32", "s_mulk_i32"):
                rd |= R(0)
        elif op.startswith("v_"):
            base = re.sub(r"_(e32|e64|dpp|sdwa)$", "", op)
            kind = "trans" if base in TRANS else "valu"
            if kind == "trans": cost = 2
            if op.startswith("v_cmp"):
                wr = R(0); rd = allr(range(1, n))
            elif op.startswith(("v_readfirstlane", "v_readlane")):
                wr = R(0); rd = allr(range(1, n))
            elif op.startswith("v_permlane") and "swap" in op:
                wr = R(0) | R(1); rd = R(0) | R(1)
            elif base in ("v_add_co_u32", "v_sub_co_u32"):
                wr = R(0) | R(1); rd = allr(range(2, n))
            elif base in ("v_addc_co_u32",):
                wr = R(0) | R(1); rd = allr(range(2, n))
            else:
                wr = R(0); rd = allr(range(1, n))
                if base in ("v_fmac_f32", "v_dot2c_f32_bf16", "v_writelane_b32") or op.endswith("_dpp"):
                    rd |= R(0)
                if base == "v_cndmask_b32" and n == 3:
                    rd |= {"vcc"}
            if op.endswith("_dpp"):
                self.dpp = True
            rd |= {"exec"}
        else:
            raise ValueError("unknown instruction: " + t)
        self.kind = kind; self.rd = rd; self.wr = wr; self.cost = cost
    def __repr__(self):
        return self.text

class WaitTag:
    def __init__(self, vm=(), lg=()):
        self.vm = set(vm); self.lg = set(lg)
        self.kind = "waittag"; self.cost = 1; self.rd = set(); self.wr = set()

class Bundle:
    def __init__(self, items):
        self.items = items; self.kind = "bundle"; self.cost = sum(i.cost for i in items)

def flat(lst):
    out = []
    for i in lst:
        if i.kind == "bundle": out += i.items
        else: out.append(i)
    return out

class Raw:
    def __init__(self, text):
        self.text = text; self.kind = "raw"; self.cost = 0; self.rd = set(); self.wr = set()

VMK = ("vld", "vst", "dma")
LGK = ("dsr", "dsw", "smem")

def insert_waits(prog, vm0=None, lg0=None):
    out = []
    vm = list(vm0 or [])
    lg = list(lg0 or [])
    def need(lst, pred):
        idx = -1
        for i, e in enumerate(lst):
            if pred(e): idx = i
        return idx
    for ins in prog:
        if ins.kind == "raw":
            out.append(ins); continue
        wv = wl = None
        if ins.kind == "waittag":
            i = need(vm, lambda e: e[1] in ins.vm)
            if i >= 0: wv = len(vm) - 1 - i
            i = need(lg, lambda e: e[1] in ins.lg)
            if i >= 0: wl = len(lg) - 1 - i
        elif ins.kind == "wait":
            m = re.search(r"vmcnt\((\d+)\)", ins.text)
            if m:
                k = int(m.group(1)); vm = vm[len(vm) - k:] if k < len(vm) else vm
            m = re.search(r"lgkmcnt\((\d+)\)", ins.text)
            if m:
                k = int(m.group(1)); lg = lg[len(lg) - k:] if k < len(lg) else lg
            out.append(ins); continue
        else:
            touch = ins.rd | ins.wr
            if ins.kind == "vld" and "d16" in ins.op:
                touch = ins.rd - ins.wr
            i = need(vm, lambda e: e[0] & touch)
            if i >= 0: wv = len(vm) - 1 - i
            i = need(lg, lambda e: e[0] & touch)
            if i >= 0: wl = len(lg) - 1 - i
        if wl is not None and any(e[2] == "smem" for e in lg):
            wl = 0
        if wv is not None or wl is not None:
            s = []
            if wv is not None:
                assert wv <= 63
                s.append(f"vmcnt({wv})"); vm = vm[len(vm) - wv:] if wv else []
            if wl is not None:
                wl = min(wl, 15)
                s.append(f"lgkmcnt({wl})"); lg = lg[len(lg) - wl:] if wl else []
            out.append(I("s_waitcnt " + " ".join(s)))
        if ins.kind == "waittag":
            continue
        if ins.kind in VMK:
            if len(vm) >= 63:
                out.append(I("s_waitcnt vmcnt(62)")); vm = vm[len(vm) - 62:]
            vm.append((set(ins.wr), ins.tag, ins.kind))
        elif ins.kind in LGK:
            if len(lg) >= 15:
                out.append(I("s_waitcnt lgkmcnt(14)")); lg = lg[len(lg) - 14:]
                if any(e[2] == "smem" for e in lg): raise ValueError("smem overflow")
            lg.append((set(ins.wr), ins.tag, ins.kind))
        out.append(ins)
    return out

def _isv(r): return r[0] in "va" and r not in ("vcc",)
def _iss(r): return r[0] == "s" and r != "scc" or r == "vcc"

def required_states(p, c):
    n = 0
    pv = p.kind in ("valu", "trans")
    cv = c.kind in ("valu", "trans")
    cmem = c.kind in ("vld", "vst", "dma", "dsr", "dsw")
    if pv:
        vw = {r for r in p.wr if _isv(r)}
        sw = {r for r in p.wr if _iss(r)}
        if c.kind == "mfma" and vw & c.rd: n = max(n, 2)
        if p.kind == "trans" and c.kind == "valu" and vw & c.rd: n = max(n, 1)
        if p.kind == "trans" and cmem and vw & c.rd: n = max(n, 1)
        if cv and c.op.startswith(("v_readlane", "v_readfirstlane")) and vw & c.rd: n = max(n, 1)
        if cv and c.op.startswith("v_permlane") and vw & c.rd: n = max(n, 2)
        if cv and c.dpp and vw & c.rd: n = max(n, 2)
        if sw:
            if cv and sw & c.rd: n = max(n, 4 if c.op.startswith(("v_readlane", "v_writelane")) else 2)
            if c.kind in ("vld", "vst", "dma") and sw & c.rd: n = max(n, 5)
            if c.kind in ("salu", "branch") and sw & c.rd: n = max(n, 1)
        if "exec" in p.wr:
            n = max(n, 5)
    if p.kind == "mfma":
        big = p.passes == 8
        if c.kind == "mfma":
            if p.wr & c.mf_ab: n = max(n, 12 if big else 8)
            if p.wr & c.mf_c:
                same = (p.wr == c.mf_c and p.passes == c.passes)
                if not same: n = max(n, 10 if big else 6)
            elif p.wr & c.wr:
                n = max(n, 0 if p.wr == c.wr and p.passes == c.passes else (10 if big else 6))
        elif cv or cmem:
            if p.wr & (c.rd | c.wr): n = max(n, 12 if big else 8)
            if cv and p.mf_c & c.wr: n = max(n, 7 if big else 3)
    if p.kind == "salu" and "m0" in p.wr and c.kind == "dma": n = max(n, 1)
    if p.kind == "vst" and ("x4" in p.op or "x3" in p.op):
        dat = set(_regs(re.split(r",(?![^\[]*\])", p.text.split(None, 1)[1])[0 if p.op.startswith("buffer") else 1]))
        if dat & c.wr: n = max(n, 2 if cv else 1)
    if p.kind == "dsw" and ("b128" in p.op or "b96" in p.op):
        if (p.rd & c.wr) and cv: n = max(n, 1)
    return n

def pad_hazards(prog, lookback=14):
    out = []
    for ins in prog:
        if ins.kind in ("raw", "label"):
            out.append(ins); continue
        need = 0; dist = 0
        for p in reversed(out):
            if p.kind in ("raw", "label"): continue
            if dist >= lookback: break
            r = required_states(p, ins)
            if r > dist: need = max(need, r - dist)
            dist += p.nwait
        while need > 0:
            k = min(need, 16)
            out.append(I(f"s_nop {k-1}")); need -= k
        out.append(ins)
    return out

def render(prog):
    lines = []
    for i in prog:
        if i.kind == "raw": lines.append(i.text)
        elif i.kind == "label": lines.append(i.text)
        else: lines.append("    " + i.text + (f"    ; {i.comment}" if getattr(i, "comment", None) else ""))
    return "\n".join(lines) + "\n"

def finalize(prog):
    return render(pad_hazards(insert_waits(flat(prog))))

class Prog:
    def __init__(self):
        self.l = []
    def __call__(self, text, tag=None, comment=None):
        for line in text.strip().split("\n"):
            line = line.split(";")[0].strip()
            if line:
                self.l.append(I(line, tag, comment))
        return self
    def b(self, *texts, tag=None):
        self.l.append(Bundle([I(t, tag) for t in texts])); return self
    def add(self, x):
        if isinstance(x, Prog): self.l += x.l
        elif isinstance(x, list): self.l += x
        else: self.l.append(x)
        return self
    def wait(self, vm=(), lg=()):
        self.l.append(WaitTag(vm, lg)); return self

SCAL = ("salu", "wait", "waittag", "nop", "bar")
def slot_cost(i):
    if i.kind == "bundle": return sum(slot_cost(x) for x in i.items)
    if i.kind in ("vld", "vst", "dma"): return VMEM_COST
    if i.kind == "mfma": return 2
    if i.kind in ("label", "raw"): return 0
    return i.cost
VMEM_COST = 2

def check_streams(sides, after):
    info = []
    def before(x, y):
        while y is not None:
            y = after[y]
            if y == x: return True
        return False
    for (a, b, lst) in sides:
        lst = flat(lst)
        rd = set().union(*[i.rd for i in lst]) - {"exec", "scc"}
        wr = set().union(*[i.wr for i in lst]) - {"exec", "scc"}
        info.append((a, b, rd, wr))
    for x in range(len(info)):
        for y in range(x + 1, len(info)):
            a, b, rd, wr = info[x]; a2, b2, rd2, wr2 = info[y]
            if a < b2 and a2 < b and not before(x, y) and not before(y, x):
                c = (wr & (rd2 | wr2)) | (wr2 & rd)
                assert not c, f"streams {x} {(a,b)} and {y} {(a2,b2)} conflict on {sorted(c)}"

def stall_of(out, ins, lookback=14):
    first = ins.items[0] if ins.kind == "bundle" else ins
    if first.kind in ("waittag", "label"): return 0
    need = 0; dist = 0
    for p in reversed(out):
        if p.kind in ("raw", "label"): continue
        if dist >= lookback: break
        if p.kind != "waittag":
            r = required_states(p, first)
            if r > dist: need = max(need, r - dist)
        dist += getattr(p, "nwait", 1)
    return need

def weave(main, sides, cap=6):
    after = [(x[3] if len(x) > 3 else None) for x in sides]
    paced = [(x[4] if len(x) > 4 else False) for x in sides]
    sides = [(x[0], x[1], (x[2].l if isinstance(x[2], Prog) else x[2])) for x in sides]
    check_streams(sides, after)
    done_at = [None] * len(sides)
    pos = [0] * len(sides)
    rem = [sum(slot_cost(i) for i in l) for (_, _, l) in sides]
    tot0 = list(rem)
    out = []; loads = []
    for g, (mf, fixed) in enumerate(main):
        out.append(mf)
        used = 0; head = True
        for i in fixed:
            if not (head and i.kind in SCAL): used += slot_cost(i)
            head = False
            out.append(i)
        while True:
            act = [k for k, (a, b, l) in enumerate(sides) if a <= g < b and pos[k] < len(l)
                   and (after[k] is None or pos[after[k]] == len(sides[after[k]][2]))
                   and (not paced[k] or g == b - 1 or (tot0[k] - rem[k]) <= tot0[k] * (g - a + 0.5) / (b - a))]
            if not act: break
            must = [k for k in act if sides[k][1] - 1 == g]
            tot = sum(rem[k] / (sides[k][1] - g) for k in act)
            budget = max(cap, used_fixed_avg + tot) if False else cap
            cands = []
            for k in act:
                i = sides[k][2][pos[k]]
                c = slot_cost(i)
                free = head and (i.kind in SCAL)
                urg = rem[k] / (sides[k][1] - g) + (100 if paced[k] else 0)
                st = stall_of(out, i)
                cands.append((k, i, 0 if free else c, urg, st))
            fit = [c for c in cands if used + c[2] + c[4] <= cap or c[2] == 0]
            if head and any(c[2] == 0 for c in fit): fit = [c for c in fit if c[2] == 0]
            nostall = [c for c in fit if c[4] == 0]
            if nostall: fit = nostall
            elif fit and not must:
                if tot < cap - 2: fit = []
            if not fit:
                if must: fit = [c for c in cands if c[0] in must]
                elif tot + 1.0 > cap and used < tot + 1.5:
                    fit = [c for c in cands if c[4] == 0] or cands
                else: break
            k, i, c, urg, st = max(fit, key=lambda c: c[3])
            out += flat([i]); pos[k] += 1; rem[k] -= slot_cost(i); used += c + st; head = False
            if pos[k] == len(sides[k][2]): done_at[k] = g
        loads.append(used)
    for k, (a, b, l) in enumerate(sides): assert pos[k] == len(l), (k, a, b)
    weave.done_at = done_at
    return out, loads

KD = """.section .rodata,"a"
.p2align 6
.amdhsa_kernel {name}
  .amdhsa_next_free_vgpr {vgpr}
  .amdhsa_next_free_sgpr {sgpr}
  .amdhsa_accum_offset {acc}
  .amdhsa_group_segment_fixed_size 0
  .amdhsa_kernarg_size 88
  .amdhsa_user_sgpr_count 2
  .amdhsa_user_sgpr_kernarg_segment_ptr 1
  .amdhsa_system_sgpr_workgroup_id_x 1
.end_amdhsa_kernel
.text
"""
def kd(name, vgpr, sgpr=102, acc=None):
    if acc is None: acc = min(256, (vgpr + 3) // 4 * 4)
    return KD.format(name=name, vgpr=vgpr, sgpr=sgpr, acc=acc)
def entry(name):
    return f".globl {name}\n.p2align 8\n.type {name},@function\n{name}:\n"
```

```python
S, D, H, DH, F = 2048, 576, 32, 18, 4608
XF_OFF = 0x000000;  XF_SZ = 64*36*1024
WF_OFF = 0x240000;  WF_SZ = 32*2*36*1024
KV_OFF = 0x480000;  KV_SZ = 32*18*256
FL_OFF = 0x4A8000;  FL_SZ = 32768
FL_W, FL_K, FL_1, FL_M, FL_2 = 0, 8192, 16384, 18432, 20480
ST_OFF = 0x4B0000;  ST_SZ = 2048*16
OF_OFF = 0x4C0000;  OF_SZ = 64*160*256
HF_OFF = 0x740000;  HF_SZ = 128*144*1024
WS_USED = HF_OFF + HF_SZ
X_SZ = S*D*2
WQKV_SZ = D*3*D*2
WPHI_SZ = H*DH*DH*2
WOIN_SZ = D*D*2
WG_SZ = D*F*2
```

```python
import struct, sys
from asmgen import *
from layout import *

def np_f32(x): return struct.unpack("<I", struct.pack("<f", x))[0]
def vr(b, n): return f"v[{b}:{b+n-1}]"
def ar(b, n): return f"a[{b}:{b+n-1}]"
def sr(b, n=4): return f"s[{b}:{b+n-1}]"
def srd(p, d, base, off, size):
    if off:
        p(f"s_add_u32 s{d}, s{base}, {off}")
        p(f"s_addc_u32 s{d+1}, s{base+1}, 0")
    else:
        p(f"s_mov_b32 s{d}, s{base}")
        p(f"s_mov_b32 s{d+1}, s{base+1}")
    p(f"s_mov_b32 s{d+2}, {size}")
    p(f"s_mov_b32 s{d+3}, 0x20000")

MF = "v_mfma_f32_32x32x16_bf16"
MF16 = "v_mfma_f32_16x16x32_bf16"
L2E = 1.4426950408889634
OOB = 0x7ff00000
SPIN = 100000
G0, G1 = 0, 36864
U0, U1 = 73760, 73760 + 36864
SCR = 147488
SCR_W = 3840
TOK = SCR + 4 * SCR_W
LDS_BYTES = TOK + 16
GB = (G0, G1); UB = (U0, U1)
P_X, P_WQKV, P_WPHI, P_WO, P_WG, P_WU, P_WD, P_OUT, P_DBG, P_WS = 64, 66, 68, 70, 72, 74, 76, 78, 80, 82
S_XF, S_WF, S_WG, S_WU, S_HF, S_KV, S_OF, S_FL = 4, 8, 12, 16, 20, 24, 28, 32
S_W, S_MT, S_J, S_FI = 36, 37, 38, 39
S_M0W, S_FB, S_CG, S_NL2E, S_L2E, S_SPIN, S_TOK, S_SO, S_SO2, S_KVB, S_BT = 44, 45, 50, 55, 56, 57, 58, 60, 61, 62, 63
STAMPS = list(range(84, 102, 2))
V_X0, V_X1, V_L0, V_L1, V_W, V_TR0, V_TR1, V_B0, V_B1, V_H, V_SW, V_SR = 1, 2, 3, 4, 5, 6, 7, 8, 9, 10, 11, 12
V_LANE = 13
V_A, V_Bq = 14, 15
V_FL = 0
XT, ACC, RING, MV, E, SM, KA, EP = 16, 48, 176, 192, 208, 218, 224, 248
OPTS = {}
def stamp(i):
    t = OPTS.get("time", 0)
    if t == 3 and i in (4, 5, 6, 7): return []
    return [I(f"s_memrealtime {sr(STAMPS[i],2)}")] if t else []
def st3(i):
    return [I(f"s_memrealtime {sr(STAMPS[i],2)}"), I("s_waitcnt lgkmcnt(0)")] if OPTS.get("time", 0) == 3 else []
def fine(i):
    return [I(f"s_memtime {sr(STAMPS[i],2)}")] if OPTS.get("time", 0) == 2 else []
def xreg(tt, s):
    if tt == 0: return ar(4*s, 4)
    if s < 28: return ar(144 + 4*s, 4)
    return vr(XT + 4*(s - 28), 4)
def acc(st, tt): return ACC + 32*st + 16*tt

SLOW = []
def check_flags(q, name, vaddr, vdat, soff, mask=None):
    items = [f"v_cmp_eq_u64 vcc, {sr(S_TOK,2)}, {vr(vdat,2)}", "s_nop 1"]
    if mask is not None:
        items += [f"s_or_b32 vcc_lo, vcc_lo, 0x{(~mask) & 0xffffffff:x}", f"s_or_b32 vcc_hi, vcc_hi, 0x{((~mask) >> 32) & 0xffffffff:x}"]
    items += ["s_cmp_eq_u64 vcc, -1", f"s_cbranch_scc0 L{name}_slow", f"L{name}_ok:"]
    q.b(*items)
    s = Prog()
    s(f"L{name}_slow:")
    s(f"s_mov_b32 s{S_SPIN}, 0")
    s(f"L{name}_spin:")
    s("s_sleep 2")
    s(f"buffer_load_dwordx2 {vr(vdat,2)}, v{vaddr}, {sr(S_FL)}, {soff} offen sc1")
    s("s_waitcnt vmcnt(0)")
    s(f"v_cmp_eq_u64 vcc, {sr(S_TOK,2)}, {vr(vdat,2)}")
    s(f"s_add_u32 s{S_SPIN}, s{S_SPIN}, 1")
    s("s_nop 1")
    if mask is not None:
        s(f"s_or_b32 vcc_lo, vcc_lo, 0x{(~mask) & 0xffffffff:x}")
        s(f"s_or_b32 vcc_hi, vcc_hi, 0x{((~mask) >> 32) & 0xffffffff:x}")
    s("s_cmp_eq_u64 vcc, -1")
    s(f"s_cbranch_scc1 L{name}_ok")
    s(f"s_cmp_lt_u32 s{S_SPIN}, {SPIN}")
    s(f"s_cbranch_scc1 L{name}_spin")
    s(f"s_branch L{name}_ok")
    SLOW.append(s)

def flag_store(q, arr, sidx, tmpv):
    q(f"v_mov_b32 v{tmpv}, s{S_TOK}")
    q(f"v_mov_b32 v{tmpv+1}, s{S_TOK+1}")
    q(f"buffer_store_dwordx2 {vr(tmpv,2)}, v{V_FL}, {sr(S_FL)}, s{sidx} offen offset:{arr} sc1" if arr < 4096 else
      f"buffer_store_dwordx2 {vr(tmpv,2)}, v{V_FL}, {sr(S_FL)}, s{sidx} offen sc1")

def row16_allreduce(p, v):
    for r in (8, 4, 2, 1):
        p(f"v_add_f32_dpp v{v}, v{v}, v{v} row_ror:{r} row_mask:0xf bank_mask:0xf")
def bf16_round(p, v):
    p(f"v_cvt_pk_bf16_f32 v{v}, v{v}, v{v}")
    p(f"v_and_b32 v{v}, 0xffff0000, v{v}")

def ln_job(p):
    L = V_LANE
    srd(p, 20, P_X, 0, X_SZ)
    p(f"v_lshrrev_b32 v16, 4, v{L}")
    p(f"s_lshl_b32 s40, s{S_W}, 2")
    p(f"s_add_u32 s40, s40, s{S_FI}")
    p("v_add_u32 v16, s40, v16")
    p(f"v_and_b32 v17, 15, v{L}")
    p("v_mul_u32_u24 v18, 1152, v16")
    p("v_lshl_add_u32 v18, v17, 3, v18")
    R = 24
    for i in range(9):
        p(f"buffer_load_dwordx2 {vr(R+2*i,2)}, v18, s[20:23], 0 offen offset:{128*i}")
    p("v_lshrrev_b32 v19, 5, v16")
    p("v_mul_u32_u24 v19, 36, v19")
    p("v_lshrrev_b32 v20, 2, v17")
    p("v_add_u32 v19, v19, v20")
    p("v_lshlrev_b32 v19, 10, v19")
    p("v_and_b32 v20, 31, v16")
    p("v_lshl_add_u32 v19, v20, 4, v19")
    p("v_bfe_u32 v20, v17, 1, 1")
    p("v_lshl_add_u32 v19, v20, 9, v19")
    p("v_and_b32 v20, 1, v17")
    p("v_lshl_add_u32 v19, v20, 3, v19")
    X = 48; A = 88; T = 96
    if OPTS.get("time") == 1: p("s_waitcnt vmcnt(0)"); p.add(stamp(7))
    for i in range(18):
        p(f"v_lshlrev_b32 v{X+2*i}, 16, v{R+i}")
        p(f"v_and_b32 v{X+2*i+1}, 0xffff0000, v{R+i}")
    for c in range(4): p(f"v_add_f32 v{A+c}, v{X+c}, v{X+4+c}")
    for i in range(2, 9):
        for c in range(4): p(f"v_add_f32 v{A+c}, v{A+c}, v{X+4*i+c}")
    p(f"v_add_f32 v{A}, v{A}, v{A+1}")
    p(f"v_add_f32 v{A+2}, v{A+2}, v{A+3}")
    p(f"v_add_f32 v{A}, v{A}, v{A+2}")
    row16_allreduce(p, A)
    p(f"v_mul_f32 v{A}, 0x{np_f32(1/576):08x}, v{A}")
    B = A + 4
    for i in range(9):
        for c in range(4): p(f"v_sub_f32 v{T+c}, v{X+4*i+c}, v{A}")
        for c in range(4):
            p(f"v_mul_f32 v{B+c}, v{T+c}, v{T+c}" if i == 0 else f"v_fmac_f32 v{B+c}, v{T+c}, v{T+c}")
    p(f"v_add_f32 v{B}, v{B}, v{B+1}")
    p(f"v_add_f32 v{B+2}, v{B+2}, v{B+3}")
    p(f"v_add_f32 v{B}, v{B}, v{B+2}")
    row16_allreduce(p, B)
    p(f"v_mul_f32 v{B}, 0x{np_f32(1/576):08x}, v{B}")
    bf16_round(p, A)
    bf16_round(p, B)
    p(f"v_add_f32 v{B}, 0x{np_f32(1e-5):08x}, v{B}")
    bf16_round(p, B)
    p(f"v_sqrt_f32 v{B}, v{B}")
    bf16_round(p, B)
    p(f"v_rcp_f32 v{B}, v{B}")
    for i in range(36): p(f"v_sub_f32 v{X+i}, v{X+i}, v{A}")
    for i in range(18): p(f"v_cvt_pk_bf16_f32 v{R+i}, v{X+2*i}, v{X+2*i+1}")
    for i in range(9):
        for k in range(2):
            p(f"v_lshlrev_b32 v{X+4*i+2*k}, 16, v{R+2*i+k}")
            p(f"v_and_b32 v{X+4*i+2*k+1}, 0xffff0000, v{R+2*i+k}")
        for k in range(4): p(f"v_mul_f32 v{X+4*i+k}, v{X+4*i+k}, v{B}")
        p(f"v_cvt_pk_bf16_f32 v{R+2*i}, v{X+4*i}, v{X+4*i+1}")
        p(f"v_cvt_pk_bf16_f32 v{R+2*i+1}, v{X+4*i+2}, v{X+4*i+3}")
        p(f"s_mov_b32 s40, {4096*i}")
        p(f"buffer_store_dwordx2 {vr(R+2*i,2)}, v19, {sr(S_XF)}, s40 offen sc1")

def fold_job(p):
    L = V_LANE
    srd(p, 20, P_WQKV, 0, WQKV_SZ)
    srd(p, 28, P_WPHI, 0, WPHI_SZ)
    srd(p, S_KV, P_WS, KV_OFF, KV_SZ)
    p(f"v_and_b32 v16, 31, v{L}")
    p(f"v_lshrrev_b32 v17, 5, v{L}")
    p("v_and_b32 v18, 0x13, v16")
    p("v_and_b32 v19, 4, v16")
    p("v_lshl_or_b32 v18, v19, 1, v18")
    p("v_and_b32 v19, 8, v16")
    p("v_lshrrev_b32 v19, 1, v19")
    p("v_or_b32 v18, v18, v19")
    p(f"s_lshl_b32 s40, s{S_MT}, 5")
    p("v_add_u32 v18, s40, v18")
    p("v_mul_u32_u24 v18, 3456, v18")
    p(f"s_mul_i32 s40, s{S_J}, 36")
    p("v_add_u32 v18, s40, v18")
    p("v_lshl_add_u32 v19, v17, 4, v18")
    p("v_bfe_u32 v20, v16, 2, 1")
    p("v_lshrrev_b32 v21, 3, v16")
    p("v_and_b32 v22, 3, v16")
    p("v_lshl_or_b32 v21, v21, 2, v22")
    p("v_mul_u32_u24 v22, 9, v20")
    p("v_cmp_gt_u32 s[40:41], 9, v21")
    p("v_subrev_u32 v23, 9, v21")
    p("v_cndmask_b32 v23, v23, v21, s[40:41]")
    p("v_add_u32 v23, v23, v22")
    p("v_cmp_gt_u32 s[42:43], 2, v21")
    p("v_add3_u32 v24, v21, v22, 7")
    p("v_mov_b32 v25, 0")
    p("v_cndmask_b32 v24, v25, v24, s[42:43]")
    p(f"s_mul_i32 s{S_SO}, s{S_J}, 648")
    p("v_mul_u32_u24 v25, 288, v17")
    p("v_lshlrev_b32 v26, 1, v23")
    p("v_lshlrev_b32 v27, 1, v24")
    p("v_add_u32 v28, v26, v25")
    p("v_add_u32 v29, v27, v25")
    W0, W1 = 176, 192
    for (va, vb, tmp) in ((28, 26, W0), (29, 27, W1)):
        for e in range(8): p(f"buffer_load_ushort v{tmp+e}, v{va}, s[28:31], s{S_SO} offen offset:{e*36}")
        p(f"buffer_load_ushort v{tmp+8}, v{vb}, s[28:31], s{S_SO} offen offset:{16*36}")
        p(f"buffer_load_ushort v{tmp+9}, v{vb}, s[28:31], s{S_SO} offen offset:{17*36}")
    for b in range(3):
        A = 32 + 24*b
        p(f"s_mov_b32 s{S_SO2}, {b*256*3456}")
        for i in range(3): p(f"buffer_load_dwordx4 {vr(A+4*i,4)}, v19, s[20:23], s{S_SO2} offen offset:{1152*i}")
        for i in range(3):
            p(f"buffer_load_dword v{A+12+4*i}, v18, s[20:23], s{S_SO2} offen offset:{1152*i+32}")
            for r in (1, 2, 3): p(f"v_mov_b32 v{A+12+4*i+r}, 0")
    for r in range(4): p(f"v_mov_b32 v{208+r}, 0")
    p(f"v_lshlrev_b32 v30, 4, v{L}")
    p(f"v_mov_b32 v31, {OOB}")
    p(f"v_cmp_gt_u32 vcc, 36, v{L}")
    p("v_cndmask_b32 v31, v31, v30, vcc")
    p(f"s_mul_i32 s{S_SO}, s{S_MT}, 576")
    p(f"s_add_u32 s{S_SO}, s{S_SO}, s{S_KVB}")
    p(f"buffer_store_dwordx4 v[208:211], v31, {sr(S_KV)}, s{S_SO} offen sc1")
    p("v_subrev_u32 v23, 2, v21")
    p("v_add_u32 v24, v23, v22")
    p("v_cmp_gt_u32 vcc, 9, v23")
    p("v_mov_b32 v26, 255")
    p("v_cndmask_b32 v24, v26, v24, vcc")
    p("v_lshlrev_b32 v25, 3, v17")
    p("v_sub_u32 v24, v24, v25")
    p("v_mov_b32 v27, 0x3f80")
    p("v_mov_b32 v28, 0")
    BV, BQ, BK0, BK1 = 104, 112, 120, 128
    for dst, sub in ((BV, 0), (BV+1, 2), (BV+2, 4), (BV+3, 6), (BV+4, 16)):
        p(f"v_subrev_u32 v25, {sub}, v24")
        p("v_lshlrev_b32 v26, 4, v25")
        p("v_lshlrev_b32 v26, v26, v27")
        p("v_cmp_gt_u32 vcc, 2, v25")
        p(f"v_cndmask_b32 v{dst}, v28, v26, vcc")
    for b in (BV, BQ, BK0, BK1):
        for r in (5, 6, 7): p(f"v_mov_b32 v{b+r}, 0")
    if OPTS.get("time") == 1: p("s_waitcnt vmcnt(0)"); p.add(stamp(7))
    for tmp in (W0, W1):
        for r in range(5): p(f"v_lshl_or_b32 v{tmp+r}, v{tmp+2*r+1}, 16, v{tmp+2*r}")
    p("v_cmp_eq_u32 vcc, 0, v17")
    p(f"v_cndmask_b32 v{W0+4}, v28, v{W0+4}, vcc")
    p(f"v_cndmask_b32 v{W1+4}, v28, v{W1+4}, vcc")
    for r in range(5):
        p(f"v_cndmask_b32 v{BQ+r}, v28, v{W0+r}, s[40:41]")
        p(f"v_cndmask_b32 v{BK0+r}, v{W0+r}, v28, s[40:41]")
        p(f"v_cndmask_b32 v{BK1+r}, v28, v{W1+r}, s[42:43]")
    p(f"s_mul_i32 s40, s{S_J}, 73728")
    p(f"s_lshl_b32 s41, s{S_MT}, 11")
    p("s_add_u32 s40, s40, s41")
    D0, D1 = 136, 152
    for b in range(3):
        A = 32 + 24*b
        p(f"{MF} {vr(D0,16)}, {vr(A,4)}, {vr(BQ,4)}, 0")
        p(f"{MF} {vr(D1,16)}, {vr(A+4,4)}, {vr(BK1,4)}, 0")
        p(f"{MF} {vr(D0,16)}, {vr(A+12,4)}, {vr(BQ+4,4)}, {vr(D0,16)}")
        p(f"{MF} {vr(D1,16)}, {vr(A+16,4)}, {vr(BK1+4,4)}, {vr(D1,16)}")
        p(f"{MF} {vr(D0,16)}, {vr(A+4,4)}, {vr(BK0,4)}, {vr(D0,16)}")
        p(f"{MF} {vr(D1,16)}, {vr(A+8,4)}, {vr(BV,4)}, {vr(D1,16)}")
        p(f"{MF} {vr(D0,16)}, {vr(A+16,4)}, {vr(BK0+4,4)}, {vr(D0,16)}")
        p(f"{MF} {vr(D1,16)}, {vr(A+20,4)}, {vr(BV+4,4)}, {vr(D1,16)}")
        if b == 2:
            p(f"s_cmp_lt_u32 s{S_MT}, 2")
            p(f"s_cselect_b32 s40, s40, {OOB}")
        p(f"s_add_u32 s41, s40, {b*16384}")
        p(f"s_add_u32 s42, s41, 36864")
        for t, (d, so) in enumerate(((D0, 41), (D1, 42))):
            for jj in range(2):
                o = 212 + 16*(b & 1) + 8*t + 4*jj
                for r in range(4): p(f"v_cvt_pk_bf16_f32 v{o+r}, v{d+8*jj+2*r}, v{d+8*jj+2*r+1}")
                p(f"buffer_store_dwordx4 {vr(o,4)}, v30, {sr(S_WF)}, s{so} offen offset:{1024*jj} sc1")

def token_job(p):
    L = V_LANE
    srd(p, 20, P_DBG, 0, 256)
    p("v_mov_b32 v16, 0")
    p("s_cmp_lg_u32 s2, 0")
    p("s_cbranch_scc1 LT_poll")
    p("s_memrealtime s[40:41]")
    p("s_waitcnt lgkmcnt(0)")
    p("s_or_b32 s40, s40, 1")
    p("v_mov_b32 v18, s40")
    p("v_mov_b32 v19, s41")
    p("buffer_store_dwordx2 v[18:19], v16, s[20:23], 0 offen sc1")
    p("LT_poll:")
    p(f"s_mov_b32 s{S_SPIN}, 0")
    p("LT_spin:")
    p("buffer_load_dwordx2 v[18:19], v16, s[20:23], 0 offen sc1")
    p("s_waitcnt vmcnt(0)")
    p("v_readfirstlane_b32 s40, v18")
    p(f"s_add_u32 s{S_SPIN}, s{S_SPIN}, 1")
    p("s_cmp_lg_u32 s40, 0")
    p("s_cbranch_scc1 LT_got")
    p("s_sleep 2")
    p(f"s_cmp_lt_u32 s{S_SPIN}, {SPIN}")
    p("s_cbranch_scc1 LT_spin")
    p("LT_got:")
    p.add(stamp(4))
    p(f"v_mov_b32 v16, {TOK}")
    p("ds_write_b64 v16, v[18:19]")
    p("s_getpc_b64 s[40:41]")
    p("LT_pc:")
    p("s_lshr_b32 s42, s2, 3")
    p("s_min_u32 s42, s42, 6")
    p("s_lshl_b32 s42, s42, 13")
    p(f"v_lshlrev_b32 v17, 7, v{L}")
    p("v_add_u32 v17, s42, v17")
    p(f"v_min_u32 v17, LK_end-LT_pc-4, v17")
    p("global_load_dword v20, v17, s[40:41]")
    p(f"v_mul_u32_u24 v17, 21846, v{L}")
    p("v_lshrrev_b32 v17, 16, v17")
    p("v_mul_u32_u24 v18, 3, v17")
    p(f"v_sub_u32 v18, v{L}, v18")
    p("v_mul_u32_u24 v17, 9216, v17")
    p("v_lshl_add_u32 v17, v18, 7, v17")
    p(f"s_mul_i32 s40, s{S_J}, 288")
    p("s_and_b32 s40, s40, 0xffffff80")
    p(f"s_mul_i32 s41, s{S_MT}, {72*9216}")
    p("s_add_u32 s40, s40, s41")
    for i in range(4):
        p(f"s_add_u32 s41, s40, {i*21*9216}")
        p(f"buffer_load_dword v{21+2*i}, v17, {sr(S_WG)}, s41 offen")
        p(f"buffer_load_dword v{22+2*i}, v17, {sr(S_WU)}, s41 offen")
    p("s_waitcnt lgkmcnt(0)")

def setup(p):
    p("s_cmp_ge_u32 s2, 256")
    p("s_cbranch_scc1 LK_end")
    p("s_load_dwordx8 s[64:71], s[0:1], 0")
    p("s_load_dwordx8 s[72:79], s[0:1], 40")
    p("s_load_dwordx4 s[80:83], s[0:1], 72")
    p.add(stamp(0))
    p("v_lshrrev_b32 v14, 6, v0")
    p(f"v_and_b32 v{V_LANE}, 63, v0")
    p(f"v_readfirstlane_b32 s{S_W}, v14")
    p("s_and_b32 s40, s2, 7")
    p("s_lshr_b32 s41, s2, 3")
    p("s_and_b32 s42, s40, 1")
    p("s_lshl_b32 s42, s42, 2")
    p("s_and_b32 s43, s41, 3")
    p(f"s_add_u32 s{S_MT}, s42, s43")
    p("s_lshr_b32 s42, s40, 1")
    p("s_lshl_b32 s42, s42, 3")
    p("s_lshr_b32 s43, s41, 2")
    p(f"s_add_u32 s{S_J}, s42, s43")
    p(f"s_lshl_b32 s{S_FI}, s{S_MT}, 5")
    p(f"s_add_u32 s{S_FI}, s{S_FI}, s{S_J}")
    p(f"s_lshl_b32 s{S_FI}, s{S_FI}, 3")
    p(f"s_mul_i32 s{S_KVB}, s{S_J}, 4608")
    p(f"v_cmp_eq_u32 vcc, 0, v0")
    p(f"v_mov_b32 v14, {OOB}")
    p(f"v_cndmask_b32 v{V_FL}, v14, v0, vcc")
    p("s_waitcnt lgkmcnt(0)")
    srd(p, S_XF, P_WS, XF_OFF, XF_SZ)
    srd(p, S_WF, P_WS, WF_OFF, WF_SZ)
    srd(p, S_WG, P_WG, 0, WG_SZ)
    srd(p, S_WU, P_WU, 0, WG_SZ)
    srd(p, S_FL, P_WS, FL_OFF, FL_SZ)

def setup_a(p):
    L = V_LANE
    p(f"s_lshl_b32 s{S_M0W}, s{S_W}, 10")
    p(f"s_lshl_b32 s40, s{S_MT}, 3")
    p(f"s_lshl_b32 s41, s{S_W}, 1")
    p("s_add_u32 s40, s40, s41")
    p("s_mul_i32 s40, s40, 36864")
    p(f"v_lshlrev_b32 v{V_B0}, 4, v{L}")
    p(f"v_add_u32 v{V_X0}, s40, v{V_B0}")
    p(f"v_add_u32 v{V_X1}, 36864, v{V_X0}")
    p(f"s_mul_i32 s40, s{S_J}, 73728")
    p(f"s_add_u32 s40, s40, s{S_M0W}")
    p(f"v_add_u32 v{V_L0}, s40, v{V_B0}")
    p(f"v_add_u32 v{V_L1}, 36864, v{V_L0}")
    p(f"v_lshrrev_b32 v14, 2, v{L}")
    p("v_mul_u32_u24 v14, 9216, v14")
    p(f"v_and_b32 v15, 3, v{L}")
    p(f"v_lshl_add_u32 v{V_A}, v15, 4, v14")
    p(f"s_mul_i32 s40, s{S_W}, {16*9216}")
    p(f"v_add_u32 v{V_W}, s40, v{V_A}")
    p(f"s_mul_i32 s40, s{S_J}, 144")
    p(f"s_and_b32 s41, s{S_J}, 1")
    p("s_lshl_b32 s42, s41, 4")
    p("s_add_u32 s42, s42, s40")
    p("s_cmp_eq_u32 s41, 0")
    p("s_cselect_b32 s43, 128, 0")
    p("s_add_u32 s43, s43, s40")
    for u in range(4):
        p(f"s_add_u32 s40, s42, {32*u}")
        p(f"s_lshl_b32 s{S_FB+u}, s40, 1")
        p(f"s_lshl_b32 s{S_CG+u}, s40, 5")
    p(f"s_lshl_b32 s{S_FB+4}, s43, 1")
    p(f"s_lshl_b32 s{S_CG+4}, s43, 5")

def setup_a2(p):
    L = V_LANE
    srd(p, S_HF, P_WS, HF_OFF, HF_SZ)
    srd(p, S_KV, P_WS, KV_OFF, KV_SZ)
    srd(p, S_OF, P_WS, OF_OFF, OF_SZ)
    p(f"v_add_u32 v{V_B1}, {U0}, v{V_B0}")
    p(f"v_bfe_u32 v14, v{L}, 4, 1")
    p(f"v_mul_u32_u24 v14, {U0}, v14")
    p(f"v_lshrrev_b32 v15, 5, v{L}")
    p("v_lshl_add_u32 v14, v15, 9, v14")
    p(f"v_bfe_u32 v15, v{L}, 2, 2")
    p("v_lshl_add_u32 v14, v15, 6, v14")
    p(f"v_and_b32 v15, 3, v{L}")
    p(f"v_lshl_add_u32 v{V_TR0}, v15, 3, v14")
    p(f"v_add_u32 v{V_TR1}, 36864, v{V_TR0}")
    p(f"s_lshl_b32 s40, s{S_MT}, 4")
    p(f"s_lshl_b32 s41, s{S_W}, 2")
    p("s_add_u32 s40, s40, s41")
    p(f"v_bfe_u32 v14, v{L}, 4, 1")
    p("v_add_u32 v14, s40, v14")
    p("v_mul_u32_u24 v14, 147456, v14")
    p(f"v_and_b32 v15, 15, v{L}")
    p("v_lshl_add_u32 v14, v15, 4, v14")
    p(f"v_lshrrev_b32 v15, 5, v{L}")
    p(f"v_lshl_add_u32 v{V_H}, v15, 8, v14")
    p(f"s_mul_i32 s40, s{S_W}, {SCR_W}")
    p(f"s_add_u32 s40, s40, {SCR}")
    p(f"v_and_b32 v14, 31, v{L}")
    p("v_mul_u32_u24 v14, 120, v14")
    p("v_lshl_add_u32 v14, v15, 3, v14")
    p(f"v_add_u32 v{V_SW}, s40, v14")
    p(f"v_lshrrev_b32 v14, 4, v{L}")
    p(f"v_bfe_u32 v15, v{L}, 2, 2")
    p("v_lshl_add_u32 v14, v14, 3, v15")
    p("v_mul_u32_u24 v14, 120, v14")
    p(f"v_and_b32 v15, 3, v{L}")
    p("v_lshl_add_u32 v14, v15, 3, v14")
    p(f"v_add_u32 v{V_SR}, s40, v14")
    p(f"s_mov_b32 s{S_NL2E}, 0x{np_f32(-L2E):08x}")
    p(f"s_mov_b32 s{S_L2E}, 0x{np_f32(L2E):08x}")

def dma_unit_group(u, g):
    b = (u + 1) & 1
    q = Prog()
    q(f"s_add_u32 m0, s{S_M0W}, {GB[b] + g*4096}")
    q(f"s_add_u32 s{S_SO}, s{S_FB+u}, {g*589824}")
    q(f"buffer_load_dwordx4 v{V_W}, {sr(S_WG)}, s{S_SO} offen lds", tag=f"U{u}g{g}")
    q(f"s_add_u32 m0, s{S_M0W}, {UB[b] + g*4096}")
    q(f"buffer_load_dwordx4 v{V_W}, {sr(S_WU)}, s{S_SO} offen lds", tag=f"U{u}g{g}")
    return q

def startup_group(g):
    q = Prog()
    q(f"s_add_u32 m0, s{S_M0W}, {U0 + g*4096}")
    q(f"s_mov_b32 s{S_SO2}, {g*4096}")
    q(f"buffer_load_dwordx4 v{V_L1}, {sr(S_WF)}, s{S_SO2} offen sc1 lds", tag=f"S{g}")
    q(f"s_add_u32 m0, s{S_M0W}, {G0 + g*4096}")
    q(f"buffer_load_dwordx4 {xreg(0, 4*g)}, v{V_X0}, {sr(S_XF)}, s{S_SO2} offen sc1")
    q(f"buffer_load_dwordx4 v{V_L0}, {sr(S_WF)}, s{S_SO2} offen sc1 lds", tag=f"S{g}")
    for s in range(4*g, 4*g+4):
        for tt in range(2):
            if s == 4*g and tt == 0: continue
            q(f"buffer_load_dwordx4 {xreg(tt, s)}, v{V_X0+tt}, {sr(S_XF)}, s{S_SO2} offen offset:{(s&3)*1024} sc1")
    return q

def ffn_epi(st, u, xy):
    q = Prog()
    for tt in range(2):
        a = acc(st, tt)
        for r in range(8): q(f"v_mul_f32 v{EP+r}, s{S_NL2E}, v{a+r}")
        for r in range(8): q(f"v_exp_f32 v{EP+r}, v{EP+r}")
        for r in range(8): q(f"v_mul_f32 v{a+r}, v{a+r}, v{a+8+r}")
        for r in range(8): q(f"v_add_f32 v{EP+r}, 1.0, v{EP+r}")
        for r in range(8): q(f"v_rcp_f32 v{EP+r}, v{EP+r}")
        q(f"s_add_u32 s{S_SO2}, s{S_CG+u}, {xy*512 + tt*294912}")
        for r in range(8): q(f"v_mul_f32 v{a+r}, v{a+r}, v{EP+r}")
        for r in range(4): q(f"v_cvt_pk_bf16_f32 v{a+8+r}, v{a+2*r}, v{a+2*r+1}")
        q(f"buffer_store_dwordx4 {vr(a+8,4)}, v{V_H}, {sr(S_HF)}, s{S_SO2} offen sc1", tag=f"h{2*u+xy}")
    return q

def softmax2(q, src, outs):
    m, n, t, c1, c2, t2 = SM, SM+1, SM+2, SM+3, SM+4, SM+5
    q(f"v_max3_f32 v{m}, v{src[0]}, v{src[1]}, v{src[2]}")
    q(f"v_max3_f32 v{n}, -v{src[0]}, -v{src[1]}, -v{src[2]}")
    q(f"v_max3_f32 v{c1}, v{src[3]}, v{src[4]}, v{src[5]}")
    q(f"v_max3_f32 v{c2}, -v{src[3]}, -v{src[4]}, -v{src[5]}")
    q(f"v_max3_f32 v{t}, v{src[6]}, v{src[7]}, v{src[8]}")
    q(f"v_max3_f32 v{t2}, -v{src[6]}, -v{src[7]}, -v{src[8]}")
    q(f"v_max3_f32 v{m}, v{m}, v{c1}, v{t}")
    q(f"v_max3_f32 v{n}, v{n}, v{c2}, v{t2}")
    q(f"v_permlane32_swap_b32 v{m}, v{n}")
    q(f"v_max_f32 v{m}, v{m}, v{n}")
    q(f"v_mul_f32 v{m}, s{S_NL2E}, v{m}")
    q(f"v_mov_b32 v{n}, v{m}")
    q(f"v_permlane32_swap_b32 v{m}, v{n}")
    for i in range(9): q(f"v_fma_f32 v{E+i}, -v{src[i]}, s{S_L2E}, v{n}")
    for i in range(9): q(f"v_fma_f32 v{src[i]}, v{src[i]}, s{S_L2E}, v{m}")
    for i in range(9): q(f"v_exp_f32 v{E+i}, v{E+i}")
    for i in range(9): q(f"v_exp_f32 v{src[i]}, v{src[i]}")
    q(f"v_add_f32 v{n}, v{E}, v{E+1}")
    q(f"v_add_f32 v{c2}, v{E+2}, v{E+3}")
    q(f"v_add_f32 v{m}, v{src[0]}, v{src[1]}")
    q(f"v_add_f32 v{c1}, v{src[2]}, v{src[3]}")
    for i in (4, 6):
        q(f"v_add_f32 v{n}, v{n}, v{E+i}")
        q(f"v_add_f32 v{c2}, v{c2}, v{E+i+1}")
        q(f"v_add_f32 v{m}, v{m}, v{src[i]}")
        q(f"v_add_f32 v{c1}, v{c1}, v{src[i+1]}")
    q(f"v_add_f32 v{n}, v{n}, v{E+8}")
    q(f"v_add_f32 v{m}, v{m}, v{src[8]}")
    q(f"v_add_f32 v{n}, v{n}, v{c2}")
    q(f"v_add_f32 v{m}, v{m}, v{c1}")
    q(f"v_permlane32_swap_b32 v{m}, v{n}")
    q(f"v_add_f32 v{m}, v{m}, v{n}")
    q(f"v_rcp_f32 v{m}, v{m}")
    q(f"v_mov_b32 v{n}, v{m}")
    q(f"v_permlane32_swap_b32 v{m}, v{n}")
    for i in range(9): q(f"v_mul_f32 v{src[i]}, v{src[i]}, v{m}")
    for i in range(9): q(f"v_mul_f32 v{E+i}, v{E+i}, v{n}")
    allv = list(src) + [E + i for i in range(9)]
    for i in range(9): q(f"v_cvt_pk_bf16_f32 v{outs[i]}, v{allv[2*i]}, v{allv[2*i+1]}")

def moves_a2():
    q = Prog()
    for tt in range(2):
        a = acc(1, tt); m = MV + 8*tt
        q(f"v_mov_b32 v{m+6}, v{a}")
        q(f"v_mov_b32 v{m+7}, v{a+1}")
        for r in range(4): q(f"v_cvt_pk_bf16_f32 v{m+r}, v{a+2+2*r}, v{a+3+2*r}")
        q(f"v_cvt_pk_bf16_f32 v{m+4}, v{a+10}, 1.0")
    return q

def k_part():
    q = Prog()
    KF = E
    for tt in range(2):
        a = acc(0, tt); m = MV + 8*tt
        src = [a+9+i for i in range(7)] + [m+6, m+7]
        outs = [a+10, a+11, a+12, a+13, a+14, a+15, E, E+1, m+5]
        softmax2(q, src, outs)
        for off, r in ((0, a+10), (16, a+12), (32, a+14), (48, E), (64, m), (80, m+2), (96, m+4)):
            q(f"ds_write_b64 v{V_SW}, {vr(r,2)} offset:{off}")
        for f, cb in enumerate((0, 16, 32, 48)):
            for sec in range(2):
                q(f"ds_read_b64_tr_b16 {vr(KF+4*f+2*sec,2)}, v{V_SR} offset:{sec*480 + cb*2}")
        if tt == 1: part_addr(q)
        else:
            for k in range(6): q("s_nop 0")
        for rt, fa in enumerate((0, 1, 3)):
            for ct, fb in enumerate((2, 3)):
                d = KA + 4*(2*rt + ct)
                q(f"{MF16} {vr(d,4)}, {vr(KF+4*fa,4)}, {vr(KF+4*fb,4)}, {vr(d,4) if tt else '0'}")
    A1, A2, A3, A4, A5 = V_X0, V_X1, V_L0, V_L1, V_B1
    q(f"ds_write_b128 v{A1}, {vr(KA,4)}")
    q(f"ds_write_b128 v{A2}, {vr(KA+4,4)} offset:2048")
    q(f"ds_write_b128 v{A1}, {vr(KA+8,4)} offset:1024")
    q(f"ds_write_b128 v{A3}, {vr(KA+12,4)} offset:2560")
    q(f"ds_write_b64 v{A4}, {vr(KA+18,2)} offset:3072")
    q(f"ds_write_b64 v{A5}, {vr(KA+22,2)} offset:3328")
    return q

def part_addr(q):
    L = V_LANE; A1, A2, A3, A4, A5 = V_X0, V_X1, V_L0, V_L1, V_B1
    q(f"s_mul_i32 s40, s{S_W}, {SCR_W}")
    q(f"s_add_u32 s40, s40, {SCR}")
    q(f"v_lshl_add_u32 v{A1}, v{L}, 4, s40")
    q(f"v_lshrrev_b32 v{V_A}, 4, v{L}")
    q(f"v_and_b32 v{V_Bq}, 15, v{L}")
    q(f"v_lshl_add_u32 v{V_A}, v{V_A}, 3, v{V_Bq}")
    q(f"v_cmp_gt_u32 vcc, 8, v{V_Bq}")
    q(f"v_mov_b32 v{A2}, {(3456-2048)//16}")
    q(f"v_mov_b32 v{A3}, {(3456-2560)//16}")
    q(f"v_cndmask_b32 v{A2}, v{A2}, v{V_A}, vcc")
    q(f"v_cndmask_b32 v{A3}, v{A3}, v{V_A}, vcc")
    q(f"v_lshl_add_u32 v{A2}, v{A2}, 4, s40")
    q(f"v_lshl_add_u32 v{A3}, v{A3}, 4, s40")
    q(f"v_cmp_gt_u32 s[42:43], 32, v{L}")
    q(f"v_mov_b32 v{A4}, {(3456-3072)//8}")
    q(f"v_mov_b32 v{A5}, {(3456-3328)//8}")
    q(f"v_cndmask_b32 v{A4}, v{A4}, v{L}, s[42:43]")
    q(f"s_and_b64 vcc, vcc, s[42:43]")
    q(f"v_lshl_add_u32 v{A4}, v{A4}, 3, s40")
    q(f"v_cndmask_b32 v{A5}, v{A5}, v{V_A}, vcc")
    q(f"v_lshl_add_u32 v{A5}, v{A5}, 3, s40")

def kv_reduce():
    q = Prog()
    L = V_LANE; A1, A2, G1_, G2_ = V_X0, V_X1, V_L0, V_L1
    T = KA
    q(f"s_and_b32 s40, s{S_W}, 1")
    q(f"s_lshr_b32 s41, s{S_W}, 1")
    q.b("s_cmp_eq_u32 s41, 0", "s_cselect_b64 vcc, -1, 0")
    q(f"v_cndmask_b32 v{A1}, v{V_A}, v{L}, vcc")
    q("s_lshl_b32 s42, s40, 10")
    q("s_lshl_b32 s43, s40, 9")
    q("s_add_u32 s43, s43, 2048")
    q.b("s_cmp_eq_u32 s41, 0", "s_cselect_b32 s42, s42, s43")
    q(f"s_add_u32 s42, s42, {SCR}")
    q(f"v_lshl_add_u32 v{A1}, v{A1}, 4, s42")
    for w in range(4): q(f"ds_read_b128 {vr(T+4*w,4)}, v{A1} offset:{w*SCR_W}")
    q.b("s_cmp_eq_u32 s40, 0", "s_cselect_b64 vcc, -1, 0")
    q(f"v_cndmask_b32 v{A2}, v{V_A}, v{L}, vcc")
    q("s_lshl_b32 s42, s40, 8")
    q(f"s_add_u32 s42, s42, {SCR+3072}")
    q(f"v_lshl_add_u32 v{A2}, v{A2}, 3, s42")
    for w in range(4): q(f"ds_read_b64 {vr(T+16+2*w,2)}, v{A2} offset:{w*SCR_W}")
    q(f"v_lshrrev_b32 v{G1_}, 5, v{L}")
    q(f"v_lshlrev_b32 v{G1_}, 10, v{G1_}")
    q(f"v_bfe_u32 v{G2_}, v{L}, 4, 1")
    q(f"v_lshlrev_b32 v{G2_}, 7, v{G2_}")
    q(f"v_lshl_add_u32 v{G2_}, v{V_Bq}, 2, v{G2_}")
    q("s_lshl_b32 s42, s40, 11")
    q("s_lshl_b32 s43, s41, 6")
    q("s_add_u32 s42, s42, s43")
    q(f"v_add3_u32 v{G1_}, v{G1_}, v{G2_}, s42")
    q("s_lshl_b32 s43, s41, 3")
    q("s_sub_u32 s43, 16, s43")
    q(f"v_cmp_gt_u32 vcc, s43, v{V_Bq}")
    q(f"v_mov_b32 v{A1}, {OOB}")
    q(f"v_cndmask_b32 v{G1_}, v{A1}, v{G1_}, vcc")
    q("s_lshl_b32 s42, s40, 6")
    q("s_add_u32 s42, s42, 4096")
    q(f"v_add_u32 v{G2_}, s42, v{G2_}")
    q("s_lshl_b32 s43, s40, 3")
    q("s_sub_u32 s43, 16, s43")
    q.b("s_cmp_eq_u32 s41, 0", "s_cselect_b32 s43, s43, 0")
    q(f"v_cmp_gt_u32 vcc, s43, v{V_Bq}")
    q(f"v_cmp_gt_u32 s[42:43], 32, v{L}")
    q("s_and_b64 vcc, vcc, s[42:43]")
    q(f"v_cndmask_b32 v{G2_}, v{A1}, v{G2_}, vcc")
    for i in range(4):
        q(f"v_add_f32 v{T+i}, v{T+i}, v{T+4+i}")
        q(f"v_add_f32 v{T+8+i}, v{T+8+i}, v{T+12+i}")
    for i in range(2):
        q(f"v_add_f32 v{T+16+i}, v{T+16+i}, v{T+18+i}")
        q(f"v_add_f32 v{T+20+i}, v{T+20+i}, v{T+22+i}")
    for i in range(4): q(f"v_add_f32 v{T+i}, v{T+i}, v{T+8+i}")
    for i in range(2): q(f"v_add_f32 v{T+16+i}, v{T+16+i}, v{T+20+i}")
    for i in range(4):
        q(f"buffer_atomic_add_f32 v{T+i}, v{G1_}, {sr(S_KV)}, s{S_KVB} offen offset:{i*256}", tag="atom")
    for i in range(2):
        q(f"buffer_atomic_add_f32 v{T+16+i}, v{G2_}, {sr(S_KV)}, s{S_KVB} offen offset:{i*256}", tag="atom")
    return q

def q_part():
    q = Prog()
    for tt in range(2):
        a = acc(0, tt)
        softmax2(q, [a+i for i in range(9)], [a+i for i in range(9)])
        for r in (9, 10, 11): q(f"v_mov_b32 v{a+r}, 0")
    return q

OA = MV
def fk_publish_and_poll():
    q = Prog()
    q(f"s_lshl_b32 s40, s{S_J}, 6")
    q(f"s_lshl_b32 s41, s{S_MT}, 3")
    q("s_add_u32 s41, s41, s40")
    flag_store(q, 2048, 41, OA+4)
    q(f"v_lshlrev_b32 v{OA}, 2, v{V_LANE}")
    q(f"v_and_b32 v{OA+1}, 7, v{V_LANE}")
    q(f"v_lshlrev_b32 v{OA+1}, 3, v{OA+1}")
    q("s_add_u32 s40, s40, 2048")
    q(f"v_add_u32 v{OA+1}, s40, v{OA+1}")
    return q
def fk_issue():
    q = Prog()
    q(f"buffer_load_dwordx2 {vr(OA+2,2)}, v{OA+1}, {sr(S_FL)}, 0 offen sc1")
    return q
def fk_check_and_load():
    q = Prog()
    check_flags(q, "K", OA+1, OA+2, "0")
    q(f"s_add_u32 s40, s{S_KVB}, 4096")
    for s in range(18):
        so = f"s{S_KVB}" if s < 16 else "s40"
        q(f"buffer_load_dword v{KA+s}, v{OA}, {sr(S_KV)}, {so} offen offset:{(s&15)*256} sc1")
    return q

def o_finish():
    q = Prog()
    for i in range(9): q(f"v_cvt_pk_bf16_f32 v{E+i}, v{KA+2*i}, v{KA+2*i+1}")
    for r in (9, 10, 11): q(f"v_mov_b32 v{E+r}, 0")
    D_ = (acc(2, 0), acc(2, 1))
    q(f"s_lshl_b32 s40, s{S_MT}, 3")
    q(f"s_lshl_b32 s41, s{S_W}, 1")
    q("s_add_u32 s40, s40, s41")
    q("s_mul_i32 s40, s40, 40960")
    q(f"s_mul_i32 s41, s{S_J}, 1280")
    q("s_add_u32 s40, s40, s41")
    q("s_add_u32 s41, s40, 40960")
    for f in range(3):
        for tt in range(2):
            q(f"{MF} {vr(D_[tt],16)}, {vr(E+4*f,4)}, {vr(acc(0,tt)+4*f,4)}, {vr(D_[tt],16) if f else '0'}")
    for tt in range(2):
        d = D_[tt]
        q(f"v_add_f32 v{d+12}, 0x{np_f32(1e-6):08x}, v{d+9}")
        q(f"v_rcp_f32 v{d+12}, v{d+12}")
    for tt in range(2):
        d = D_[tt]
        for r in range(9): q(f"v_mul_f32 v{d+r}, v{d+r}, v{d+12}")
        for r in range(4): q(f"v_cvt_pk_bf16_f32 v{d+r}, v{d+2*r}, v{d+2*r+1}")
        q(f"v_cvt_pk_bf16_f32 v{d+4}, v{d+8}, 0")
        for r in range(5): q(f"buffer_store_dword v{d+r}, v{OA}, {sr(S_OF)}, s{40+tt} offen offset:{r*256} sc1")
    return q

def wd_prefetch():
    q = Prog()
    q("s_lshl_b32 s40, s2, 2")
    q(f"s_add_u32 s40, s40, s{S_W}")
    q.b("s_cmp_lt_u32 s40, 648", f"s_cselect_b32 s{S_XF}, s{P_WD}, s{P_WO}", f"s_cselect_b32 s{S_XF+1}, s{P_WD+1}, s{P_WO+1}",
        f"s_cselect_b32 s41, 0, 648")
    q.b("s_cmp_lt_u32 s40, 648", f"s_mov_b32 s42, {WOIN_SZ}", f"s_cselect_b32 s{S_XF+2}, {WG_SZ}, s42")
    q("s_sub_u32 s40, s40, s41")
    q("s_lshl_b32 s40, s40, 13")
    q(f"v_lshlrev_b32 v{OA+6}, 7, v{V_LANE}")
    q(f"buffer_load_dword v{OA+7}, v{OA+6}, {sr(S_XF)}, s40 offen")
    return q

def b_decode(q):
    q("s_and_b32 s40, s2, 7")
    q("s_lshr_b32 s41, s2, 3")
    q("s_mul_i32 s42, s40, 29")
    q("s_min_u32 s43, s40, 2")
    q("s_add_u32 s42, s42, s43")
    q(f"s_add_u32 s{S_BT}, s42, s41")
    q.b("s_cmp_lt_u32 s40, 2", "s_cselect_b32 s43, 30, 29")
    q.b("s_cmp_lt_u32 s41, s43", f"s_cselect_b32 s{S_BT}, s{S_BT}, 255")
def f1_publish_issue():
    q = Prog()
    q(f"s_add_u32 s41, s{S_FI}, 4096")
    flag_store(q, 4096, 41, OA+4)
    b_decode(q)
    q(f"s_mul_i32 s40, s{S_BT}, 7282")
    q("s_lshr_b32 s40, s40, 16")
    q("s_mul_i32 s40, s40, 80")
    q("s_add_u32 s41, s40, 79")
    q("s_min_u32 s40, s40, 2047")
    q("s_min_u32 s41, s41, 2047")
    q("s_and_b32 s40, s40, 0xf00")
    q("s_and_b32 s41, s41, 0xf00")
    q("s_sub_u32 s41, s41, 256")
    q(f"v_lshlrev_b32 v{OA+8}, 3, v{V_LANE}")
    q(f"v_mov_b32 v{OA+9}, s40")
    q(f"v_mov_b32 v{OA+10}, s41")
    q(f"v_cmp_gt_u32 vcc, 32, v{V_LANE}")
    q(f"v_cndmask_b32 v{OA+9}, v{OA+10}, v{OA+9}, vcc")
    q(f"v_add_u32 v{OA+8}, v{OA+8}, v{OA+9}")
    q(f"v_add_u32 v{OA+8}, 4096, v{OA+8}")
    return q

def stage_a(p):
    NUP = 2
    for g in range(NUP): p.add(startup_group(g))
    setup_a2(p)
    frags = []
    def trfrag(u, xy, s):
        va = V_TR0 + ((u + 1) & 1)
        return [("ds_read_b64_tr_b16", 0, 2, va, s*1024 + xy*32), ("ds_read_b64_tr_b16", 2, 2, va, s*1024 + 256 + xy*32)]
    for s in range(36):
        frags.append(([("ds_read_b128", 0, 4, V_B1, s*1024)], 1, s))
        frags.append(([("ds_read_b128", 0, 4, V_B0, s*1024)], 0, s))
        frags.append((trfrag(0, 0, s), 2, s))
        frags.append((trfrag(0, 1, s), 3, s))
    chain_set = {2: 1, 3: 2, 4: 3, 5: 1, 6: 2, 7: 3, 8: 1}
    cs = {}
    for c in range(2, 9):
        cs[c] = len(frags)
        for s in range(36): frags.append((trfrag(c // 2, c & 1, s), chain_set[c], s))
    NF = len(frags)
    bars = {16*g: [f"S{g}"] for g in range(9)}
    bars[cs[2]] = [f"U1g{g}" for g in range(6)]
    bars[cs[2] + 24] = ["U1g6", "U1g7", "U1g8"]
    bars[cs[4]] = [f"U2g{g}" for g in range(9)]
    bars[cs[6]] = [f"U3g{g}" for g in range(9)] + ["atom"]
    bars[cs[8]] = [f"U4g{g}" for g in range(9)] + [f"h{c}" for c in range(6)]
    def reads(n):
        slot = RING + 4*(n & 3)
        return [I(f"{op} {vr(slot+o,cnt)}, v{va} offset:{off}", tag=f"fr{n}") for (op, o, cnt, va, off) in frags[n][0]]
    def barrier(n): return [WaitTag(vm=bars[n]), I("s_waitcnt lgkmcnt(0)"), I("s_barrier")]
    p.add(barrier(0))
    for n in range(4): p.add(reads(n))
    main = []
    for n in range(NF):
        _, st, s = frags[n]
        slot = RING + 4*(n & 3)
        mf = [I(f"{MF} {vr(acc(st,tt),16)}, {vr(slot,4)}, {xreg(tt,s)}, {vr(acc(st,tt),16) if s else '0'}") for tt in range(2)]
        f0 = barrier(n + 3) + reads(n + 3) if (n + 3 < NF and (n + 3) in bars and n + 3 >= 4) else []
        f1 = []
        if n + 1 < NF: f1.append(WaitTag(lg=[f"fr{n+1}"]))
        if n + 4 < NF and (n + 4) not in bars: f1 += reads(n + 4)
        main.append((mf[0], f0)); main.append((mf[1], f1))
    C = {c: 2*cs[c] for c in cs}; C[9] = 2*NF
    sides = []
    for g in range(9):
        q = Prog()
        if g + NUP < 9: q.add(startup_group(g + NUP))
        if g >= 1: q.add(dma_unit_group(1, g - 1))
        sides.append((32*g, 32*g + (28 if g < 8 else 24), q, None, True))
    sides.append((C[2] - 5, C[2], moves_a2()))
    sides.append((C[2], C[2] + 8, dma_unit_group(1, 8), None, True))
    q = Prog()
    for g in range(9): q.add(dma_unit_group(2, g))
    sides.append((C[2] + 10, C[3] + 40, q, None, True))
    for u, c in ((3, 4), (4, 6)):
        q = Prog()
        for g in range(9): q.add(dma_unit_group(u, g))
        sides.append((C[c], C[c] + 110, q, None, True))
    setof = dict(chain_set); setof[0] = 2; setof[1] = 3
    prev = None
    for e in range(8):
        dl = C[e+3] - 1 if e + 3 <= 7 else C[8] - 8 if e == 5 else C[8] + 10 if e == 6 else C[9]
        sides.append((C[max(e+1, 2)] + 3, dl, ffn_epi(setof[e], e // 2, e & 1), prev))
        prev = len(sides) - 1
    sides.append((C[2] + 3, C[4] - 8, k_part()))
    sides.append((C[4] - 2, C[4] + 40, kv_reduce()))
    sides.append((C[4], C[7], q_part()))
    sides.append((C[4] + 60, C[4] + 70, wd_prefetch()))
    sides.append((C[6] - 2, C[6] + 10, fk_publish_and_poll()))
    sides.append((C[7], C[7] + 2, fk_issue()))
    sides.append((C[7] + 30, C[8] - 6, fk_check_and_load(), None, True))
    sides.append((C[8] - 2, C[8] + 10, f1_publish_issue()))
    sides.append((C[8] + 10, C[9] - 4, o_finish()))
    q = Prog(); q(f"buffer_load_dwordx2 {vr(OA+10,2)}, v{OA+8}, {sr(S_FL)}, 0 offen sc1")
    sides.append((C[9] - 4, C[9], q))
    for c in range(2, 9): main[C[c]-1] = (main[C[c]-1][0], main[C[c]-1][1] + fine(c - 1))
    woven, loads = weave(main, sides)
    if OPTS.get("verbose"):
        print("done at", weave.done_at, C, file=sys.stderr)
        for c0 in range(0, len(loads), 72):
            print("gap loads", c0, sum(loads[c0:c0+72]), max(loads[c0:c0+72]), "over:", sum(max(0, x-6) for x in loads[c0:c0+72]), file=sys.stderr)
    p.add(woven)
    p.add(ffn_epi(setof[8], 4, 0))

NSLOT = 6
B_WD, B_WO, B_X, B_OUT = 4, 8, 12, 16
B_M, B_N, B_HB, B_WDB, B_HO, B_WDO, B_LB, B_IT, B_IX = 37, 38, 45, 46, 47, 48, 49, 50, 51
BV_H, BV_D, BV_T, BV_TAB, BV_O, BV_XO, BV_R, BV_FA, BV_FD = 2, 7, 11, 12, 14, 19, 22, 1, 26
XR, AF, ACC1, ACC2, TMP = 28, 40, 72, 152, 232
def hreg(slot, tt): return ar(20*slot + 4*tt, 4)
def accr(base, tt, nt): return base + 16*tt + 4*nt

def issue_down(p, slot):
    p(f"v_readlane_b32 s40, v{BV_TAB}, s{B_IX}")
    p(f"s_add_u32 s{B_IX}, s{B_IX}, 1")
    p(f"s_lshl_b32 s41, s40, 10")
    p(f"s_add_u32 s{B_HO}, s{B_HB}, s41")
    p(f"s_mul_i32 s41, s40, {32*1152}")
    p(f"s_add_u32 s{B_WDO}, s{B_WDB}, s41")
    for i in range(4):
        p(f"s_add_u32 m0, s{B_LB}, {slot*4096 + i*1024}")
        p(f"buffer_load_dwordx4 {hreg(slot,i)}, v{BV_H+i}, {sr(S_HF)}, s{B_HO} offen {OPTS.get('hld', 'sc1')}")
        p(f"buffer_load_dwordx4 v{BV_D+i}, {sr(B_WD)}, s{B_WDO} offen lds", tag=f"D{slot}")
    p(f"buffer_load_dwordx4 {hreg(slot,4)}, v{BV_H+4}, {sr(S_HF)}, s{B_HO} offen {OPTS.get('hld', 'sc1')}")

def issue_s(p, slot, i):
    L = V_LANE
    p(f"s_lshl_b32 s40, s{S_W}, 4")
    p(f"s_add_u32 s40, s40, {64*i}")
    p("s_lshl_b32 s41, s40, 7")
    for i4 in range(4):
        a = TMP + 4*i4
        p(f"v_add3_u32 v{a}, v{TMP+16}, s40, {4*i4}")
        p(f"v_mul_u32_u24 v{a+1}, 6554, v{a}")
        p(f"v_lshrrev_b32 v{a+1}, 16, v{a+1}")
        p(f"v_mul_u32_u24 v{a+2}, 10, v{a+1}")
        p(f"v_sub_u32 v{a+2}, v{a}, v{a+2}")
        p(f"v_lshl_add_u32 v{a}, v{a+1}, 3, v{a}")
        p(f"v_mul_u32_u24 v{a}, 1152, v{a}")
        p(f"v_add_u32 v{a}, v{a}, v{TMP+17}")
        p(f"v_cmp_gt_u32 vcc, 9, v{a+2}")
        p(f"v_cndmask_b32 v{a}, v{TMP+18}, v{a}, vcc")
        p(f"s_add_u32 m0, s{B_LB}, {slot*4096 + i4*1024}")
        p("s_nop 0")
        p(f"buffer_load_dwordx4 v{a}, {sr(B_WO)}, 0 offen lds", tag=f"D{slot}")
    for tt in range(5):
        for k in range(4):
            p(f"buffer_load_dword a{20*slot+4*tt+k}, v{BV_O+tt}, {sr(S_OF)}, s41 offen offset:{256*k} sc1")

def compute(p, slot, accb, manual):
    af = AF + 16*(slot & 1)
    if not manual: p.wait(vm=[f"D{slot}"])
    for nt in range(4):
        for sec in range(2):
            p(f"ds_read_b64_tr_b16 {vr(af+4*nt+2*sec,2)}, v{BV_T} offset:{slot*4096 + nt*8 + sec*1024}")
    for nt in range(4):
        if manual: p(f"s_waitcnt lgkmcnt({6-2*nt})")
        for tt in range(5):
            d = accr(accb, tt, nt)
            p(f"{MF16} {vr(d,4)}, {vr(af+4*nt,4)}, {hreg(slot,tt)}, {vr(d,4)}")

def time_out(p):
    if not OPTS.get("time"): return
    p("s_waitcnt vmcnt(0)")
    p.add(stamp(8))
    srd(p, 40, P_WS, WS_USED, 131072)
    p("s_waitcnt lgkmcnt(0)")
    for i in range(9): p(f"v_mov_b32 v{28+i}, s{STAMPS[i]}")
    p("s_lshl_b32 s44, s2, 2")
    p(f"s_add_u32 s44, s44, s{S_W}")
    p("s_lshl_b32 s44, s44, 6")
    p("v_mov_b32 v26, s44")
    p("buffer_store_dwordx4 v[28:31], v26, s[40:43], 0 offen")
    p("buffer_store_dwordx4 v[32:35], v26, s[40:43], 0 offen offset:16")
    p("buffer_store_dword v36, v26, s[40:43], 0 offen offset:32")

def stage_b():
    out = ""
    L = V_LANE
    p = Prog()
    if OPTS.get("time") in (1, 3): p.add(stamp(2))
    p(f"v_mov_b32 v{BV_FA}, v{OA+8}")
    p(f"s_add_u32 s41, s{S_FI}, 6144")
    p(f"s_mov_b32 s{B_IT}, s41")
    p(f"s_cmp_eq_u32 s{S_BT}, 255")
    p("s_cbranch_scc1 LB_spare")
    p(f"s_mul_i32 s43, s{S_BT}, 7282")
    p(f"s_lshr_b32 s{B_M}, s43, 16")
    p(f"s_mul_i32 s43, s{B_M}, 9")
    p(f"s_sub_u32 s{B_N}, s{S_BT}, s43")
    srd(p, B_WD, P_WD, 0, WG_SZ)
    p(f"v_lshlrev_b32 v{BV_H}, 4, v{L}")
    for tt in range(1, 5): p(f"v_add_u32 v{BV_H+tt}, {tt*147456}, v{BV_H}")
    p(f"v_lshrrev_b32 v23, 3, v{L}")
    p("v_mul_u32_u24 v23, 1152, v23")
    p(f"v_and_b32 v24, 7, v{L}")
    p(f"v_lshl_add_u32 v{BV_D}, v24, 4, v23")
    for i in range(1, 4): p(f"v_add_u32 v{BV_D+i}, {i*9216}, v{BV_D}")
    p(f"s_mul_i32 s{B_HB}, s{B_M}, {5*147456}")
    p(f"s_lshl_b32 s{B_WDB}, s{B_N}, 7")
    p(f"s_mul_i32 s{B_LB}, s{S_W}, {NSLOT*4096}")
    p(f"s_mul_i32 s40, s{B_M}, 21846")
    p("s_lshr_b32 s40, s40, 16")
    p("s_mul_i32 s40, s40, 3")
    p(f"s_sub_u32 s40, s{B_M}, s40")
    p("s_mul_i32 s40, s40, 9")
    p(f"s_add_u32 s40, s40, s{B_N}")
    p("s_lshl_b32 s40, s40, 2")
    p(f"s_add_u32 s40, s40, s{S_W}")
    p("s_mul_i32 s40, s40, 36")
    p("s_getpc_b64 s[42:43]")
    p("LB_pc:")
    p("s_add_u32 s40, s40, LK_tab-LB_pc")
    p(f"v_min_u32 v23, 35, v{L}")
    p("v_add_u32 v23, s40, v23")
    p(f"global_load_ubyte v{BV_TAB}, v23, s[42:43]")
    p(f"s_mov_b32 s{B_IX}, 0")
    p("s_waitcnt vmcnt(0)")
    check_flags(p, "F1", BV_FA, OA+10, "0")
    p("s_barrier")
    p.add(st3(4))
    for s in range(NSLOT - 1): issue_down(p, s)
    srd(p, B_WO, P_WO, 0, WOIN_SZ)
    srd(p, B_X, P_X, 0, X_SZ)
    srd(p, B_OUT, P_OUT, 0, X_SZ)
    p(f"v_add_u32 v{BV_FA}, 2048, v{BV_FA}")
    p(f"v_lshrrev_b32 v23, 5, v{L}")
    p("v_lshlrev_b32 v23, 11, v23")
    p(f"v_bfe_u32 v24, v{L}, 4, 1")
    p("v_lshl_add_u32 v23, v24, 9, v23")
    p(f"v_bfe_u32 v24, v{L}, 2, 2")
    p("v_lshl_add_u32 v23, v24, 7, v23")
    p(f"v_and_b32 v24, 3, v{L}")
    p("v_lshl_add_u32 v23, v24, 5, v23")
    p(f"v_add_u32 v{BV_T}, s{B_LB}, v23")
    p(f"v_lshrrev_b32 v23, 5, v{L}")
    p("v_lshlrev_b32 v23, 10, v23")
    p(f"v_bfe_u32 v24, v{L}, 4, 1")
    p("v_lshl_add_u32 v23, v24, 7, v23")
    p(f"v_and_b32 v24, 15, v{L}")
    p("v_lshl_add_u32 v23, v24, 2, v23")
    p(f"s_mul_i32 s40, s{B_M}, 5")
    for tt in range(5):
        p(f"s_add_u32 s41, s40, {tt}")
        p("s_lshr_b32 s42, s41, 1")
        p("s_mul_i32 s42, s42, 40960")
        p("s_and_b32 s41, s41, 1")
        p("s_lshl_b32 s41, s41, 6")
        p("s_add_u32 s41, s41, s42")
        p(f"v_add_u32 v{BV_O+tt}, s41, v23")
    p(f"v_mov_b32 v{BV_R}, v{BV_H}")
    p(f"s_mul_i32 s40, s{B_M}, 80")
    p(f"v_and_b32 v23, 15, v{L}")
    p("v_add_u32 v23, s40, v23")
    p("v_mul_u32_u24 v23, 1152, v23")
    p(f"v_lshrrev_b32 v24, 4, v{L}")
    p("v_lshl_add_u32 v23, v24, 5, v23")
    p(f"s_lshr_b32 s41, s{S_W}, 1")
    p(f"s_mul_i32 s41, s41, {16*1152}")
    p(f"s_add_u32 s40, s{B_WDB}, s41")
    p(f"s_and_b32 s41, s{S_W}, 1")
    p("s_lshl_b32 s41, s41, 4")
    p("s_add_u32 s40, s40, s41")
    p(f"v_add_u32 v{BV_XO}, s40, v23")
    p(f"v_add_u32 v{BV_XO+1}, {32*1152}, v{BV_XO}")
    p(f"v_add_u32 v{BV_XO+2}, {64*1152}, v{BV_XO}")
    p(f"v_bfe_u32 v{TMP+16}, v{L}, 3, 2")
    p(f"v_lshrrev_b32 v23, 5, v{L}")
    p(f"v_mul_u32_u24 v23, {9*1152}, v23")
    p(f"v_and_b32 v24, 7, v{L}")
    p("v_lshl_add_u32 v23, v24, 4, v23")
    p(f"v_add_u32 v{TMP+17}, s{B_WDB}, v23")
    p(f"v_mov_b32 v{TMP+18}, {OOB}")
    for r in range(160): p(f"v_mov_b32 v{ACC1+r}, 0")
    p("s_waitcnt vmcnt(45)")
    p("s_barrier")
    flag_store(p, 6144, B_IT, 24)
    p.add(st3(5))
    p(f"s_mov_b32 s{B_IT}, 0")
    out += finalize(p.l)
    p = Prog()
    p("LB_loop:")
    for s in range(NSLOT):
        p(f"s_waitcnt vmcnt({36 if s == 0 else 37})")
        if s == 0:
            p(f"s_cmp_eq_u32 s{B_IT}, 3")
            p("s_cbranch_scc0 LF2_ok")
            check_flags(p, "F2", BV_FA, BV_FD, "0")
        issue_down(p, (s + NSLOT - 1) % NSLOT)
        if s == 0: p(f"buffer_load_dwordx2 {vr(BV_FD,2)}, v{BV_FA}, {sr(S_FL)}, 0 offen sc1")
        compute(p, s, ACC1, True)
    p(f"s_add_u32 s{B_IT}, s{B_IT}, 1")
    p(f"s_cmp_lt_u32 s{B_IT}, 5")
    p("s_cbranch_scc1 LB_loop")
    out += render(pad_hazards(flat(p.l)))
    seed = Prog()
    for s in range(NSLOT - 1): issue_down(seed, s)
    vm0 = [(set(i.wr), i.tag, i.kind) for i in seed.l if i.kind in VMK]
    p = Prog()
    p.add(st3(6))
    issue_down(p, 5); compute(p, 0, ACC1, False)
    compute(p, 1, ACC1, False)
    compute(p, 2, ACC1, False)
    issue_s(p, 0, 0); compute(p, 3, ACC1, False)
    issue_s(p, 1, 1); compute(p, 4, ACC1, False)
    issue_s(p, 2, 2); compute(p, 5, ACC1, False)
    p.add(st3(7))
    issue_s(p, 3, 3); compute(p, 0, ACC2, False)
    issue_s(p, 4, 4); compute(p, 1, ACC2, False)
    for u in range(3): p(f"buffer_load_dwordx4 {vr(XR+4*u,4)}, v{BV_XO+u}, {sr(B_X)}, 0 offen")
    for s in (2, 3, 4): compute(p, s, ACC2, False)
    if OPTS.get("time") in (1, 3): p.add(stamp(3)); p("s_waitcnt lgkmcnt(0)")
    p("s_barrier")
    p("s_nop 7")
    for w in range(1, 4):
        p(f"s_cmp_eq_u32 s{S_W}, {w}")
        p(f"s_cbranch_scc1 LB_w{w}")
    out += render(pad_hazards(insert_waits(flat(p.l), vm0=vm0)))
    for w in range(4):
        p = Prog()
        if w: p(f"LB_w{w}:")
        for u in range(10):
            o = u % 4
            if o == w: continue
            tt, np_ = u >> 1, u & 1
            sl = (w - o - 1) % 4
            p(f"v_add_u32 v23, {(u*3 + sl)*4096}, v{BV_R}")
            for k, accb in enumerate((ACC1, ACC2)):
                for h_ in range(2):
                    p(f"ds_write_b128 v23, {vr(accr(accb,tt,2*np_+h_),4)} offset:{(2*k+h_)*1024}")
        p("s_waitcnt lgkmcnt(0)")
        p("s_barrier")
        own = [u for u in range(10) if u % 4 == w]
        for ui, u in enumerate(own):
            tt, np_ = u >> 1, u & 1
            p(f"v_add_u32 v23, {u*3*4096}, v{BV_R}")
            for k, accb in enumerate((ACC1, ACC2)):
                a = accr(accb, tt, 2*np_)
                for sl in range(3):
                    for h_ in range(2):
                        p(f"ds_read_b128 {vr(TMP+8*sl+4*h_,4)}, v23 offset:{sl*4096+(2*k+h_)*1024}")
                for sl in range(3):
                    for r in range(8): p(f"v_add_f32 v{a+r}, v{a+r}, v{TMP+8*sl+r}")
            f = accr(ACC1, tt, 2*np_); s_ = accr(ACC2, tt, 2*np_); x = XR + 4*ui
            for r in range(8): p(f"v_mul_f32 v{TMP+r}, s{S_NL2E}, v{f+r}")
            for r in range(8): p(f"v_exp_f32 v{TMP+r}, v{TMP+r}")
            for r in range(8): p(f"v_mul_f32 v{f+r}, v{f+r}, v{s_+r}")
            for r in range(8): p(f"v_add_f32 v{TMP+r}, 1.0, v{TMP+r}")
            for r in range(8): p(f"v_rcp_f32 v{TMP+r}, v{TMP+r}")
            if ui == 0: p("s_waitcnt vmcnt(0)")
            for r in range(4):
                p(f"v_lshlrev_b32 v{TMP+8+2*r}, 16, v{x+r}")
                p(f"v_and_b32 v{TMP+9+2*r}, 0xffff0000, v{x+r}")
            for r in range(8): p(f"v_fma_f32 v{f+r}, v{f+r}, v{TMP+r}, v{TMP+8+r}")
            for r in range(4): p(f"v_cvt_pk_bf16_f32 v{x+r}, v{f+2*r}, v{f+2*r+1}")
            p(f"buffer_store_dwordx4 {vr(x,4)}, v{BV_XO+ui}, {sr(B_OUT)}, 0 offen")
        time_out(p)
        p("s_endpgm")
        out += finalize(p.l)
    p = Prog()
    p("LB_spare:")
    p("s_waitcnt vmcnt(0)")
    p("s_barrier")
    flag_store(p, 6144, B_IT, 24)
    p("s_endpgm")
    out += finalize(p.l)
    return out

def ktable():
    Dl = OPTS.get("lead", 3)
    out = "LK_tab:\n"
    for m3 in range(3):
        for n in range(9):
            for w in range(4):
                early = [9*((4*i+w)//6) + (4*i+w) % 6 + (2 if (4*i+w) % 6 >= 3 else 0) for i in range(24)]
                late = [9*((4*i+w)//3) + (3, 4, 8)[(4*i+w) % 3] for i in range(12)]
                row = []
                for base, lst in ((0, early), (24, late)):
                    key = lambda i: (i - Dl*((base+i) % 3 == m3) - Dl*((base+i) % 9 == n), i)
                    row += [lst[i] for i in sorted(range(len(lst)), key=key)]
                if OPTS.get("kmod"): row = [early[i % OPTS["kmod"]] for i in range(36)]
                out += ".byte " + ", ".join(map(str, row)) + "\n"
    return out + ".p2align 2\n"

def gen(name, opts):
    OPTS.clear(); OPTS.update(opts); SLOW.clear()
    out = entry(name)
    p = Prog()
    setup(p)
    p(f"s_cmp_eq_u32 s{S_W}, 2")
    p("s_cbranch_scc1 LP_fold")
    p(f"s_cmp_eq_u32 s{S_W}, 3")
    p("s_cbranch_scc1 LP_tok")
    ln_job(p)
    p.add(stamp(4))
    p("s_waitcnt vmcnt(0)")
    p("s_branch LP_join")
    out += finalize(p.l)
    p = Prog(); p("LP_fold:"); fold_job(p); p.add(stamp(4)); p("s_waitcnt vmcnt(0)"); p("s_branch LP_join")
    out += finalize(p.l)
    p = Prog(); p("LP_tok:"); token_job(p)
    out += finalize(p.l)
    p = Prog()
    p("LP_join:")
    p.add(stamp(5))
    setup_a(p)
    p(f"v_mov_b32 v16, {TOK}")
    p("s_barrier")
    p.add(stamp(6))
    p("ds_read_b64 v[18:19], v16")
    p(f"v_readfirstlane_b32 s{S_TOK}, v18")
    p(f"v_readfirstlane_b32 s{S_TOK+1}, v19")
    p(f"s_cmp_lg_u32 s{S_W}, 0")
    p("s_cbranch_scc1 LP_u0")
    flag_store(p, 0, S_FI, 20)
    p(f"s_lshl_b32 s40, s{S_MT}, 8")
    p(f"v_lshl_add_u32 v22, v{V_LANE}, 3, s40")
    p(f"s_lshl_b32 s40, s{S_J}, 3")
    p(f"v_and_b32 v23, 7, v{V_LANE}")
    p("v_lshl_add_u32 v23, v23, 8, s40")
    p(f"v_cmp_gt_u32 vcc, 32, v{V_LANE}")
    p("v_cndmask_b32 v22, v23, v22, vcc")
    p(f"buffer_load_dwordx2 v[24:25], v22, {sr(S_FL)}, 0 offen sc1")
    check_flags(p, "F0", 22, 24, "0")
    p("s_branch LP_go")
    out += finalize(p.l)
    p = Prog()
    p("LP_u0:")
    p(f"s_sub_u32 s40, s{S_W}, 1")
    p("s_lshl_b32 s41, s40, 10")
    p(f"s_mul_i32 s42, s40, {16*9216}")
    p(f"s_add_u32 s42, s42, s{S_FB}")
    p("LP_u0l:")
    p(f"s_add_u32 m0, s41, {G1}")
    p("s_add_u32 s40, s40, 3")
    p(f"buffer_load_dwordx4 v{V_A}, {sr(S_WG)}, s42 offen lds")
    p(f"s_add_u32 m0, s41, {U1}")
    p("s_add_u32 s41, s41, 3072")
    p(f"buffer_load_dwordx4 v{V_A}, {sr(S_WU)}, s42 offen lds")
    p(f"s_add_u32 s42, s42, {3*16*9216}")
    p("s_cmp_lt_u32 s40, 36")
    p("s_cbranch_scc1 LP_u0l")
    p("LP_go:")
    p("s_barrier")
    out += finalize(p.l)
    p = Prog()
    if opts.get("time") in (1, 3): p.add(stamp(1))
    p.add(fine(0))
    stage_a(p)
    p.add(fine(8)) if False else None
    out += finalize(p.l)
    out += stage_b()
    for s in SLOW: out += finalize(s.l)
    out += "LK_end:\n    s_endpgm\n"
    out += ktable()
    out += kd(name, 512, 102, 256)
    return out

if __name__ == "__main__":
    NAME = "recurrent_scan__linear_kernel_hedgehog__swiglu_ffn__prompt"
    HDR = open(f"cdna_kernels/{NAME}.s.ref").read().split("; Override launch geometry")[0]
    opts = {}
    for a in sys.argv[2:]:
        k, v = a.split("=")
        opts[k] = int(v) if v.lstrip("-").isdigit() else v
    txt = HDR + f"; @launch grid=(256,1,1) block=(256,1,1) lds={LDS_BYTES}\n" + '.amdgcn_target "amdgcn-amd-amdhsa--gfx950"\n.text\n' + gen(NAME + "_kernel", opts)
    open(sys.argv[1], "w").write(txt)
```

```python
import re

TRANS = ("v_exp_f32", "v_log_f32", "v_rcp_f32", "v_rsq_f32", "v_sqrt_f32", "v_sin_f32", "v_cos_f32")

def _regs(tok):
    tok = tok.strip()
    neg = tok.lstrip("-")
    if neg.startswith("abs(") or neg.startswith("|"):
        neg = neg.replace("abs(", "").replace(")", "").replace("|", "")
    tok = neg
    m = re.fullmatch(r"([vas])\[(\d+):(\d+)\]", tok)
    if m:
        return [f"{m.group(1)}{i}" for i in range(int(m.group(2)), int(m.group(3)) + 1)]
    m = re.fullmatch(r"([vas])(\d+)", tok)
    if m:
        return [tok]
    if tok in ("vcc", "exec", "m0", "scc"):
        return [tok]
    if tok in ("vcc_lo", "vcc_hi"):
        return ["vcc"]
    if tok in ("exec_lo", "exec_hi"):
        return ["exec"]
    return []

class I:
    __slots__ = ("text", "op", "kind", "rd", "wr", "tag", "cost", "mf_c", "mf_ab", "passes", "lds_rd", "nwait", "comment", "dpp")
    def __init__(self, text, tag=None, comment=None):
        self.text = text.strip()
        self.tag = tag
        self.comment = comment
        self.mf_c = []; self.mf_ab = []; self.passes = 0; self.nwait = 1; self.dpp = False
        self.parse()
    def parse(self):
        t = self.text
        if t.endswith(":"):
            self.op = "label"; self.kind = "label"; self.rd = set(); self.wr = set(); self.cost = 0; self.nwait = 0
            return
        parts = t.split(None, 1)
        op = parts[0]
        self.op = op
        rest = parts[1] if len(parts) > 1 else ""
        ops = [o.strip() for o in re.split(r",(?![^\[]*\])", rest)] if rest else []
        mods = ""
        if ops:
            lp = ops[-1].split(None, 1)
            ops[-1] = lp[0]
            mods = lp[1] if len(lp) > 1 else ""
        rd = set(); wr = set()
        R = lambda k: set(_regs(ops[k])) if k < len(ops) else set()
        allr = lambda ks: set().union(*[R(k) for k in ks]) if ks else set()
        n = len(ops)
        cost = 1
        if op.startswith("v_mfma"):
            kind = "mfma"
            wr = R(0); rd = allr([1, 2, 3])
            self.mf_ab = R(1) | R(2); self.mf_c = R(3)
            self.passes = 8 if ("32x32x16" in op or "32x32x8" in op) else 4 if "16x16x32" in op else None
            assert self.passes
        elif op.startswith("ds_read") or op.startswith("ds_bpermute") or op.startswith("ds_swizzle"):
            kind = "dsr"; wr = R(0); rd = allr(range(1, n))
        elif op.startswith("ds_write") or op.startswith("ds_add"):
            kind = "dsw"; rd = allr(range(n))
        elif op.startswith("buffer_load") or op.startswith("global_load"):
            if " lds" in (" " + mods) or "_lds_" in op:
                kind = "dma"; rd = allr(range(n)) | {"m0"}
            else:
                kind = "vld"; wr = R(0); rd = allr(range(1, n))
                if "d16" in op:
                    rd |= R(0)
        elif op.startswith("buffer_store") or op.startswith("global_store"):
            kind = "vst"; rd = allr(range(n))
        elif op.startswith("buffer_atomic") or op.startswith("global_atomic"):
            kind = "vst"; rd = allr(range(n))
            if "sc0" in mods.split():
                kind = "vld"; wr = R(0)
        elif op in ("buffer_inv", "buffer_wbl2"):
            kind = "vst"
        elif op.startswith("s_load") or op in ("s_memtime", "s_memrealtime"):
            kind = "smem"; wr = R(0); rd = allr(range(1, n))
        elif op == "s_waitcnt":
            kind = "wait"
        elif op == "s_barrier":
            kind = "bar"
        elif op == "s_nop":
            kind = "nop"; self.nwait = int(ops[0], 0) + 1; cost = self.nwait
        elif op.startswith("s_cbranch") or op in ("s_branch", "s_endpgm", "s_setpc_b64"):
            kind = "branch"
            if "scc" in op: rd = {"scc"}
            if "vcc" in op: rd = {"vcc"}
            if "exec" in op: rd = {"exec"}
        elif op.startswith("s_cmp"):
            kind = "salu"; rd = allr(range(n)); wr = {"scc"}
        elif op in ("s_sleep", "s_setprio"):
            kind = "salu"
        elif op.startswith("s_"):
            kind = "salu"; wr = R(0); rd = allr(range(1, n))
            if op.startswith(("s_add", "s_sub", "s_and", "s_or", "s_xor", "s_lshl", "s_lshr", "s_ashr", "s_min", "s_max", "s_bfe", "s_not", "s_andn2")):
                wr |= {"scc"}
            if op.startswith(("s_addc", "s_subb", "s_cselect")):
                rd |= {"scc"}
            if "saveexec" in op:
                rd |= {"exec"}; wr |= {"exec", "scc"}
            if op in ("s_addk_i32", "s_mulk_i32"):
                rd |= R(0)
        elif op.startswith("v_"):
            base = re.sub(r"_(e32|e64|dpp|sdwa)$", "", op)
            kind = "trans" if base in TRANS else "valu"
            if kind == "trans": cost = 2
            if op.startswith("v_cmp"):
                wr = R(0); rd = allr(range(1, n))
            elif op.startswith(("v_readfirstlane", "v_readlane")):
                wr = R(0); rd = allr(range(1, n))
            elif op.startswith("v_permlane") and "swap" in op:
                wr = R(0) | R(1); rd = R(0) | R(1)
            elif base in ("v_add_co_u32", "v_sub_co_u32"):
                wr = R(0) | R(1); rd = allr(range(2, n))
            elif base in ("v_addc_co_u32",):
                wr = R(0) | R(1); rd = allr(range(2, n))
            else:
                wr = R(0); rd = allr(range(1, n))
                if base in ("v_fmac_f32", "v_dot2c_f32_bf16", "v_writelane_b32") or op.endswith("_dpp"):
                    rd |= R(0)
                if base == "v_cndmask_b32" and n == 3:
                    rd |= {"vcc"}
            if op.endswith("_dpp"):
                self.dpp = True
            rd |= {"exec"}
        else:
            raise ValueError("unknown instruction: " + t)
        self.kind = kind; self.rd = rd; self.wr = wr; self.cost = cost
    def __repr__(self):
        return self.text

def Sized(text, size):
    _SIZE[text] = size
    return I(text)
_SIZE = {}

class WaitTag:
    passes = 0
    def __init__(self, vm=(), lg=()):
        self.vm = set(vm); self.lg = set(lg)
        self.kind = "waittag"; self.cost = 1; self.rd = set(); self.wr = set()

class Bundle:
    def __init__(self, items):
        self.items = items; self.kind = "bundle"; self.cost = sum(i.cost for i in items)

def flat(lst):
    out = []
    for i in lst:
        if i.kind == "bundle": out += i.items
        else: out.append(i)
    return out

class Raw:
    def __init__(self, text):
        self.text = text; self.kind = "raw"; self.cost = 0; self.rd = set(); self.wr = set()

VMK = ("vld", "vst", "dma")
LGK = ("dsr", "dsw", "smem")

def insert_waits(prog, vm0=None, lg0=None):
    out = []
    vm = list(vm0 or [])
    lg = list(lg0 or [])
    def need(lst, pred):
        idx = -1
        for i, e in enumerate(lst):
            if pred(e): idx = i
        return idx
    for ins in prog:
        if ins.kind == "raw":
            out.append(ins); continue
        wv = wl = None
        if ins.kind == "waittag":
            i = need(vm, lambda e: e[1] in ins.vm)
            if i >= 0: wv = len(vm) - 1 - i
            i = need(lg, lambda e: e[1] in ins.lg)
            if i >= 0: wl = len(lg) - 1 - i
        elif ins.kind == "wait":
            m = re.search(r"vmcnt\((\d+)\)", ins.text)
            if m:
                k = int(m.group(1)); vm = vm[len(vm) - k:] if k < len(vm) else vm
            m = re.search(r"lgkmcnt\((\d+)\)", ins.text)
            if m:
                k = int(m.group(1)); lg = lg[len(lg) - k:] if k < len(lg) else lg
            out.append(ins); continue
        else:
            touch = ins.rd | ins.wr
            if ins.kind == "vld" and "d16" in ins.op:
                touch = ins.rd - ins.wr
            i = need(vm, lambda e: e[0] & touch)
            if i >= 0: wv = len(vm) - 1 - i
            i = need(lg, lambda e: e[0] & touch)
            if i >= 0: wl = len(lg) - 1 - i
        if wl is not None and any(e[2] == "smem" for e in lg):
            wl = 0
        if wv is not None or wl is not None:
            s = []
            if wv is not None:
                assert wv <= 63
                s.append(f"vmcnt({wv})"); vm = vm[len(vm) - wv:] if wv else []
            if wl is not None:
                wl = min(wl, 15)
                s.append(f"lgkmcnt({wl})"); lg = lg[len(lg) - wl:] if wl else []
            out.append(I("s_waitcnt " + " ".join(s)))
        if ins.kind == "waittag":
            continue
        if ins.kind in VMK:
            if len(vm) >= 63:
                out.append(I("s_waitcnt vmcnt(62)")); vm = vm[len(vm) - 62:]
            vm.append((set(ins.wr), ins.tag, ins.kind))
        elif ins.kind in LGK:
            if len(lg) >= 15:
                if any(e[2] == "smem" for e in lg):
                    out.append(I("s_waitcnt lgkmcnt(0)")); lg = []
                else:
                    out.append(I("s_waitcnt lgkmcnt(14)")); lg = lg[len(lg) - 14:]
            lg.append((set(ins.wr), ins.tag, ins.kind))
        out.append(ins)
    insert_waits.vm = vm
    return out

def _isv(r): return r[0] in "va" and r not in ("vcc",)
def _iss(r): return r[0] == "s" and r != "scc" or r == "vcc"

def required_states(p, c):
    n = 0
    pv = p.kind in ("valu", "trans")
    cv = c.kind in ("valu", "trans")
    cmem = c.kind in ("vld", "vst", "dma", "dsr", "dsw")
    if pv:
        vw = {r for r in p.wr if _isv(r)}
        sw = {r for r in p.wr if _iss(r)}
        if c.kind == "mfma" and vw & c.rd: n = max(n, 2)
        if p.kind == "trans" and c.kind == "valu" and vw & c.rd: n = max(n, 1)
        if p.kind == "trans" and cmem and vw & c.rd: n = max(n, 1)
        if cv and c.op.startswith(("v_readlane", "v_readfirstlane")) and vw & c.rd: n = max(n, 1)
        if cv and c.op.startswith("v_permlane") and vw & c.rd: n = max(n, 2)
        if cv and c.dpp and vw & c.rd: n = max(n, 2)
        if sw:
            if cv and sw & c.rd: n = max(n, 4 if c.op.startswith(("v_readlane", "v_writelane")) else 2)
            if c.kind in ("vld", "vst", "dma") and sw & c.rd: n = max(n, 5)
            if c.kind in ("salu", "branch") and sw & c.rd: n = max(n, 1)
        if "exec" in p.wr:
            n = max(n, 5)
    if p.kind == "mfma":
        big = p.passes == 8
        if c.kind == "mfma":
            if p.wr & c.mf_ab: n = max(n, 12 if big else 8)
            if p.wr & c.mf_c:
                same = (p.wr == c.mf_c and p.passes == c.passes)
                if not same: n = max(n, 10 if big else 6)
            elif p.wr & c.wr:
                n = max(n, 0 if p.wr == c.wr and p.passes == c.passes else (10 if big else 6))
        elif cv or cmem:
            if p.wr & (c.rd | c.wr): n = max(n, 12 if big else 8)
            if cv and p.mf_c & c.wr: n = max(n, 7 if big else 3)
    if p.kind == "salu" and "m0" in p.wr and c.kind == "dma": n = max(n, 1)
    if p.kind == "vst" and ("x4" in p.op or "x3" in p.op):
        dat = set(_regs(re.split(r",(?![^\[]*\])", p.text.split(None, 1)[1])[0 if p.op.startswith("buffer") else 1]))
        if dat & c.wr: n = max(n, 2 if cv else 1)
    if p.kind == "dsw" and ("b128" in p.op or "b96" in p.op):
        if (p.rd & c.wr) and cv: n = max(n, 1)
    return n

def pad_hazards(prog, lookback=14):
    out = []
    for ins in prog:
        if ins.kind in ("raw", "label"):
            out.append(ins); continue
        need = 0; dist = 0
        for p in reversed(out):
            if p.kind in ("raw", "label"): continue
            if dist >= lookback: break
            r = required_states(p, ins)
            if r > dist: need = max(need, r - dist)
            dist += p.nwait
        while need > 0:
            k = min(need, 16)
            out.append(I(f"s_nop {k-1}")); need -= k
        out.append(ins)
    return out

def render(prog):
    lines = []
    for i in prog:
        if i.kind == "raw": lines.append(i.text)
        elif i.kind == "label": lines.append(i.text)
        else: lines.append("    " + i.text + (f"    ; {i.comment}" if getattr(i, "comment", None) else ""))
    return "\n".join(lines) + "\n"

def finalize(prog):
    return render(pad_hazards(insert_waits(flat(prog))))

class Prog:
    def __init__(self):
        self.l = []
    def __call__(self, text, tag=None, comment=None):
        for line in text.strip().split("\n"):
            line = line.split(";")[0].strip()
            if line:
                self.l.append(I(line, tag, comment))
        return self
    def b(self, *texts, tag=None):
        self.l.append(Bundle([I(t, tag) for t in texts])); return self
    def add(self, x):
        if isinstance(x, Prog): self.l += x.l
        elif isinstance(x, list): self.l += x
        else: self.l.append(x)
        return self
    def wait(self, vm=(), lg=()):
        self.l.append(WaitTag(vm, lg)); return self

SCAL = ("salu", "wait", "waittag", "nop", "bar")
def slot_cost(i):
    if i.kind == "bundle": return sum(slot_cost(x) for x in i.items)
    if i.kind in ("vld", "vst", "dma"): return VMEM_COST
    if i.kind == "mfma": return 2
    if i.kind == "valu" and i.op.startswith("v_permlane"): return 2
    if i.kind in ("label", "raw"): return 0
    return i.cost
VMEM_COST = 2
LAT_DS = 4
CAP16 = 2

def sizes_of(instrs):
    import subprocess
    todo = sorted({i.text for i in instrs if isinstance(i, I) and i.kind not in ("label", "branch") and i.text not in _SIZE})
    if todo:
        r = subprocess.run(["llvm-mc", "-triple=amdgcn-amd-amdhsa", "-mcpu=gfx950", "-show-encoding"],
                           input="\n".join(todo) + "\n", capture_output=True, text=True)
        enc = [l for l in r.stdout.split("\n") if "encoding:" in l]
        assert len(enc) == len(todo), r.stderr[:2000]
        for t, l in zip(todo, enc): _SIZE[t] = l.split("encoding:")[1].count("0x")
def nbytes(i):
    if i.kind == "bundle": return sum(nbytes(x) for x in i.items)
    if i.kind in ("label", "raw"): return 0
    if i.kind in ("waittag", "branch"): return 4
    return _SIZE[i.text]
BYTES32 = 48
CARRY = 8

def check_streams(sides, after):
    info = []
    def before(x, y):
        while y is not None:
            y = after[y]
            if y == x: return True
        return False
    for (a, b, lst) in sides:
        lst = flat(lst)
        rd = set().union(*[i.rd for i in lst]) - {"exec", "scc"}
        wr = set().union(*[i.wr for i in lst]) - {"exec", "scc"}
        info.append((a, b, rd, wr))
    for x in range(len(info)):
        for y in range(x + 1, len(info)):
            a, b, rd, wr = info[x]; a2, b2, rd2, wr2 = info[y]
            if a < b2 and a2 < b and not before(x, y) and not before(y, x):
                c = (wr & (rd2 | wr2)) | (wr2 & rd)
                assert not c, f"streams {x} {(a,b)} and {y} {(a2,b2)} conflict on {sorted(c)}"

def stall_of(out, ins, lookback=14):
    first = ins.items[0] if ins.kind == "bundle" else ins
    if first.kind in ("waittag", "label"): return 0
    need = 0; dist = 0
    for p in reversed(out):
        if p.kind in ("raw", "label"): continue
        if dist >= lookback: break
        if p.kind != "waittag":
            r = required_states(p, first)
            if r > dist: need = max(need, r - dist)
        dist += getattr(p, "nwait", 1)
    return need

def weave(main, sides, cap=6):
    after = [(x[3] if len(x) > 3 else None) for x in sides]
    paced = [(x[4] if len(x) > 4 else False) for x in sides]
    sides = [(x[0], x[1], (x[2].l if isinstance(x[2], Prog) else x[2])) for x in sides]
    check_streams(sides, after)
    done_at = [None] * len(sides)
    sizes_of([x for (_, _, l) in sides for x in flat(l)] + [x for (m, f) in main for x in [m] + list(f)])
    bcarry = 0
    pos = [0] * len(sides)
    rem = [sum(slot_cost(i) for i in l) for (_, _, l) in sides]
    tot0 = list(rem)
    out = []; loads = []
    ready = {}
    def note(i, g):
        for x in flat([i]):
            lat = LAT_DS if x.kind == "dsr" else (3 if x.passes == 8 else 2) if x.kind == "mfma" else 0
            for r in x.wr: ready[r] = g + lat
    def blocked(i, g):
        return any(ready.get(r, 0) > g for x in flat([i]) for r in (x.rd | x.wr))
    cap0 = cap
    for g, (mf, fixed) in enumerate(main):
        cap = cap0 if mf.passes == 8 else CAP16
        out.append(mf)
        used = 0; head = True
        bcap = (BYTES32 if mf.passes == 8 else BYTES32 // 2) + bcarry
        bused = 8 + sum(nbytes(i) for i in fixed)
        for i in fixed:
            if not (head and i.kind in SCAL): used += slot_cost(i)
            head = False
            out.append(i)
        while True:
            act = [k for k, (a, b, l) in enumerate(sides) if a <= g < b and pos[k] < len(l)
                   and (after[k] is None or pos[after[k]] == len(sides[after[k]][2]))
                   and (not paced[k] or g == b - 1 or (tot0[k] - rem[k]) <= tot0[k] * (g - a + 0.5) / (b - a))]
            act = [k for k in act if sides[k][1] - 1 == g or not blocked(sides[k][2][pos[k]], g)]
            if not act: break
            must = [k for k in act if sides[k][1] - 1 == g]
            tot = sum(rem[k] / (sides[k][1] - g) for k in act)
            budget = max(cap, used_fixed_avg + tot) if False else cap
            cands = []
            for k in act:
                i = sides[k][2][pos[k]]
                c = slot_cost(i)
                free = head and (i.kind in SCAL)
                urg = rem[k] / (sides[k][1] - g) + (100 if paced[k] else 0)
                st = stall_of(out, i)
                cands.append((k, i, 0 if free else c, urg, st))
            fit = [c for c in cands if (used + c[2] + c[4] <= cap or c[2] == 0) and bused + nbytes(c[1]) <= bcap]
            if head and any(c[2] == 0 for c in fit): fit = [c for c in fit if c[2] == 0]
            nostall = [c for c in fit if c[4] == 0]
            if nostall: fit = nostall
            elif fit and not must:
                if tot < cap - 2: fit = []
            if not fit:
                if must: fit = [c for c in cands if c[0] in must]
                elif cap == cap0 and tot + 1.0 > cap and used < tot + 1.5:
                    fit = [c for c in cands if c[4] == 0] or cands
                else: break
            k, i, c, urg, st = max(fit, key=lambda c: c[3])
            note(i, g); bused += nbytes(i)
            out += flat([i]); pos[k] += 1; rem[k] -= slot_cost(i); used += c + st; head = False
            if pos[k] == len(sides[k][2]): done_at[k] = g
        loads.append(max(used - cap, (bused - bcap + 5) // 6))
        bcarry = max(min(bcap - bused, CARRY), 0)
    for k, (a, b, l) in enumerate(sides): assert pos[k] == len(l), (k, a, b)
    weave.done_at = done_at
    return out, loads

KD = """.section .rodata,"a"
.p2align 6
.amdhsa_kernel {name}
  .amdhsa_next_free_vgpr {vgpr}
  .amdhsa_next_free_sgpr {sgpr}
  .amdhsa_accum_offset {acc}
  .amdhsa_group_segment_fixed_size 0
  .amdhsa_kernarg_size 88
  .amdhsa_user_sgpr_count 2
  .amdhsa_user_sgpr_kernarg_segment_ptr 1
  .amdhsa_system_sgpr_workgroup_id_x 1
.end_amdhsa_kernel
.text
"""
def kd(name, vgpr, sgpr=102, acc=None):
    if acc is None: acc = min(256, (vgpr + 3) // 4 * 4)
    return KD.format(name=name, vgpr=vgpr, sgpr=sgpr, acc=acc)
def entry(name):
    return f".globl {name}\n.p2align 8\n.type {name},@function\n{name}:\n"
```

```python
import struct, sys
from asmgen import *
from layout import *

def np_f32(x): return struct.unpack("<I", struct.pack("<f", x))[0]
def vr(b, n): return f"v[{b}:{b+n-1}]"
def ar(b, n): return f"a[{b}:{b+n-1}]"
def sr(b, n=4): return f"s[{b}:{b+n-1}]"
def srd(p, d, base, off, size):
    if off:
        p(f"s_add_u32 s{d}, s{base}, {off}")
        p(f"s_addc_u32 s{d+1}, s{base+1}, 0")
    else:
        p(f"s_mov_b32 s{d}, s{base}")
        p(f"s_mov_b32 s{d+1}, s{base+1}")
    p(f"s_mov_b32 s{d+2}, {size}")
    p(f"s_mov_b32 s{d+3}, 0x20000")

MF = "v_mfma_f32_32x32x16_bf16"
MF8 = "v_mfma_f32_32x32x8_bf16"
MF16 = "v_mfma_f32_16x16x32_bf16"
L2E = 1.4426950408889634
OOB = 0x7ff00000
SPIN = 100000
STO = 32768
SLOT = 49184; PUP = 8224; XP = 16416
BUF = (0, 73760); BUP = 36896
SCR = 3 * SLOT; SCR_W = 3600; SROW = 112
CSX = 4 * SCR_W
TOKA = SCR + CSX + 1536
LDS_BYTES = TOKA + 64
P_X, P_WQKV, P_WPHI, P_WO, P_WG, P_WU, P_WD, P_OUT, P_DBG, P_WS = 64, 66, 68, 70, 72, 74, 76, 78, 80, 82
S_X, S_WF, S_WG, S_WU, S_HF, S_KV, S_OF, S_FL = 4, 8, 12, 16, 20, 24, 28, 32
S_W, S_MT, S_J, S_FI = 36, 37, 38, 39
S_M0X, S_M0W, S_FB, S_CG, S_NL2E, S_M0P, S_SPIN, S_TOK, S_SO, S_SO2, S_KVB, S_BT = 3, 44, 45, 50, 55, 56, 57, 58, 60, 61, 62, 63
S_WX = 66
S_WFB = 80
S_RG = 100
S_W0 = 81
STAMPS = list(range(84, 102, 2))
V_FL, V_LANE, V_W, V_H, V_SW, V_SR, V_B0, V_TRL, TR = 0, 1, 2, 3, 4, 5, 6, 7, 8
T1, T2, T3, T4 = 12, 13, 14, 15
XT, ACC, RING, RA = 16, 48, 176, 192
MV, E, SM = 80, 96, 106
KA = 48
CSA, MB, RL, SEL, CSACC, CT, EP = 224, 226, 230, 232, 236, 244, 248
V_CW, V_CR, V_A, V_Bq = 244, 245, 246, 247
CS4, XA, XD, WD, STG = 192, 208, 212, 214, 216
OPTS = {}
def stamp(i, modes=(1, 3)):
    return [I(f"s_memrealtime {sr(STAMPS[i],2)}")] if OPTS.get("time", 0) in modes else []
def st5(i):
    return [I(f"s_memtime {sr(STAMPS[i],2)}"), I("s_waitcnt lgkmcnt(0)")] if OPTS.get("time", 0) == 5 else []
def st3(i):
    return [I(f"s_memrealtime {sr(STAMPS[i],2)}"), I("s_waitcnt lgkmcnt(0)")] if OPTS.get("time", 0) == 3 else []
def xreg(tt, s):
    if tt == 0: return ar(4*s, 4)
    if s < 28: return ar(144 + 4*s, 4)
    return vr(XT + 4*(s - 28), 4)
def acc(st, tt): return (RA if st == 4 else ACC + 32*st) + 16*tt

SLOW = []
def check_tokens(q, name, loads, pairs):
    def test(lst):
        for k, v in enumerate(pairs):
            if k == 0: lst.append(f"v_cmp_eq_u64 vcc, {sr(S_TOK,2)}, {vr(v,2)}")
            else:
                lst.append(f"v_cmp_eq_u64 s[42:43], {sr(S_TOK,2)}, {vr(v,2)}")
                lst.append("s_nop 1"); lst.append("s_and_b64 vcc, vcc, s[42:43]")
        lst.append("s_nop 1"); lst.append("s_cmp_eq_u64 vcc, -1")
    items = []; test(items)
    q.b(*(items + [f"s_cbranch_scc0 L{name}_slow", f"L{name}_ok:"]))
    s = Prog()
    s(f"L{name}_slow:")
    s(f"s_mov_b32 s{S_SPIN}, 0")
    s(f"L{name}_spin:")
    s("s_sleep 2")
    for l in loads: s(l)
    s("s_waitcnt vmcnt(0)")
    s(f"s_add_u32 s{S_SPIN}, s{S_SPIN}, 1")
    items = []; test(items)
    for t in items: s(t)
    s(f"s_cbranch_scc1 L{name}_ok")
    s(f"s_cmp_lt_u32 s{S_SPIN}, {SPIN}")
    s(f"s_cbranch_scc1 L{name}_spin")
    s(f"s_branch L{name}_ok")
    SLOW.append(s)

def flag_store(q, sidx, tmpv):
    q(f"v_mov_b32 v{tmpv}, s{S_TOK}")
    q(f"v_mov_b32 v{tmpv+1}, s{S_TOK+1}")
    q(f"buffer_store_dwordx2 {vr(tmpv,2)}, v{V_FL}, {sr(S_FL)}, s{sidx} offen sc1")

def row16_allreduce(p, v):
    for r in (8, 4, 2, 1):
        p(f"v_add_f32_dpp v{v}, v{v}, v{v} row_ror:{r} row_mask:0xf bank_mask:0xf")
def half_allreduce(p, v, t):
    row16_allreduce(p, v)
    p(f"v_mov_b32 v{t}, v{v}")
    p(f"v_permlane16_swap_b32 v{v}, v{t}")
    p(f"v_add_f32 v{v}, v{v}, v{t}")
def bf16_round(p, v):
    p(f"v_cvt_pk_bf16_f32 v{v}, v{v}, v{v}")
    p(f"v_and_b32 v{v}, 0xffff0000, v{v}")

def rg_next(q):
    q.b(f"s_add_u32 s{S_RG}, s{S_RG}, 1", f"s_cmp_eq_u32 s{S_RG}, 9", f"s_cselect_b32 s{S_RG}, 0, s{S_RG}")
def ring_group(g):
    b = (g % 3) * SLOT
    q = Prog()
    q(f"s_mul_i32 s{S_SO}, s{S_RG}, 589824")
    q(f"s_add_u32 s{S_SO}, s{S_SO}, s{S_FB}")
    for h8 in range(2):
        q(f"s_add_u32 m0, s{S_M0P}, {b + h8*1024}")
        if h8: q(f"s_add_u32 s{S_SO}, s{S_SO}, 73728")
        else: q("s_nop 0")
        q(f"buffer_load_dwordx4 v{WD}, {sr(S_WG)}, s{S_SO} offen lds", tag=f"W{g}")
        q(f"s_add_u32 m0, s{S_M0P}, {b + PUP + h8*1024}")
        q(f"s_nop 0")
        q(f"buffer_load_dwordx4 v{WD}, {sr(S_WU)}, s{S_SO} offen lds", tag=f"W{g}")
    for i in range(8):
        q(f"s_add_u32 m0, s{S_M0X}, {b + XP + i*1024}")
        q(f"s_add_u32 s{S_SO}, s{S_SO}, 9216" if i else f"s_lshl_b32 s{S_SO}, s{S_RG}, 7")
        q(f"buffer_load_dwordx4 v{XD + (i & 1)}, {sr(S_X)}, s{S_SO} offen lds", tag=f"X{g}")
    rg_next(q)
    return q

def x_copy(g):
    q = Prog()
    q.wait(vm=[f"X{g}"])
    for p_ in range(4):
        if g: q(f"v_add_u32 v{XA+p_}, {SLOT if g % 3 else (-2*SLOT) & 0xffffffff}, v{XA+p_}")
        for tt in range(2):
            q(f"ds_read_b128 {xreg(tt, 4*g+p_)}, v{XA+p_} offset:{tt*4096}")
    return q

def dma_unit_group(u, g):
    b = BUF[(u + 1) & 1]
    q = Prog()
    q(f"s_mul_i32 s{S_SO}, s{S_RG}, 589824")
    q(f"s_add_u32 m0, s{S_M0W}, {b + g*4096}")
    q(f"s_add_u32 s{S_SO}, s{S_SO}, s{S_FB+u}")
    q(f"buffer_load_dwordx4 v{V_W}, {sr(S_WG)}, s{S_SO} offen lds", tag=f"U{u}")
    q(f"s_add_u32 m0, s{S_M0W}, {b + BUP + g*4096}")
    rg_next(q)
    q(f"buffer_load_dwordx4 v{V_W}, {sr(S_WU)}, s{S_SO} offen lds", tag=f"U{u}")
    return q

def dma_wf(t):
    q = Prog()
    for g in range(9):
        q(f"s_lshl_b32 s{S_SO}, s{S_RG}, 12")
        q(f"s_add_u32 m0, s{S_M0W}, {t*BUP + g*4096}")
        q(f"s_add_u32 s{S_SO}, s{S_SO}, s{S_WFB}")
        q(f"buffer_load_dwordx4 v{V_B0}, {sr(S_WF)}, s{S_SO} offen sc1 lds", tag=f"T{t}")
        rg_next(q)
    if t == 0: q(f"s_add_u32 s{S_WFB}, s{S_WFB}, 36864")
    return q

TKR = STG + 6
GA = STG + 4
TOKLD = f"buffer_load_dwordx2 {vr(TKR,2)}, v{GA+1}, s[20:23], 0 offen sc1"
FA = 112
SR_ = 224
F_VA, F_VB, F_RHO, F_HF, F_DV, F_Z = 236, 238, 240, 241, 242, 243
def prologue(p):
    L = V_LANE
    p("s_cmp_ge_u32 s2, 256")
    p("s_cbranch_scc1 LK_end")
    p.add(st5(0))
    p("s_load_dwordx8 s[64:71], s[0:1], 0")
    p("s_load_dwordx8 s[72:79], s[0:1], 40")
    p("s_load_dwordx4 s[80:83], s[0:1], 72")
    p.add(stamp(0))
    p("v_lshrrev_b32 v14, 6, v0")
    p(f"v_and_b32 v{L}, 63, v0")
    p(f"v_readfirstlane_b32 s{S_W}, v14")
    p("s_and_b32 s40, s2, 7")
    p("s_lshr_b32 s41, s2, 3")
    p("s_and_b32 s42, s40, 1")
    p("s_lshl_b32 s42, s42, 2")
    p("s_and_b32 s43, s41, 3")
    p(f"s_add_u32 s{S_MT}, s42, s43")
    p("s_lshr_b32 s42, s40, 1")
    p("s_lshl_b32 s42, s42, 3")
    p("s_lshr_b32 s43, s41, 2")
    p(f"s_add_u32 s{S_J}, s42, s43")
    p(f"s_lshl_b32 s{S_M0W}, s{S_W}, 10")
    p(f"s_lshl_b32 s{S_M0P}, s{S_W}, 11")
    p(f"s_lshl_b32 s{S_M0X}, s{S_W}, 13")
    p(f"s_lshl_b32 s{S_BT}, s{S_W}, 3")
    p(f"s_add_u32 s{S_BT}, s{S_BT}, s{S_MT}")
    p(f"s_mul_i32 s40, s{S_J}, 144")
    p(f"s_and_b32 s41, s{S_J}, 1")
    p("s_lshl_b32 s42, s41, 4")
    p("s_add_u32 s42, s42, s40")
    p("s_cmp_eq_u32 s41, 0")
    p("s_cselect_b32 s43, 128, 0")
    p("s_add_u32 s43, s43, s40")
    p(f"s_add_u32 s40, s{S_J}, 1")
    p("s_and_b32 s40, s40, 2")
    p("s_lshl_b32 s40, s40, 4")
    p(f"s_add_u32 s{S_FB}, s42, s40")
    p(f"s_lshl_b32 s{S_FB}, s{S_FB}, 1")
    p(f"v_lshrrev_b32 v17, 5, v{L}")
    p(f"v_and_b32 v19, 31, v{L}")
    p(f"s_lshl_b32 s{S_FI}, s{S_MT}, 5")
    p(f"s_add_u32 s{S_FI}, s{S_FI}, s{S_J}")
    p(f"s_lshl_b32 s{S_FI}, s{S_FI}, 3")
    p(f"s_lshl_b32 s{S_SO2}, s{S_W}, 1")
    p(f"s_add_u32 s{S_SO2}, s{S_SO2}, s{S_FI}")
    p(f"v_add_u32 v16, s{S_SO2}, v17")
    p("v_mul_u32_u24 v15, 1152, v16")
    p("v_lshl_add_u32 v15, v19, 2, v15")
    p(f"s_add_u32 s{S_RG}, s{S_MT}, s{S_J}")
    p(f"s_mul_i32 s{S_KVB}, s{S_RG}, 7282")
    p(f"s_lshr_b32 s{S_KVB}, s{S_KVB}, 16")
    p(f"s_mul_i32 s{S_KVB}, s{S_KVB}, 9")
    p(f"s_sub_u32 s{S_RG}, s{S_RG}, s{S_KVB}")
    if OPTS.get("norot"): p(f"s_mov_b32 s{S_RG}, 0")
    p(f"v_lshrrev_b32 v12, 3, v{L}")
    p(f"s_lshl_b32 s{S_SO2}, s{S_MT}, 2")
    p(f"s_add_u32 s{S_SO2}, s{S_SO2}, s{S_W}")
    p(f"s_lshl_b32 s{S_SO2}, s{S_SO2}, 6")
    p(f"v_add_u32 v13, s{S_SO2}, v12")
    p("v_mul_u32_u24 v13, 1152, v13")
    p("v_lshrrev_b32 v12, 1, v12")
    p(f"v_and_b32 v14, 7, v{L}")
    p("v_xor_b32 v12, v12, v14")
    p(f"v_lshl_add_u32 v{XD}, v12, 4, v13")
    p(f"v_xor_b32 v{XD+1}, 64, v{XD}")
    p(f"v_bfe_u32 v12, v{L}, 2, 3")
    p(f"s_lshl_b32 s{S_SO2}, s{S_W}, 4")
    p(f"v_add_u32 v12, s{S_SO2}, v12")
    p("v_mul_u32_u24 v12, 9216, v12")
    p("v_lshl_add_u32 v12, v17, 6, v12")
    p(f"v_and_b32 v13, 3, v{L}")
    p(f"v_lshl_add_u32 v{WD}, v13, 4, v12")
    p(f"v_cmp_eq_u32 vcc, 0, v{L}")
    p(f"v_mov_b32 v18, {OOB}")
    p(f"v_cndmask_b32 v{V_FL}, v18, v{L}, vcc")
    p(f"v_lshlrev_b32 v{V_B0}, 4, v{L}")
    p("s_waitcnt lgkmcnt(0)")
    p.add(st5(1))
    srd(p, S_X, P_X, 0, X_SZ)
    code_touch(p)
    for i in range(9): p(f"buffer_load_dword v{SR_+i}, v15, {sr(S_X)}, 0 offen offset:{128*i}")
    srd(p, S_WG, P_WG, 0, WG_SZ)
    srd(p, S_WU, P_WU, 0, WG_SZ)
    srd(p, 24, P_WQKV, 0, WQKV_SZ)
    p(f"v_min_u32 v20, 15, v{L}")
    p("v_lshlrev_b32 v20, 7, v20")
    p("s_lshl_b32 s46, s2, 2")
    p(f"s_add_u32 s46, s46, s{S_W}")
    p("s_lshl_b32 s46, s46, 11")
    p(f"buffer_load_dword v{EP}, v20, s[24:27], s46 offen")
    g0 = ring_group(0).l
    cut = [k for k, i in enumerate(g0) if i.kind == "dma"][OPTS.get("cut", 5)] - 2
    p.add(g0[:cut])
    srd(p, 20, P_DBG, 0, 256)
    p(f"s_or_b32 s46, s2, s{S_W}")
    p(f"s_cmp_lg_u32 s46, 0")
    p("s_cbranch_scc1 LT_skip")
    p("s_memrealtime s[46:47]")
    p("v_mov_b32 v34, 0")
    p("v_mov_b32 v35, 0")
    p("s_waitcnt lgkmcnt(0)")
    p("s_or_b32 s46, s46, 1")
    p("v_mov_b32 v32, s46")
    p("v_mov_b32 v33, s47")
    p.l.append(Raw(f"    buffer_atomic_cmpswap_x2 v[32:35], v{V_FL}, s[20:23], 0 offen sc1"))
    p("LT_skip:")
    p.add(st5(2))
    p(f"s_add_u32 s{S_FB+1}, s{S_FB}, 64")
    p("s_lshl_b32 s40, s40, 1")
    p("s_sub_u32 s40, 64, s40")
    p("s_add_u32 s40, s40, s42")
    p(f"s_lshl_b32 s{S_FB+2}, s40, 1")
    p(f"s_add_u32 s42, s42, 96")
    p(f"s_lshl_b32 s{S_FB+3}, s42, 1")
    p(f"s_lshl_b32 s{S_FB+4}, s43, 1")
    for u in range(5): p(f"s_lshl_b32 s{S_CG+u}, s{S_FB+u}, 4")
    p(f"s_mul_i32 s{S_KVB}, s{S_J}, 4608")
    srd(p, S_WF, P_WS, WF_OFF, WF_SZ)
    srd(p, 28, P_WPHI, 0, WPHI_SZ)
    srd(p, S_FL, P_WS, FL_OFF, FL_SZ + ST_SZ)
    for i in range(4):
        p(f"s_xor_b32 s{S_WX+i}, s{S_W}, {i}")
        p(f"s_lshl_b32 s{S_WX+i}, s{S_WX+i}, 10")
    p(f"s_mul_i32 s{S_WFB}, s{S_J}, 73728")
    p(f"s_add_u32 s{S_WFB}, s{S_WFB}, s{S_M0W}")
    p(f"s_cmp_eq_u32 s{S_W}, 0")
    p(f"s_cselect_b32 s{S_W0}, 0, {OOB}")
    p(f"v_bfe_u32 v12, v{L}, 2, 2")
    p(f"v_and_b32 v13, 3, v{L}")
    p("v_lshlrev_b32 v13, 3, v13")
    p("v_lshl_add_u32 v12, v12, 6, v13")
    p(f"v_bfe_u32 v13, v{L}, 4, 1")
    p(f"v_mul_u32_u24 v14, {BUP}, v13")
    p("v_add_u32 v14, v14, v12")
    p(f"v_lshl_add_u32 v{V_TRL}, v17, 9, v14")
    p(f"v_mul_u32_u24 v14, {PUP}, v13")
    p("v_add_u32 v14, v14, v12")
    p("v_lshl_add_u32 v14, v17, 10, v14")
    for i in range(4):
        p(f"s_lshl_b32 s40, s{S_WX+i}, 1")
        p(f"v_add_u32 v{TR+i}, s40, v14")
    p(f"v_bfe_u32 v12, v{L}, 1, 3")
    p("v_xor_b32 v12, v12, v17")
    p(f"s_add_u32 s41, s{S_M0X}, {XP}")
    p("v_lshl_add_u32 v14, v19, 7, s41")
    for i in range(4):
        p(f"s_lshr_b32 s40, s{S_WX+i}, 9")
        p("v_xor_b32 v15, s40, v12")
        p(f"v_lshl_add_u32 v{XA+i}, v15, 4, v14")
    p(f"v_lshrrev_b32 v12, 2, v{L}")
    p(f"s_lshl_b32 s40, s{S_W}, 4")
    p("v_add_u32 v12, s40, v12")
    p("v_mul_u32_u24 v12, 9216, v12")
    p(f"v_and_b32 v14, 3, v{L}")
    p(f"v_lshl_add_u32 v{V_W}, v14, 4, v12")
    p(f"s_lshl_b32 s40, s{S_MT}, 4")
    p(f"s_lshl_b32 s41, s{S_W}, 2")
    p("s_add_u32 s40, s40, s41")
    p("v_add_u32 v12, s40, v13")
    p("v_mul_u32_u24 v12, 147456, v12")
    p(f"v_and_b32 v14, 15, v{L}")
    p("v_lshl_add_u32 v12, v14, 4, v12")
    p(f"v_lshl_add_u32 v{V_H}, v17, 8, v12")
    p(f"s_mul_i32 s40, s{S_W}, {SCR_W}")
    p(f"s_add_u32 s40, s40, {SCR}")
    p(f"v_mul_u32_u24 v12, {SROW}, v19")
    p("v_lshl_add_u32 v12, v17, 3, v12")
    p(f"v_add_u32 v{V_SW}, s40, v12")
    p(f"v_lshrrev_b32 v12, 4, v{L}")
    p(f"v_bfe_u32 v15, v{L}, 2, 2")
    p("v_lshl_add_u32 v12, v12, 3, v15")
    p(f"v_mul_u32_u24 v12, {SROW}, v12")
    p(f"v_and_b32 v15, 3, v{L}")
    p("v_lshl_add_u32 v12, v15, 3, v12")
    p(f"v_add_u32 v{V_SR}, s40, v12")
    p(f"s_lshl_b32 s41, s{S_W}, 7")
    p(f"s_add_u32 s41, s41, {SCR}")
    p(f"v_lshl_add_u32 v{V_CW}, v{L}, 3, s41")
    p("v_lshlrev_b32 v12, 3, v14")
    p("v_lshl_add_u32 v12, v13, 2, v12")
    p(f"v_add_u32 v{V_CR}, {SCR}, v12")
    p(f"s_mov_b32 s{S_NL2E}, 0x{np_f32(-L2E):08x}")
    p(f"v_lshlrev_b32 v16, 4, v16")
    p(f"v_add_u32 v16, {STO}, v16")
    p(f"v_cmp_eq_u32 vcc, 0, v19")
    p(f"v_cndmask_b32 v{GA}, v18, v16, vcc")
    p(f"v_mov_b32 v{F_Z}, 0")
    p(f"v_mov_b32 v{F_HF}, v17")
    p("v_bfe_u32 v22, v19, 2, 1")
    p("v_lshrrev_b32 v23, 3, v19")
    p("v_and_b32 v24, 3, v19")
    p(f"v_lshl_or_b32 v{F_RHO}, v23, 2, v24")
    p("v_mul_u32_u24 v24, 9, v22")
    p(f"v_cmp_gt_u32 vcc, 9, v{F_RHO}")
    p(f"v_subrev_u32 v25, 9, v{F_RHO}")
    p(f"v_cndmask_b32 v25, v25, v{F_RHO}, vcc")
    p("v_add_u32 v25, v25, v24")
    p(f"v_cmp_gt_u32 vcc, 2, v{F_RHO}")
    p(f"v_add3_u32 v26, v{F_RHO}, v24, 7")
    p(f"v_cndmask_b32 v26, v{F_Z}, v26, vcc")
    p(f"s_add_u32 s41, s{S_M0W}, {SCR + 3*SCR_W}")
    p(f"v_lshl_add_u32 v{F_VB}, v25, 1, s41")
    p(f"v_lshl_add_u32 v{F_VB+1}, v26, 1, s41")
    p("v_and_b32 v20, 0x13, v19")
    p("v_and_b32 v21, 4, v19")
    p("v_lshl_or_b32 v20, v21, 1, v20")
    p("v_and_b32 v21, 8, v19")
    p("v_lshrrev_b32 v21, 1, v21")
    p("v_or_b32 v20, v20, v21")
    p("v_mul_u32_u24 v20, 36, v20")
    p(f"v_add_u32 v{V_A}, s40, v20")
    p(f"v_lshl_add_u32 v{V_Bq}, v17, 4, v{V_A}")
    p("v_mul_u32_u24 v27, 288, v17")
    p(f"v_add_u32 v{F_VA}, v{F_VB}, v27")
    p(f"v_add_u32 v{F_VA+1}, v{F_VB+1}, v27")
    p(f"v_subrev_u32 v25, 2, v{F_RHO}")
    p("v_add_u32 v26, v25, v24")
    p("v_cmp_gt_u32 vcc, 9, v25")
    p("v_mov_b32 v31, 255")
    p("v_cndmask_b32 v26, v31, v26, vcc")
    p("v_lshlrev_b32 v27, 3, v17")
    p(f"v_sub_u32 v{F_DV}, v26, v27")
    for i in range(3):
        for r in (1, 2, 3): p(f"v_accvgpr_write_b32 a{FA+12+4*i+r}, 0")
    p.add(st5(3))
    p.add(g0[cut:])
    X = 96; M = STG; V = 118; R = SR_
    for i in range(9):
        p(f"v_lshlrev_b32 v{X+2*i}, 16, v{R+i}")
        p(f"v_and_b32 v{X+2*i+1}, 0xffff0000, v{R+i}")
    p("v_cmp_eq_u32 vcc, v14, v13")
    p("v_mov_b32 v12, 0x3f803f80")
    for r in range(4): p(f"v_cndmask_b32 v{SEL+r}, v{F_Z}, v12, vcc")
    for r in (CSA+1, MB+1, MB+3): p(f"v_mov_b32 v{r}, 0")
    p(f"v_add_f32 v{M}, v{X}, v{X+2}")
    p(f"v_add_f32 v{M+1}, v{X+1}, v{X+3}")
    for i in range(2, 9):
        p(f"v_add_f32 v{M}, v{M}, v{X+2*i}")
        p(f"v_add_f32 v{M+1}, v{M+1}, v{X+2*i+1}")
    p(f"v_add_f32 v{M}, v{M}, v{M+1}")
    half_allreduce(p, M, M+1)
    p(f"v_mul_f32 v{M}, 0x{np_f32(1/576):08x}, v{M}")
    for i in range(18): p(f"v_sub_f32 v{X+i}, v{X+i}, v{M}")
    p(f"v_mul_f32 v{V}, v{X}, v{X}")
    p(f"v_mul_f32 v{V+1}, v{X+1}, v{X+1}")
    for i in range(1, 9):
        p(f"v_fmac_f32 v{V}, v{X+2*i}, v{X+2*i}")
        p(f"v_fmac_f32 v{V+1}, v{X+2*i+1}, v{X+2*i+1}")
    p(f"v_add_f32 v{V}, v{V}, v{V+1}")
    half_allreduce(p, V, V+1)
    p(f"v_mul_f32 v{V}, 0x{np_f32(1/576):08x}, v{V}")
    bf16_round(p, M)
    bf16_round(p, V)
    p(f"v_add_f32 v{V}, 0x{np_f32(1e-5):08x}, v{V}")
    bf16_round(p, V)
    p(f"v_sqrt_f32 v{V}, v{V}")
    bf16_round(p, V)
    p(f"v_rcp_f32 v{M+1}, v{V}")
    p.add(st5(4))
    p(f"s_cmp_ge_u32 s{S_BT}, 18")
    p("s_cbranch_scc1 LP_nofl")
    p(f"s_add_u32 m0, s{S_M0W}, {SCR + 3*SCR_W}")
    p(f"s_mul_i32 s{S_SO}, s{S_J}, 648")
    p.l.append(Raw(f"    buffer_load_dwordx4 v{V_B0}, s[28:31], s{S_SO} offen lds"))
    p(f"v_mul_u32_u24 v20, 7282, v{L}")
    p("v_lshrrev_b32 v20, 16, v20")
    p("v_mul_u32_u24 v21, 9, v20")
    p(f"v_sub_u32 v21, v{L}, v21")
    p("v_mul_u32_u24 v20, 3456, v20")
    p("v_lshl_add_u32 v20, v21, 2, v20")
    p(f"s_mul_i32 s{S_SO}, s{S_BT}, {32*3456}")
    p(f"s_mul_i32 s41, s{S_J}, 36")
    p(f"s_add_u32 s{S_SO}, s{S_SO}, s41")
    for mat in range(3):
        for i in range(5):
            p(f"s_add_u32 m0, s40, {mat*1152 + i*252}")
            p(f"s_add_u32 s41, s{S_SO}, {mat*1152 + i*7*3456}")
            p.l.append(Raw(f"    buffer_load_dword v20, s[24:27], s41 offen lds"))
    p("LP_nofl:")
    p.add(st5(5))
    p(f"v_mov_b32 v{GA+1}, s{S_W0}")
    srd(p, S_KV, P_WS, KV_OFF, KV_SZ)
    srd(p, S_OF, P_WS, OF_OFF, OF_SZ)
    if OPTS.get("g1pre", 1): p.add(ring_group(1))
    p.add(st5(6))
    p.add(stamp(4, (1,)))

def fold_stream():
    q = Prog()
    B0, B1, D, O = XT, XT + 8, XT + 16, EP
    q.wait(vm=["W1"])
    for mat in range(3):
        q(f"v_add_u32 v{D}, {mat*1152}, v{V_Bq}")
        q(f"ds_read2_b32 {ar(FA+4*mat,2)}, v{D} offset0:0 offset1:1")
        q(f"ds_read2_b32 {ar(FA+4*mat+2,2)}, v{D} offset0:2 offset1:3")
        q(f"ds_read_b32 a{FA+12+4*mat}, v{V_A} offset:{mat*1152+32}")
    q(f"s_lshl_b32 s41, s{S_BT}, 11")
    q(f"s_add_u32 s41, s{S_WFB}, s41")
    q(f"s_sub_u32 s41, s41, s{S_M0W}")
    q(f"s_lshl_b32 s43, s{S_BT}, 8")
    q(f"s_add_u32 s43, s43, s{S_KVB}")
    q.b(f"s_cmp_lt_u32 s{S_BT}, 18", f"s_cselect_b32 s41, s41, {OOB}", f"s_cselect_b32 s43, s43, {OOB}")
    q("s_add_u32 s42, s41, 36864")
    for b in (B0, B1):
        for r in (5, 6, 7): q(f"v_mov_b32 v{b+r}, 0")
    for t in range(2):
        for e in range(8): q(f"ds_read_u16 v{D+e}, v{F_VA+t} offset:{e*36}")
        q(f"ds_read_u16 v{D+8}, v{F_VB+t} offset:{16*36}")
        q(f"ds_read_u16 v{D+9}, v{F_VB+t} offset:{17*36}")
        if t == 1:
            q(f"v_mov_b32 v{D+10}, 0x3f80")
            for r, sub in enumerate((0, 2, 4, 6, 16)):
                q(f"v_subrev_u32 v{D+11}, {sub}, v{F_DV}")
                q(f"v_lshlrev_b32 v{D+12}, 4, v{D+11}")
                q(f"v_cmp_gt_u32 vcc, 2, v{D+11}")
                q(f"v_lshlrev_b32 v{D+12}, v{D+12}, v{D+10}")
                q(f"v_cndmask_b32 v{B1+r}, v{F_Z}, v{D+12}, vcc")
        q(f"v_cmp_eq_u32 vcc, 0, v{F_HF}")
        for r in range(5): q(f"v_lshl_or_b32 v{D+r}, v{D+2*r+1}, 16, v{D+2*r}")
        q(f"v_cndmask_b32 v{D+4}, v{F_Z}, v{D+4}, vcc")
        q(f"v_cmp_gt_u32 vcc, {9 if t == 0 else 2}, v{F_RHO}")
        q("s_nop 0")
        for r in range(5): q(f"v_cndmask_b32 v{B0+r}, v{F_Z}, v{D+r}, vcc")
        if t == 0:
            for r in range(5): q(f"v_cndmask_b32 v{B1+r}, v{D+r}, v{F_Z}, vcc")
        a0 = FA + 4*t
        q(f"{MF} {vr(D,16)}, {ar(a0,4)}, {vr(B0,4)}, 0")
        q(f"{MF} {vr(D,16)}, {ar(a0+12,4)}, {vr(B0+4,4)}, {vr(D,16)}")
        q(f"{MF} {vr(D,16)}, {ar(a0+4,4)}, {vr(B1,4)}, {vr(D,16)}")
        q(f"{MF} {vr(D,16)}, {ar(a0+16,4)}, {vr(B1+4,4)}, {vr(D,16)}")
        for r in range(8): q(f"v_cvt_pk_bf16_f32 v{O+r}, v{D+2*r}, v{D+2*r+1}")
        for jj in range(2):
            q(f"buffer_store_dwordx4 {vr(O+4*jj,4)}, v{V_B0}, {sr(S_WF)}, s{41+t} offen offset:{1024*jj} sc1", tag="fold")
    q(f"v_cmp_gt_u32 vcc, 16, v{V_LANE}")
    q(f"v_mov_b32 v{D}, {OOB}")
    q(f"v_mov_b32 v{B0+4}, 0")
    q(f"v_cndmask_b32 v{D}, v{D}, v{V_B0}, vcc")
    q(f"buffer_store_dwordx4 {vr(B0+4,4)}, v{D}, {sr(S_KV)}, s43 offen sc1", tag="fold")
    return q

def code_touch(q):
    L = V_LANE
    q("s_getpc_b64 s[46:47]")
    q("LT_pc:")
    q("s_lshr_b32 s48, s2, 3")
    q("s_lshl_b32 s48, s48, 2")
    q(f"s_add_u32 s48, s48, s{S_W}")
    q("s_cmp_gt_u32 s48, 7")
    q("s_cbranch_scc1 LT_nocode")
    q("s_lshl_b32 s48, s48, 13")
    q(f"v_lshlrev_b32 v21, 7, v{L}")
    q(f"v_add_u32 v21, s48, v21")
    q(f"v_min_u32 v21, LK_end-LT_pc-4, v21")
    q.l.append(Raw(f"    global_load_dword v{EP+7}, v21, s[46:47]"))
    q("LT_nocode:")

def late_touch():
    q = Prog()
    L = V_LANE
    q(f"v_mul_u32_u24 v{T3}, 21846, v{L}")
    q(f"v_lshrrev_b32 v{T3}, 16, v{T3}")
    q(f"v_mul_u32_u24 v{T4}, 3, v{T3}")
    q(f"v_sub_u32 v{T4}, v{L}, v{T4}")
    q(f"v_mul_u32_u24 v{T3}, 9216, v{T3}")
    q(f"v_lshl_add_u32 v{T3}, v{T4}, 7, v{T3}")
    q(f"s_mul_i32 s41, s{S_J}, 288")
    q("s_and_b32 s41, s41, 0xffffff80")
    q(f"s_mul_i32 s42, s{S_BT}, {18*9216}")
    q("s_add_u32 s41, s41, s42")
    q(f"buffer_load_dword v{V_A}, v{T3}, {sr(S_WG)}, s41 offen")
    q(f"buffer_load_dword v{V_Bq}, v{T3}, {sr(S_WU)}, s41 offen")
    return q

def token_issue():
    q = Prog(); q(TOKLD); return q
def token_share():
    q = Prog()
    q(f"s_lshl_b32 s40, s{S_W}, 3")
    q(f"s_add_u32 s40, s40, {TOKA}")
    q(f"v_mov_b32 v{T1}, s40")
    q.b(f"v_readfirstlane_b32 s40, v{TKR}", f"s_or_b32 s40, s40, s{S_W}", "s_cbranch_scc0 LT_slow", "LT_ok:")
    s = Prog()
    s("LT_slow:"); s(f"s_mov_b32 s{S_SPIN}, 0"); s("LT_spin:"); s("s_sleep 2"); s(TOKLD); s("s_waitcnt vmcnt(0)")
    s(f"v_readfirstlane_b32 s40, v{TKR}"); s(f"s_add_u32 s{S_SPIN}, s{S_SPIN}, 1"); s("s_cmp_lg_u32 s40, 0"); s("s_cbranch_scc1 LT_ok")
    s(f"s_cmp_lt_u32 s{S_SPIN}, {SPIN}"); s("s_cbranch_scc1 LT_spin"); s("s_branch LT_ok")
    SLOW.append(s)
    q(f"ds_write_b64 v{T1}, {vr(TKR,2)}")
    return q
def token_and_stats():
    q = Prog()
    q(f"v_mov_b32 v{T1}, {TOKA}")
    q(f"ds_read_b64 {vr(TKR,2)}, v{T1}")
    q(f"v_readfirstlane_b32 s{S_TOK}, v{TKR}")
    q(f"v_readfirstlane_b32 s{S_TOK+1}, v{TKR+1}")
    q(f"v_mov_b32 v{STG+2}, v{TKR}")
    q(f"v_mov_b32 v{STG+3}, v{TKR+1}")
    q(f"buffer_store_dwordx4 {vr(STG,4)}, v{GA}, {sr(S_FL)}, 0 offen sc1")
    q.b(f"s_add_u32 s{S_HF}, s{P_WS}, {HF_OFF}", f"s_addc_u32 s{S_HF+1}, s{P_WS+1}, 0")
    q(f"s_mov_b32 s{S_HF+2}, {HF_SZ}")
    return q

def fold_flag():
    q = Prog()
    q(f"s_lshl_b32 s40, s{S_J}, 5")
    q(f"s_add_u32 s40, s40, s{S_BT}")
    q("s_lshl_b32 s40, s40, 3")
    q.wait(vm=["fold"])
    flag_store(q, 40, T1)
    return q

def st_loads():
    return [f"buffer_load_dwordx4 {vr(STG+4*tt,4)}, v{T3}, {sr(S_FL)}, 0 offen offset:{512*tt} sc1" for tt in range(2)]
def fw_load(): return f"buffer_load_dwordx2 {vr(T1,2)}, v{T4}, {sr(S_FL)}, 0 offen sc1"
def handoff_issue():
    q = Prog()
    q(f"s_lshl_b32 s40, s{S_MT}, 2")
    q(f"s_add_u32 s40, s40, s{S_W}")
    q("s_lshl_b32 s40, s40, 10")
    q(f"s_add_u32 s40, s40, {STO}")
    q(f"v_and_b32 v{T3}, 31, v{V_LANE}")
    q(f"v_lshl_add_u32 v{T3}, v{T3}, 4, s40")
    q(f"s_lshl_b32 s40, s{S_J}, 8")
    q(f"v_min_u32 v{T4}, 17, v{V_LANE}")
    q(f"v_lshl_add_u32 v{T4}, v{T4}, 3, s40")
    q(fw_load())
    for l in st_loads(): q(l)
    return q
def fw_check():
    q = Prog(); check_tokens(q, "W", [fw_load()], [T1]); return q
def st_check():
    q = Prog()
    check_tokens(q, "S", st_loads(), [STG+2, STG+6])
    q(f"v_cmp_gt_u32 vcc, 32, v{V_LANE}")
    for tt in range(2):
        q(f"v_cvt_pk_bf16_f32 v{STG+4*tt}, -v{STG+4*tt}, -v{STG+4*tt}")
        q(f"v_mul_f32 v{RL+tt}, s{S_NL2E}, v{STG+4*tt+1}")
    for tt in range(2): q(f"v_cndmask_b32 v{MB+2*tt}, v{CSA+1}, v{STG+4*tt}, vcc")
    return q

def cs_write(reg, area, dist=False):
    q = Prog()
    a = V_CW
    if dist:
        q(f"s_mul_i32 s40, s{S_W}, {SCR_W - 128}")
        q(f"v_add_u32 v{V_Bq}, s40, v{V_CW}")
        a = V_Bq
    if OPTS.get("nofix"): q("s_nop 0")
    else: q.b("s_mov_b64 exec, 0xffff", f"ds_write_b64 v{a}, {vr(reg,2)} offset:{area}", "s_mov_b64 exec, -1", tag="csw")
    return q

def mean_fix(q, st, area, stride=128):
    if OPTS.get("nofix"):
        q("s_nop 0"); return
    t = EP
    for w in range(4): q(f"ds_read_b32 v{t+w}, v{V_CR} offset:{area + w*stride}")
    q(f"v_add_f32 v{t}, v{t}, v{t+1}")
    q(f"v_add_f32 v{t+2}, v{t+2}, v{t+3}")
    q(f"v_add_f32 v{t}, v{t}, v{t+2}")
    q(f"v_cvt_pk_bf16_f32 v{t+1}, v{t}, v{t}")
    q(f"v_lshlrev_b32 v{t+1}, 16, v{t+1}")
    q(f"v_sub_f32 v{t+1}, v{t}, v{t+1}")
    q(f"v_cvt_pk_bf16_f32 v{CSA}, v{t}, v{t+1}")
    for tt in range(2):
        q(f"{MF8} {vr(acc(st,tt),16)}, {vr(CSA,2)}, {vr(MB+2*tt,2)}, {vr(acc(st,tt),16)}")

def ffn_epi(st, c, q=None):
    q = q or Prog()
    u, xy = c // 2, c & 1
    for tt in range(2):
        a = acc(st, tt)
        for r in range(8): q(f"v_mul_f32 v{EP+r}, {'s55' if OPTS.get('sgp') else 'v%d' % (RL+tt)}, v{a+r}")
        for r in range(8): q(f"v_exp_f32 v{EP+r}, v{EP+r}")
        for r in range(8): q(f"v_mul_f32 v{a+r}, v{a+r}, v{a+8+r}")
        for r in range(8): q(f"v_add_f32 v{EP+r}, 1.0, v{EP+r}")
        for r in range(8): q(f"v_rcp_f32 v{EP+r}, v{EP+r}")
        q(f"s_add_u32 s{S_SO2}, s{S_CG+u}, {xy*512 + tt*294912}")
        for r in range(8): q(f"v_mul_f32 v{a+r}, v{a+r}, v{EP+r}")
        for r in range(4): q(f"v_cvt_pk_bf16_f32 v{a+8+r}, v{a+2*r}, v{a+2*r+1}")
        if OPTS.get("nost"): q("s_nop 0")
        else: q(f"buffer_store_dwordx4 {vr(a+8,4)}, v{V_H}, {sr(S_HF)}, s{S_SO2} offen {OPTS.get('hst', 'sc1')}", tag=f"h{c}")
    return q

def softmax2(q, src, outs, rl):
    m, n, t, c1, c2, t2 = SM, SM+1, SM+2, SM+3, SM+4, SM+5
    q(f"v_max3_f32 v{m}, v{src[0]}, v{src[1]}, v{src[2]}")
    q(f"v_max3_f32 v{n}, -v{src[0]}, -v{src[1]}, -v{src[2]}")
    q(f"v_max3_f32 v{c1}, v{src[3]}, v{src[4]}, v{src[5]}")
    q(f"v_max3_f32 v{c2}, -v{src[3]}, -v{src[4]}, -v{src[5]}")
    q(f"v_max3_f32 v{t}, v{src[6]}, v{src[7]}, v{src[8]}")
    q(f"v_max3_f32 v{t2}, -v{src[6]}, -v{src[7]}, -v{src[8]}")
    q(f"v_max3_f32 v{m}, v{m}, v{c1}, v{t}")
    q(f"v_max3_f32 v{n}, v{n}, v{c2}, v{t2}")
    q(f"v_permlane32_swap_b32 v{m}, v{n}")
    q(f"v_max_f32 v{m}, v{m}, v{n}")
    q(f"v_mul_f32 v{m}, v{rl}, v{m}")
    q(f"v_mov_b32 v{n}, v{m}")
    q(f"v_permlane32_swap_b32 v{m}, v{n}")
    for i in range(9): q(f"v_fma_f32 v{E+i}, v{src[i]}, v{rl}, v{n}")
    for i in range(9): q(f"v_fma_f32 v{src[i]}, -v{src[i]}, v{rl}, v{m}")
    for i in range(9): q(f"v_exp_f32 v{E+i}, v{E+i}")
    for i in range(9): q(f"v_exp_f32 v{src[i]}, v{src[i]}")
    q(f"v_add_f32 v{n}, v{E}, v{E+1}")
    q(f"v_add_f32 v{c2}, v{E+2}, v{E+3}")
    q(f"v_add_f32 v{m}, v{src[0]}, v{src[1]}")
    q(f"v_add_f32 v{c1}, v{src[2]}, v{src[3]}")
    for i in (4, 6):
        q(f"v_add_f32 v{n}, v{n}, v{E+i}")
        q(f"v_add_f32 v{c2}, v{c2}, v{E+i+1}")
        q(f"v_add_f32 v{m}, v{m}, v{src[i]}")
        q(f"v_add_f32 v{c1}, v{c1}, v{src[i+1]}")
    q(f"v_add_f32 v{n}, v{n}, v{E+8}")
    q(f"v_add_f32 v{m}, v{m}, v{src[8]}")
    q(f"v_add_f32 v{n}, v{n}, v{c2}")
    q(f"v_add_f32 v{m}, v{m}, v{c1}")
    q(f"v_permlane32_swap_b32 v{m}, v{n}")
    q(f"v_add_f32 v{m}, v{m}, v{n}")
    q(f"v_rcp_f32 v{m}, v{m}")
    q(f"v_mov_b32 v{n}, v{m}")
    q(f"v_permlane32_swap_b32 v{m}, v{n}")
    for i in range(9): q(f"v_mul_f32 v{src[i]}, v{src[i]}, v{m}")
    for i in range(9): q(f"v_mul_f32 v{E+i}, v{E+i}, v{n}")
    allv = list(src) + [E + i for i in range(9)]
    for i in range(9): q(f"v_cvt_pk_bf16_f32 v{outs[i]}, v{allv[2*i]}, v{allv[2*i+1]}")

def moves_a2(q):
    for tt in range(2): q(f"v_mul_f32 v{SM+tt}, 0x{np_f32(-1/L2E):08x}, v{RL+tt}")
    for tt in range(2):
        a = acc(0, tt); m = MV + 8*tt
        q(f"v_mov_b32 v{m+6}, v{a}")
        q(f"v_mov_b32 v{m+7}, v{a+1}")
        for r in range(9): q(f"v_mul_f32 v{a+2+r}, v{a+2+r}, v{SM+tt}")
        for r in range(4): q(f"v_cvt_pk_bf16_f32 v{m+r}, v{a+2+2*r}, v{a+3+2*r}")
        q(f"v_cvt_pk_bf16_f32 v{m+4}, v{a+10}, 1.0")

PA = KA + 24
def k_part(q):
    KF = E
    for tt in range(2):
        a = acc(4, tt); m = MV + 8*tt
        src = [a+9+i for i in range(7)] + [m+6, m+7]
        outs = [a+10, a+11, a+12, a+13, a+14, a+15, E, E+1, m+5]
        softmax2(q, src, outs, RL+tt)
        for off, r in ((0, a+10), (16, a+12), (32, a+14), (48, E), (64, m), (80, m+2), (96, m+4)):
            q(f"ds_write_b64 v{V_SW}, {vr(r,2)} offset:{off}")
        for f, cb in enumerate((0, 16, 32, 48)):
            for sec in range(2):
                q(f"ds_read_b64_tr_b16 {vr(KF+4*f+2*sec,2)}, v{V_SR} offset:{sec*4*SROW + cb*2}")
        part_addr(q, tt)
        for rt, fa in enumerate((0, 1, 3)):
            for ct, fb in enumerate((2, 3)):
                d = KA + 4*(2*rt + ct)
                q(f"{MF16} {vr(d,4)}, {vr(KF+4*fa,4)}, {vr(KF+4*fb,4)}, {vr(d,4) if tt else '0'}")
    A1, A2, A4, A5 = PA, PA+1, PA+2, PA+3
    q(f"ds_write_b128 v{A1}, {vr(KA,4)}")
    q(f"ds_write_b128 v{A1}, {vr(KA+8,4)} offset:1024")
    q.b("s_mov_b32 exec_lo, 0xff00ff", "s_mov_b32 exec_hi, 0xff00ff", f"ds_write_b128 v{A2}, {vr(KA+4,4)} offset:2048",
        f"ds_write_b128 v{A2}, {vr(KA+12,4)} offset:2560", "s_mov_b32 exec_hi, 0", f"ds_write_b64 v{A5}, {vr(KA+22,2)} offset:3328",
        "s_mov_b32 exec_lo, -1", f"ds_write_b64 v{A4}, {vr(KA+18,2)} offset:3072", "s_mov_b32 exec_hi, -1")

def part_addr(q, half):
    L = V_LANE; A1, A2, A4, A5 = PA, PA+1, PA+2, PA+3
    if half == 0:
        q(f"s_mul_i32 s40, s{S_W}, {SCR_W}")
        q(f"s_add_u32 s40, s40, {SCR}")
        q(f"v_lshl_add_u32 v{A1}, v{L}, 4, s40")
        q(f"v_lshrrev_b32 v{V_A}, 4, v{L}")
        q(f"v_and_b32 v{V_Bq}, 15, v{L}")
        q(f"v_lshl_add_u32 v{V_A}, v{V_A}, 3, v{V_Bq}")
        q(f"v_lshl_add_u32 v{A2}, v{V_A}, 4, s40")
        q(f"v_lshl_add_u32 v{A4}, v{L}, 3, s40")
        q(f"v_lshl_add_u32 v{A5}, v{V_A}, 3, s40")

def kv_reduce():
    q = Prog()
    L = V_LANE; A1, A2, G1_, G2_ = T1, T2, T3, T4
    T = MV
    q(f"s_and_b32 s40, s{S_W}, 1")
    q(f"s_lshr_b32 s41, s{S_W}, 1")
    q.b("s_cmp_eq_u32 s41, 0", "s_cselect_b64 vcc, -1, 0")
    q(f"v_cndmask_b32 v{A1}, v{V_A}, v{L}, vcc")
    q("s_lshl_b32 s42, s40, 10")
    q("s_lshl_b32 s43, s40, 9")
    q("s_add_u32 s43, s43, 2048")
    q.b("s_cmp_eq_u32 s41, 0", "s_cselect_b32 s42, s42, s43")
    q(f"s_add_u32 s42, s42, {SCR}")
    q(f"v_lshl_add_u32 v{A1}, v{A1}, 4, s42")
    for w in range(4): q(f"ds_read_b128 {vr(T+4*w,4)}, v{A1} offset:{w*SCR_W}")
    q.b("s_cmp_eq_u32 s40, 0", "s_cselect_b64 vcc, -1, 0")
    q(f"v_cndmask_b32 v{A2}, v{V_A}, v{L}, vcc")
    q("s_lshl_b32 s42, s40, 8")
    q(f"s_add_u32 s42, s42, {SCR+3072}")
    q(f"v_lshl_add_u32 v{A2}, v{A2}, 3, s42")
    U = (RA+12, RA+14, RA+28, RA+30)
    for w in range(4): q(f"ds_read_b64 {vr(U[w],2)}, v{A2} offset:{w*SCR_W}")
    q(f"v_lshrrev_b32 v{G1_}, 5, v{L}")
    q(f"v_lshlrev_b32 v{G1_}, 10, v{G1_}")
    q(f"v_bfe_u32 v{G2_}, v{L}, 4, 1")
    q(f"v_lshlrev_b32 v{G2_}, 7, v{G2_}")
    q(f"v_lshl_add_u32 v{G2_}, v{V_Bq}, 2, v{G2_}")
    q("s_lshl_b32 s42, s40, 11")
    q("s_lshl_b32 s43, s41, 6")
    q("s_add_u32 s42, s42, s43")
    q(f"v_add3_u32 v{G1_}, v{G1_}, v{G2_}, s42")
    q("s_lshl_b32 s43, s41, 3")
    q("s_sub_u32 s43, 16, s43")
    q(f"v_cmp_gt_u32 vcc, s43, v{V_Bq}")
    q(f"v_mov_b32 v{A1}, {OOB}")
    q(f"v_cndmask_b32 v{G1_}, v{A1}, v{G1_}, vcc")
    q("s_lshl_b32 s42, s40, 6")
    q("s_add_u32 s42, s42, 4096")
    q(f"v_add_u32 v{G2_}, s42, v{G2_}")
    q("s_lshl_b32 s43, s40, 3")
    q("s_sub_u32 s43, 16, s43")
    q.b("s_cmp_eq_u32 s41, 0", "s_cselect_b32 s43, s43, 0")
    q(f"v_cmp_gt_u32 vcc, s43, v{V_Bq}")
    q(f"v_cmp_gt_u32 s[42:43], 32, v{L}")
    q("s_and_b64 vcc, vcc, s[42:43]")
    q(f"v_cndmask_b32 v{G2_}, v{A1}, v{G2_}, vcc")
    for i in range(4):
        q(f"v_add_f32 v{T+i}, v{T+i}, v{T+4+i}")
        q(f"v_add_f32 v{T+8+i}, v{T+8+i}, v{T+12+i}")
    for i in range(2):
        q(f"v_add_f32 v{U[0]+i}, v{U[0]+i}, v{U[1]+i}")
        q(f"v_add_f32 v{U[2]+i}, v{U[2]+i}, v{U[3]+i}")
    for i in range(4): q(f"v_add_f32 v{T+i}, v{T+i}, v{T+8+i}")
    for i in range(2): q(f"v_add_f32 v{U[0]+i}, v{U[0]+i}, v{U[2]+i}")
    for i in range(4):
        q(f"buffer_atomic_add_f32 v{T+i}, v{G1_}, {sr(S_KV)}, s{S_KVB} offen offset:{i*256}", tag="atom")
    for i in range(2):
        q(f"buffer_atomic_add_f32 v{U[0]+i}, v{G2_}, {sr(S_KV)}, s{S_KVB} offen offset:{i*256}", tag="atom")
    return q

def fk_publish():
    q = Prog()
    q(f"s_lshl_b32 s40, s{S_J}, 5")
    q(f"s_add_u32 s40, s40, s{S_BT}")
    q("s_lshl_b32 s40, s40, 3")
    q(f"s_add_u32 s40, s40, {FL_K}")
    q.wait(vm=["atom"])
    flag_store(q, 40, T1)
    q(f"s_lshl_b32 s40, s{S_J}, 8")
    q(f"s_add_u32 s40, s40, {FL_K}")
    q(f"v_and_b32 v{T3}, 31, v{V_LANE}")
    q(f"v_lshl_add_u32 v{T3}, v{T3}, 3, s40")
    q(f"v_lshlrev_b32 v{T4}, 2, v{V_LANE}")
    return q
def fk_load(): return f"buffer_load_dwordx2 {vr(T1,2)}, v{T3}, {sr(S_FL)}, 0 offen sc1"
KVL = MV; KVF = 100
def fk_check_and_load():
    q = Prog()
    check_tokens(q, "K", [fk_load()], [T1])
    q(f"s_add_u32 s40, s{S_KVB}, 4096")
    for s in range(18):
        so = f"s{S_KVB}" if s < 16 else "s40"
        q(f"buffer_load_dword v{KVL+s}, v{T4}, {sr(S_KV)}, {so} offen offset:{(s&15)*256} sc1")
    return q

def q_part():
    q = Prog()
    for tt in range(2):
        a = acc(4, tt)
        softmax2(q, [a+i for i in range(9)], [a+i for i in range(9)], RL+tt)
        for r in (9, 10, 11): q(f"v_mov_b32 v{a+r}, 0")
    return q

def o_finish():
    q = Prog()
    for i in range(9): q(f"v_cvt_pk_bf16_f32 v{KVF+i}, v{KVL+2*i}, v{KVL+2*i+1}")
    for r in (9, 10, 11): q(f"v_mov_b32 v{KVF+r}, 0")
    D_ = (acc(0, 0), acc(0, 1))
    q(f"s_lshl_b32 s40, s{S_MT}, 3")
    q(f"s_lshl_b32 s41, s{S_W}, 1")
    q("s_add_u32 s40, s40, s41")
    q("s_mul_i32 s40, s40, 40960")
    q(f"s_mul_i32 s41, s{S_J}, 1280")
    q("s_add_u32 s40, s40, s41")
    q("s_add_u32 s41, s40, 40960")
    for f in range(3):
        for tt in range(2):
            q(f"{MF} {vr(D_[tt],16)}, {vr(KVF+4*f,4)}, {vr(acc(4,tt)+4*f,4)}, {vr(D_[tt],16) if f else '0'}")
    for tt in range(2):
        d = D_[tt]
        q(f"v_add_f32 v{d+12}, 0x{np_f32(1e-6):08x}, v{d+9}")
        q(f"v_rcp_f32 v{d+12}, v{d+12}")
    for tt in range(2):
        d = D_[tt]
        for r in range(9): q(f"v_mul_f32 v{d+r}, v{d+r}, v{d+12}")
        for r in range(4): q(f"v_cvt_pk_bf16_f32 v{d+r}, v{d+2*r}, v{d+2*r+1}")
        q(f"v_cvt_pk_bf16_f32 v{d+4}, v{d+8}, 0")
        for r in range(5): q(f"buffer_store_dword v{d+r}, v{T4}, {sr(S_OF)}, s{40+tt} offen offset:{r*256} sc1")
    return q

def wd_prefetch(half):
    q = Prog()
    if half:
        q(f"v_add_u32 v{V_B0}, 4096, v{V_B0}")
        q(f"buffer_load_dword v{T2}, v{V_B0}, {sr(S_X)}, s{S_WFB} offen")
        return q
    q("s_lshl_b32 s40, s2, 2")
    q(f"s_add_u32 s40, s40, s{S_W}")
    q.b("s_cmp_lt_u32 s40, 648", f"s_cselect_b32 s{S_X}, s{P_WD}, s{P_WO}", f"s_cselect_b32 s{S_X+1}, s{P_WD+1}, s{P_WO+1}",
        f"s_cselect_b32 s41, 0, 648")
    q.b("s_cmp_lt_u32 s40, 648", f"s_mov_b32 s42, {WOIN_SZ}", f"s_cselect_b32 s{S_X+2}, {WG_SZ}, s42")
    q("s_sub_u32 s40, s40, s41")
    q(f"s_lshl_b32 s{S_WFB}, s40, 13")
    q(f"v_and_b32 v{V_B0}, 31, v{V_LANE}")
    q(f"v_lshlrev_b32 v{V_B0}, 7, v{V_B0}")
    q(f"buffer_load_dword v{T1}, v{V_B0}, {sr(S_X)}, s{S_WFB} offen")
    return q

def wg_flag(arr, tmp):
    q = Prog()
    q(f"s_add_u32 s40, s{S_FI}, s{S_W0}")
    q(f"s_add_u32 s40, s40, {arr}")
    flag_store(q, 40, tmp)
    return q

BFA = V_A
def b_decode():
    q = Prog()
    q("s_and_b32 s40, s2, 7")
    q("s_lshr_b32 s41, s2, 3")
    q("s_mul_i32 s42, s40, 29")
    q("s_min_u32 s43, s40, 2")
    q("s_add_u32 s42, s42, s43")
    q(f"s_add_u32 s{S_BT}, s42, s41")
    q.b("s_cmp_lt_u32 s40, 2", "s_cselect_b32 s43, 30, 29")
    q.b("s_cmp_lt_u32 s41, s43", f"s_cselect_b32 s{S_BT}, s{S_BT}, 255")
    q(f"s_mul_i32 s40, s{S_BT}, 7282")
    q("s_lshr_b32 s40, s40, 16")
    q("s_mul_i32 s40, s40, 80")
    q("s_add_u32 s41, s40, 79")
    q("s_min_u32 s40, s40, 2047")
    q("s_min_u32 s41, s41, 2047")
    q("s_and_b32 s40, s40, 0xf00")
    q("s_and_b32 s41, s41, 0xf00")
    q("s_sub_u32 s41, s41, 256")
    q(f"v_mov_b32 v{BFA}, s40")
    q(f"v_mov_b32 v{V_Bq}, s41")
    q(f"v_cmp_gt_u32 vcc, 32, v{V_LANE}")
    q(f"v_cndmask_b32 v{BFA}, v{V_Bq}, v{BFA}, vcc")
    q(f"v_lshl_add_u32 v{BFA}, v{V_LANE}, 3, v{BFA}")
    q(f"v_add_u32 v{BFA}, {FL_1}, v{BFA}")
    q(f"buffer_load_dwordx2 {vr(T1,2)}, v{BFA}, {sr(S_FL)}, 0 offen sc1")
    q.b("s_getpc_b64 s[42:43]", "LB_pc:")
    q(f"s_mul_i32 s40, s{S_W}, 36")
    q.l.append(Sized("s_add_u32 s40, s40, LK_tab-LB_pc", 8))
    q(f"v_min_u32 v{V_Bq}, 35, v{V_LANE}")
    q(f"v_add_u32 v{V_Bq}, s40, v{V_Bq}")
    q(f"global_load_ubyte v{V_Bq}, v{V_Bq}, s[42:43]")
    return q

def stage_a(p):
    frags = []
    def tr(p_, off): return [("ds_read_b64_tr_b16", 0, 2, TR + p_, off), ("ds_read_b64_tr_b16", 2, 2, TR + p_, off + 256)]
    for g in range(9):
        for p_ in range(4):
            for c in range(4):
                upd = []
                if g and c == 0: upd = [f"v_add_u32 v{TR+p_}, {SLOT if g % 3 else (-2*SLOT) & 0xffffffff}, v{TR+p_}"]
                frags.append((tr(p_, (c >> 1)*512 + (c & 1)*32), c, 4*g + p_, CS4 + 4*c if p_ == 0 else None, upd))
    chains = ["A1", "A2", 4, 5, 6, 7, 8]
    cset = {"A1": 4, "A2": 0, 4: 2, 5: 3, 6: 0, 7: 2, 8: 3}
    cs = {}
    for k, c in enumerate(chains):
        cs[c] = len(frags)
        for s in range(36):
            g, p_ = s >> 2, s & 3
            upd = []
            if c in ("A1", "A2"):
                if s < 4: upd = [f"s_add_u32 s{S_SPIN}, s{S_WX+p_}, {0 if c == 'A1' else BUP}", f"v_add_u32 v{TR+p_}, s{S_SPIN}, v{V_B0}"]
                rd = [("ds_read_b128", 0, 4, TR + p_, g*4096)]
            else:
                if s < 4 and not (c & 1): upd = [f"s_add_u32 s{S_SPIN}, s{S_WX+p_}, {BUF[(c//2 + 1) & 1]}", f"v_add_u32 v{TR+p_}, s{S_SPIN}, v{V_TRL}"]
                rd = tr(p_, g*4096 + (c & 1)*32)
            frags.append((rd, cset[c], s, CSACC + 4*(k & 1) if p_ == 0 else None, upd))
    NF = len(frags)
    bars = {16*g: [f"W{g}"] for g in range(9)}
    bars[cs["A1"]] = ["T0"]
    bars[cs["A2"]] = ["T1"]
    bars[cs[4]] = ["U2"]
    bars[cs[6]] = ["U3"] + [f"h{c}" for c in range(4)]
    bars[cs[8]] = ["U4", "h4", "h5"]
    def reads(n):
        slot = RING + 4*(n & 3)
        return [I(t) for t in frags[n][4]] + [I(f"{op} {vr(slot+o,cnt)}, v{va} offset:{off}", tag=f"fr{n}") for (op, o, cnt, va, off) in frags[n][0]]
    def barrier(tags): return [WaitTag(vm=tags), I("s_waitcnt lgkmcnt(0)"), I("s_barrier")]
    p.add(x_copy(0))
    p.add(barrier(bars[0]))
    p.add(stamp(1))
    p.add(st5(7))
    for n in range(4): p.add(reads(n))
    main = []; G = {}
    for n in range(NF):
        _, st, s, csa, _ = frags[n]
        G[n] = len(main)
        slot = RING + 4*(n & 3)
        mf = [I(f"{MF} {vr(acc(st,tt),16)}, {vr(slot,4)}, {xreg(tt,s)}, {vr(acc(st,tt),16) if s else '0'}") for tt in range(2)]
        f0 = barrier(bars[n + 3]) + reads(n + 3) if (n + 3 < NF and (n + 3) in bars and n + 3 >= 4) else []
        f1 = []
        if n + 1 < NF: f1.append(WaitTag(lg=[f"fr{n+1}"]))
        if n + 4 < NF and (n + 4) not in bars: f1 += reads(n + 4)
        if csa is not None and not OPTS.get("nocs"):
            main.append((I(f"{MF16} {vr(csa,4)}, {vr(SEL,4)}, {vr(slot,4)}, {vr(csa,4) if s else '0'}"), []))
        main.append((mf[0], f0)); main.append((mf[1], f1))
    G[NF] = len(main)
    C = {c: G[cs[c]] for c in cs}; C[9] = G[NF]
    def bar_gap(n): return G[n - 3] + (1 if (frags[n-3][3] is not None and not OPTS.get("nocs")) else 0)
    S = []
    def add(a, b, q, after=None, paced=False):
        S.append((a, b, q, after, paced)); return len(S) - 1
    for g in range(9):
        a, b = G[16*g], bar_gap(16*(g+1))
        q = Prog()
        if g == 0 and not OPTS.get("g1pre", 1): q.add(ring_group(1))
        if g + 2 < 9: q.add(ring_group(g + 2)); add(a, b + 5 - OPTS.get("rend", 0), q, None, OPTS.get("rpace", 1) == 1)
        if g + 1 < 9: add(b - 10, b, x_copy(g + 1))
    add(OPTS.get("f0", 12), G[42], fold_stream())
    add(G[20], G[21], token_issue())
    add(G[42], bar_gap(48), token_share())
    add(G[48], G[53], token_and_stats())
    add(G[72], G[75], fold_flag())
    add(G[16*6] + 8, G[16*6] + 16, handoff_issue())
    k = add(G[16*7], G[16*7] + 2, fw_check())
    add(G[16*7] + 2, bar_gap(16*8) - 10, dma_wf(0), None, True)
    add(G[16*8] + 14, G[16*8] + 22, st_check())
    q = Prog()
    for c in range(4): q.add(cs_write(CS4 + 4*c, 512*c))
    add(G[16*8 + 5], bar_gap(cs["A1"]), q)
    add(G[16*8], G[16*8] + 26, dma_wf(1), None, True)
    q = Prog()
    for g in range(9): q.add(dma_unit_group(2, g))
    add(C["A1"] - 4, C["A2"] + OPTS.get("dend", 10), q, None, True)
    for u, c in ((3, 4), (4, 6)):
        q = Prog()
        for g in range(9): q.add(dma_unit_group(u, g))
        add(C[c] - 4, C[c+1] + OPTS.get("dend", 10), q, None, True)
    area = {"A1": 2048, "A2": CSX, 4: CSX + 512, 5: CSX + 1024, 6: CSX, 7: CSX + 512, 8: CSX + 1024}
    nxt = {"A1": "A2", "A2": 4, 4: 5, 5: 6, 6: 7, 7: 8}
    MB_ = 12
    for k_, c in enumerate(chains[:-1]):
        add(C[nxt[c]] - 3, C[nxt[c]] + 6, cs_write(CSACC + 4*(k_ & 1), area[c]))
        if c != 4:
            g = C[nxt[c]] + MB_ - 1
            main[g] = (main[g][0], [WaitTag(lg=["csw"]), I("s_barrier")] + main[g][1])
    prev = None
    q = Prog()
    mean_fix(q, 0, 0); mean_fix(q, 1, 512); ffn_epi(0, 0, q); mean_fix(q, 2, 1024)
    prev = add(C["A1"] - 3, C["A2"] - 30, q)
    q = Prog(); ffn_epi(1, 1, q); mean_fix(q, 3, 1536)
    prev = add(C["A1"], C["A2"] + 5, q, prev)
    prev = add(C["A2"], C[4] - 40, ffn_epi(2, 2), prev)
    q = Prog(); mean_fix(q, 4, area["A1"]); ffn_epi(3, 3, q)
    prev = add(C["A2"] + MB_, C[4] + 6, q, prev)
    q = Prog(); mean_fix(q, 0, area["A2"])
    fixa2 = prev = add(C[4] + MB_, C[4] + MB_ + 10, q, prev)
    for c, st, a, dl in ((4, 2, C[6], C[7] - 1), (5, 3, C[6] + MB_, bar_gap(cs[8]) - 30), (6, 0, C[7] + MB_, C[8] + 10), (7, 2, C[8] + MB_, C[9])):
        q = Prog(); mean_fix(q, st, area[c]); ffn_epi(st, c, q)
        prev = add(a, dl, q, prev)
    q = Prog(); moves_a2(q); k_part(q)
    kp = add(C[4] + MB_, C[5] + 50, q, fixa2)
    add(C["A2"] + 10, C["A2"] + 20, wd_prefetch(0))
    add(C[5] + 12, C[5] + 14, wd_prefetch(1))
    red = add(C[6] - 2, C[6] + 30, kv_reduce())
    add(C[6] + 30, C[6] + 34, wg_flag(FL_1, T1))
    add(C[5], C[7] + 30, q_part(), kp)
    add(C[8] - 2, C[8] + 2, wg_flag(FL_M, V_A))
    add(C[6] + 62, C[7], fk_publish())
    q = Prog(); q(fk_load()); add(C[7] + 40, C[7] + 42, q)
    add(C[8] + 2, C[8] + 40, fk_check_and_load(), None, True)
    add(C[8] + 40, C[9] - 18, o_finish())
    add(C[9] - 18, C[9] - 4, b_decode())
    if OPTS.get("time") == 2:
        for i, g in enumerate([C["A1"], C["A2"], C[4], C[5], C[6], C[7], C[8]]):
            main[g-1] = (main[g-1][0], main[g-1][1] + [I(f"s_memtime {sr(STAMPS[i+1],2)}")])
        p(f"s_memtime {sr(STAMPS[0],2)}")
    if OPTS.get("time") == 4:
        for i in range(1, 8):
            g = G[16*(i + 1)] if i > 1 else G[16]
            main[g-1] = (main[g-1][0], main[g-1][1] + [I(f"s_memtime {sr(STAMPS[i],2)}")])
        p(f"s_memtime {sr(STAMPS[0],2)}")
    import asmgen
    asmgen.BYTES32 = OPTS.get("b32", 48); asmgen.CARRY = OPTS.get("carry", 8); asmgen.VMEM_COST = OPTS.get("vmc", 2)
    woven, loads = weave(main, S, OPTS.get('cap', 6))
    if OPTS.get("verbose"):
        print("done at", weave.done_at, C, file=sys.stderr)
        pts = [0, 72, 144, 216] + [C[c] for c in chains] + [C[9]]
        for a, b in zip(pts[:-1], pts[1:]):
            print("gaps", a, b, "slack", -sum(loads[a:b]), "over", sum(max(0, x) for x in loads[a:b]), file=sys.stderr)
    p.add(woven)
    AREA8[0] = area[8]
    a_tail_and_b(p, area[8])
NSLOT = 6
B_WD, B_WO, B_X, B_OUT = 4, 8, 12, 16
B_M, B_N, B_HB, B_WDB, B_HO, B_WDO, B_LB, B_IT, B_IX = 37, 38, 45, 46, 47, 48, 49, 50, 51
BV_H, BV_D, BV_T, BV_O, BV_XO, BV_R, BV_FD, BT0, BT1 = 16, 21, 25, 26, 31, 34, 36, 38, 39
BV_TAB, BV_FA = V_Bq, V_A
ACC1, ACC2, AF, XR, BV_RS = 48, 128, 208, 2, 40
TMP = 232
RED1 = 4 * NSLOT * 4096; RB = 0
def hreg(slot, tt): return ar(20*slot + 4*tt, 4)
def accr(base, tt, nt): return base + 16*tt + 4*nt

def issue_down(p, slot):
    p(f"v_readlane_b32 s40, v{BV_TAB}, s{B_IX}")
    p(f"s_add_u32 s{B_IX}, s{B_IX}, 1")
    p(f"s_lshl_b32 s41, s40, 10")
    p(f"s_add_u32 s{B_HO}, s{B_HB}, s41")
    p(f"s_mul_i32 s41, s40, {32*1152}")
    p(f"s_add_u32 s{B_WDO}, s{B_WDB}, s41")
    for i in range(4):
        p(f"s_add_u32 m0, s{B_LB}, {slot*4096 + i*1024}")
        p(f"buffer_load_dwordx4 {hreg(slot,i)}, v{BV_H+i}, {sr(S_HF)}, s{B_HO} offen sc1")
        p(f"buffer_load_dwordx4 v{BV_D+i}, {sr(B_WD)}, s{B_WDO} offen lds", tag=f"D{slot}")
    p(f"buffer_load_dwordx4 {hreg(slot,4)}, v{BV_H+4}, {sr(S_HF)}, s{B_HO} offen sc1")

def issue_s(p, slot, i):
    p(f"s_lshl_b32 s40, s{S_W}, 4")
    p(f"s_add_u32 s40, s40, {64*i}")
    p("s_lshl_b32 s41, s40, 7")
    for i4 in range(4):
        a = TMP + 4*i4
        p(f"v_add3_u32 v{a}, v{TMP+16}, s40, {4*i4}")
        p(f"v_mul_u32_u24 v{a+1}, 6554, v{a}")
        p(f"v_lshrrev_b32 v{a+1}, 16, v{a+1}")
        p(f"v_mul_u32_u24 v{a+2}, 10, v{a+1}")
        p(f"v_sub_u32 v{a+2}, v{a}, v{a+2}")
        p(f"v_lshl_add_u32 v{a}, v{a+1}, 3, v{a}")
        p(f"v_mul_u32_u24 v{a}, 1152, v{a}")
        p(f"v_add_u32 v{a}, v{a}, v{TMP+17}")
        p(f"v_cmp_gt_u32 vcc, 9, v{a+2}")
        p(f"v_cndmask_b32 v{a}, v{TMP+18}, v{a}, vcc")
        p(f"s_add_u32 m0, s{B_LB}, {slot*4096 + i4*1024}")
        p("s_nop 0")
        p(f"buffer_load_dwordx4 v{a}, {sr(B_WO)}, 0 offen lds", tag=f"D{slot}")
    for tt in range(5):
        for k in range(4):
            p(f"buffer_load_dword a{20*slot+4*tt+k}, v{BV_O+tt}, {sr(S_OF)}, s41 offen offset:{256*k} sc1")

def compute(p, slot, accb, manual, first=False):
    af = AF + (0 if accb == ACC2 else 0)
    if not manual: p.wait(vm=[f"D{slot}"])
    for nt in range(4):
        for sec in range(2):
            p(f"ds_read_b64_tr_b16 {vr(af+4*nt+2*sec,2)}, v{BV_T} offset:{slot*4096 + nt*8 + sec*1024}")
    for nt in range(4):
        if manual: p(f"s_waitcnt lgkmcnt({6-2*nt})")
        for tt in range(5):
            d = accr(accb, tt, nt)
            p(f"{MF16} {vr(d,4)}, {vr(af+4*nt,4)}, {hreg(slot,tt)}, {'0' if first else vr(d,4)}")

def time_out(p):
    if not OPTS.get("time"): return
    p("s_waitcnt vmcnt(0)")
    p.add(stamp(8))
    srd(p, 40, P_WS, WS_USED, 131072)
    p("s_waitcnt lgkmcnt(0)")
    for i in range(9): p(f"v_mov_b32 v{28+i}, s{STAMPS[i]}")
    p("s_lshl_b32 s44, s2, 2")
    p(f"s_add_u32 s44, s44, s{S_W}")
    p("s_lshl_b32 s44, s44, 6")
    p("v_mov_b32 v26, s44")
    p("buffer_store_dwordx4 v[28:31], v26, s[40:43], 0 offen")
    p("buffer_store_dwordx4 v[32:35], v26, s[40:43], 0 offen offset:16")
    p("buffer_store_dword v36, v26, s[40:43], 0 offen offset:32")

def zipweave(a, b):
    a = flat(a); b = flat(b)
    out = []; ia = ib = 0
    while ia < len(a) or ib < len(b):
        if ib >= len(b) or (ia < len(a) and ia * len(b) <= ib * len(a)):
            out.append(a[ia]); ia += 1
        else:
            out.append(b[ib]); ib += 1
    return out

def red_write(p, accb, w, base):
    for u in range(10):
        o = u % 4
        if o == w: continue
        tt, np_ = u >> 1, u & 1
        off = base + (u*3 + (w - o - 1) % 4) * 2048
        for h_ in range(2):
            p(f"ds_write_b128 v{BV_R + (off >> 16)}, {vr(accr(accb,tt,2*np_+h_),4)} offset:{(off & 0xffff) + h_*1024}")
def red_read(p, accb, u, base, t):
    tt, np_ = u >> 1, u & 1
    a = accr(accb, tt, 2*np_)
    for sl in range(3):
        off = base + (u*3 + sl) * 2048
        for h_ in range(2):
            p(f"ds_read_b128 {vr(t+8*sl+4*h_,4)}, v{BV_R + (off >> 16)} offset:{(off & 0xffff) + h_*1024}")
def red_add(p, accb, u, t):
    tt, np_ = u >> 1, u & 1
    a = accr(accb, tt, 2*np_)
    for sl in range(3):
        for r in range(8): p(f"v_add_f32 v{a+r}, v{a+r}, v{t+8*sl+r}")

def a_tail_and_b(p, area8):
    L = V_LANE
    p.add(cs_write(CSACC, area8))
    p(f"s_add_u32 s{S_WFB}, s{S_FI}, s{S_W0}")
    p(f"s_add_u32 s{S_WFB}, s{S_WFB}, {FL_2}")
    p(f"s_mul_i32 s43, s{S_BT}, 7282")
    p(f"s_lshr_b32 s{B_M}, s43, 16")
    p(f"s_mul_i32 s43, s{B_M}, 9")
    p(f"s_sub_u32 s{B_N}, s{S_BT}, s43")
    srd(p, B_WD, P_WD, 0, WG_SZ)
    p(f"v_lshlrev_b32 v{BV_H}, 4, v{L}")
    for tt in range(1, 5): p(f"v_add_u32 v{BV_H+tt}, {tt*147456}, v{BV_H}")
    p(f"v_lshrrev_b32 v{BT0}, 3, v{L}")
    p(f"v_mul_u32_u24 v{BT0}, 1152, v{BT0}")
    p(f"v_and_b32 v{BT1}, 7, v{L}")
    p(f"v_lshl_add_u32 v{BV_D}, v{BT1}, 4, v{BT0}")
    for i in range(1, 4): p(f"v_add_u32 v{BV_D+i}, {i*9216}, v{BV_D}")
    p(f"s_mul_i32 s{B_HB}, s{B_M}, {5*147456}")
    p(f"s_lshl_b32 s{B_WDB}, s{B_N}, 7")
    p(f"s_mul_i32 s{B_LB}, s{S_W}, {NSLOT*4096}")
    p(f"s_mov_b32 s{B_IX}, 0")
    check_tokens(p, "F1", [f"buffer_load_dwordx2 {vr(T1,2)}, v{BV_FA}, {sr(S_FL)}, 0 offen sc1"], [T1])
    p(f"v_mov_b32 v{BV_TAB}, v{BV_TAB}")
    p("s_waitcnt lgkmcnt(0)")
    p("s_barrier")
    p.add(stamp(2))
    p(f"s_cmp_eq_u32 s{S_BT}, 255")
    p("s_cbranch_scc1 LB_spare")
    epi = Prog(); mean_fix(epi, 3, area8); ffn_epi(3, 8, epi)
    for r in range(80): epi(f"v_mov_b32 v{ACC1+r}, 0")
    iss = Prog()
    for s in range(NSLOT - 1): issue_down(iss, s)
    z = zipweave(epi.l, iss.l)
    vms = [i for i in z if i.kind in VMK]
    assert max(k for k, i in enumerate(vms) if i.kind == "vst") < len(vms) - 9
    p.add(z)
    srd(p, B_WO, P_WO, 0, WOIN_SZ)
    srd(p, B_X, P_X, 0, X_SZ)
    srd(p, B_OUT, P_OUT, 0, X_SZ)
    p(f"v_add_u32 v{BV_FA}, {FL_M - FL_1}, v{BV_FA}")
    a, b = BT0, BT1
    p(f"v_lshrrev_b32 v{a}, 5, v{L}")
    p(f"v_lshlrev_b32 v{a}, 11, v{a}")
    p(f"v_bfe_u32 v{b}, v{L}, 4, 1")
    p(f"v_lshl_add_u32 v{a}, v{b}, 9, v{a}")
    p(f"v_bfe_u32 v{b}, v{L}, 2, 2")
    p(f"v_lshl_add_u32 v{a}, v{b}, 7, v{a}")
    p(f"v_and_b32 v{b}, 3, v{L}")
    p(f"v_lshl_add_u32 v{a}, v{b}, 5, v{a}")
    p(f"v_add_u32 v{BV_T}, s{B_LB}, v{a}")
    p(f"v_lshrrev_b32 v{a}, 5, v{L}")
    p(f"v_lshlrev_b32 v{a}, 10, v{a}")
    p(f"v_bfe_u32 v{b}, v{L}, 4, 1")
    p(f"v_lshl_add_u32 v{a}, v{b}, 7, v{a}")
    p(f"v_and_b32 v{b}, 15, v{L}")
    p(f"v_lshl_add_u32 v{a}, v{b}, 2, v{a}")
    p(f"s_mul_i32 s40, s{B_M}, 5")
    for tt in range(5):
        p(f"s_add_u32 s41, s40, {tt}")
        p("s_lshr_b32 s42, s41, 1")
        p("s_mul_i32 s42, s42, 40960")
        p("s_and_b32 s41, s41, 1")
        p("s_lshl_b32 s41, s41, 6")
        p("s_add_u32 s41, s41, s42")
        p(f"v_add_u32 v{BV_O+tt}, s41, v{a}")
    p(f"v_add_u32 v{BV_R}, {RED1}, v{BV_H}")
    p(f"s_mul_i32 s40, s{B_M}, 80")
    p(f"s_lshr_b32 s41, s{S_W}, 1")
    p("s_lshl_b32 s41, s41, 4")
    p("s_add_u32 s40, s40, s41")
    p(f"v_add_u32 v{a}, s40, v{b}")
    p(f"v_lshlrev_b32 v{BV_RS+3}, 4, v{a}")
    p(f"v_add_u32 v{BV_RS+3}, {STO+4}, v{BV_RS+3}")
    p(f"v_mul_u32_u24 v{a}, 1152, v{a}")
    p(f"v_lshrrev_b32 v{b}, 4, v{L}")
    p(f"v_lshl_add_u32 v{a}, v{b}, 5, v{a}")
    p(f"s_and_b32 s41, s{S_W}, 1")
    p("s_lshl_b32 s41, s41, 4")
    p(f"s_add_u32 s40, s{B_WDB}, s41")
    p(f"v_add_u32 v{BV_XO}, s40, v{a}")
    p(f"v_add_u32 v{BV_XO+1}, {32*1152}, v{BV_XO}")
    p(f"v_add_u32 v{BV_XO+2}, {64*1152}, v{BV_XO}")
    p(f"v_bfe_u32 v{TMP+16}, v{L}, 3, 2")
    p(f"v_lshrrev_b32 v{a}, 5, v{L}")
    p(f"v_mul_u32_u24 v{a}, {9*1152}, v{a}")
    p(f"v_and_b32 v{b}, 7, v{L}")
    p(f"v_lshl_add_u32 v{a}, v{b}, 4, v{a}")
    p(f"v_add_u32 v{TMP+17}, s{B_WDB}, v{a}")
    p(f"v_mov_b32 v{TMP+18}, {OOB}")
    p.add(st3(5))
    p(f"s_mov_b32 s{B_IT}, 0")

def stage_b():
    out = ""
    p = Prog()
    fl = f"buffer_load_dwordx2 {vr(BV_FD,2)}, v{BV_FA}, {sr(S_FL)}, 0 offen sc1"
    p("LB_loop:")
    for s in range(NSLOT):
        p(f"s_waitcnt vmcnt({36 if s == 0 else 37})")
        if s == 0:
            p(f"s_and_b32 s40, s{B_IT}, 1")
            p("s_cbranch_scc0 LF2_ok")
            check_tokens(p, "F2", [fl], [BV_FD])
            p(f"s_cmp_eq_u32 s{B_IT}, 1")
            p(f"s_cselect_b32 s40, {FL_2 - FL_M}, 0")
            p(f"v_add_u32 v{BV_FA}, s40, v{BV_FA}")
        if s == 3:
            p(f"s_cmp_eq_u32 s{B_IT}, 0")
            p("s_cbranch_scc0 LB_pub")
            p("s_barrier")
            flag_store(p, S_WFB, BT0)
            p("LB_pub:")
        issue_down(p, (s + NSLOT - 1) % NSLOT)
        if s == 0: p(fl)
        compute(p, s, ACC1, True)
    p(f"s_add_u32 s{B_IT}, s{B_IT}, 1")
    p(f"s_cmp_lt_u32 s{B_IT}, 5")
    p("s_cbranch_scc1 LB_loop")
    out += render(pad_hazards(flat(p.l)))
    seed = Prog()
    for s in range(NSLOT - 1): issue_down(seed, s)
    vm0 = [(set(i.wr), i.tag, i.kind) for i in seed.l if i.kind in VMK]
    p = Prog()
    p.add(st3(6))
    issue_down(p, 5); compute(p, 0, ACC1, False)
    issue_s(p, 0, 0); compute(p, 1, ACC1, False)
    compute(p, 2, ACC1, False)
    issue_s(p, 1, 1); compute(p, 3, ACC1, False)
    compute(p, 4, ACC1, False)
    issue_s(p, 2, 2)
    for u in range(3):
        p(f"buffer_load_dwordx4 {vr(XR+4*u,4)}, v{BV_XO+u}, {sr(B_X)}, 0 offen")
        p(f"buffer_load_dword v{BV_RS+u}, v{BV_RS+3}, {sr(S_FL)}, 0 offen offset:{512*u} sc1")
    compute(p, 5, ACC1, False)
    p.add(st3(7))
    issue_s(p, 3, 3)
    for w in range(1, 4):
        p(f"s_cmp_eq_u32 s{S_W}, {w}")
        p(f"s_cbranch_scc1 LB_w{w}")
    pre = insert_waits(flat(p.l), vm0=vm0)
    vm1 = list(insert_waits.vm)
    out += render(pad_hazards(pre))
    for w in range(4):
        p = Prog()
        if w: p(f"LB_w{w}:")
        p("s_nop 4")
        own = [u for u in range(10) if u % 4 == w]
        def comp(slot, first=False):
            c = Prog(); compute(c, slot, ACC2, False, first); return c.l
        x = Prog(); red_write(x, ACC1, w, RB)
        c = comp(0, True)
        p.add(c[:9]); p.add(zipweave(x.l, c[9:]))
        issue_s(p, 4, 4)
        p("s_waitcnt lgkmcnt(0)")
        p("s_barrier")
        for ui in range(len(own)): p(f"v_mul_f32 v{BV_RS+ui}, v{BV_RS+ui}, v{BV_RS+ui}")
        for ui, u in enumerate(own + [None] * (3 - len(own))):
            x = Prog()
            if u is not None:
                red_read(p, ACC1, u, RB, TMP)
                red_add(x, ACC1, u, TMP)
                f = accr(ACC1, u >> 1, 2*(u & 1))
                for r in range(8): x(f"v_mul_f32 v{f+r}, v{BV_RS+ui}, v{f+r}")
                for r in range(8): x(f"v_mul_f32 v{TMP+r}, s{S_NL2E}, v{f+r}")
                for r in range(8): x(f"v_exp_f32 v{TMP+r}, v{TMP+r}")
                for r in range(8): x(f"v_add_f32 v{TMP+r}, 1.0, v{TMP+r}")
                for r in range(8): x(f"v_rcp_f32 v{TMP+r}, v{TMP+r}")
                for r in range(8): x(f"v_mul_f32 v{f+r}, v{f+r}, v{TMP+r}")
            c = comp(1 + ui)
            p.add(c[:9]); p.add(zipweave(x.l, c[9:]))
        p("s_barrier")
        p.add(comp(4))
        if OPTS.get("time") in (1, 3): p.add(stamp(3))
        red_write(p, ACC2, w, RB)
        p("s_waitcnt lgkmcnt(0)")
        p("s_barrier")
        bufs = []
        for ui, u in enumerate(own):
            free = [x for x in range(10) if x % 4 != w]
            t = [accr(ACC2, x >> 1, 2*(x & 1)) for x in free]
            bufs.append(t[2*ui:2*ui+2] + [TMP + 8*ui] if ui < 3 else None)
            tt, np_ = u >> 1, u & 1
            for sl in range(3):
                off = RB + (u*3 + sl) * 2048
                for h_ in range(2):
                    p(f"ds_read_b128 {vr(bufs[ui][sl]+4*h_,4)}, v{BV_R + (off >> 16)} offset:{(off & 0xffff) + h_*1024}")
        for ui, u in enumerate(own):
            f = accr(ACC1, u >> 1, 2*(u & 1)); s_ = accr(ACC2, u >> 1, 2*(u & 1)); x = XR + 4*ui
            X8 = AF
            for r in range(4):
                p(f"v_lshlrev_b32 v{X8+2*r}, 16, v{x+r}")
                p(f"v_and_b32 v{X8+2*r+1}, 0xffff0000, v{x+r}")
            for sl in range(3):
                for r in range(8): p(f"v_add_f32 v{s_+r}, v{s_+r}, v{bufs[ui][sl]+r}")
            for r in range(8): p(f"v_fma_f32 v{f+r}, v{f+r}, v{s_+r}, v{X8+r}")
            for r in range(4): p(f"v_cvt_pk_bf16_f32 v{x+r}, v{f+2*r}, v{f+2*r+1}")
            p(f"buffer_store_dwordx4 {vr(x,4)}, v{BV_XO+ui}, {sr(B_OUT)}, 0 offen")
        time_out(p)
        p("s_endpgm")
        out += render(pad_hazards(insert_waits(flat(p.l), vm0=vm1)))
    p = Prog()
    p("LB_spare:")
    mean_fix(p, 3, AREA8[0]); ffn_epi(3, 8, p)
    p("s_waitcnt vmcnt(0)")
    p("s_barrier")
    flag_store(p, S_WFB, BT0)
    p("s_endpgm")
    out += finalize(p.l)
    return out
AREA8 = [0]

def ktable():
    lv = [[], [], []]
    for j in range(32):
        order = (0, 1, 2, 3) if j % 4 in (0, 3) else (1, 2, 0, 3)
        ks = lambda u: 9*(j >> 1) + (5 if j & 1 else 0) + u
        lv[0] += [ks(order[0]), ks(order[1])]; lv[1].append(ks(order[2])); lv[2].append(ks(3))
        if not j & 1: lv[2].append(9*(j >> 1) + 4)
    allk = sorted(lv[0]) + sorted(lv[1]) + sorted(lv[2])
    assert sorted(allk) == list(range(144))
    out = "LK_tab:\n"
    for w in range(4): out += ".byte " + ", ".join(str(allk[4*i + w]) for i in range(36)) + "\n"
    return out + ".p2align 2\n"

def gen(name, opts):
    OPTS.clear(); OPTS.update(opts); SLOW.clear()
    out = entry(name)
    p = Prog()
    prologue(p)
    stage_a(p)
    out += finalize(p.l)
    out += stage_b()
    for s in SLOW: out += finalize(s.l)
    out += "LK_end:\n    s_endpgm\n"
    out += ktable()
    out += kd(name, 512, 102, 256)
    return out

if __name__ == "__main__":
    NAME = "recurrent_scan__linear_kernel_hedgehog__swiglu_ffn__prompt"
    HDR = open(f"cdna_kernels/{NAME}.s.ref").read().split("; Override launch geometry")[0]
    opts = {}
    for a in sys.argv[2:]:
        k, v = a.split("=")
        opts[k] = int(v) if v.lstrip("-").isdigit() else v
    txt = HDR + f"; @launch grid=(256,1,1) block=(256,1,1) lds={LDS_BYTES}\n" + '.amdgcn_target "amdgcn-amd-amdhsa--gfx950"\n.text\n' + gen(NAME + "_kernel", opts)
    open(sys.argv[1], "w").write(txt)
```

```python
import struct, sys
from asmgen import *
from layout import *

def np_f32(x): return struct.unpack("<I", struct.pack("<f", x))[0]
def vr(b, n): return f"v[{b}:{b+n-1}]"
def ar(b, n): return f"a[{b}:{b+n-1}]"
def sr(b, n=4): return f"s[{b}:{b+n-1}]"
def srd(p, d, base, off, size):
    if off:
        p(f"s_add_u32 s{d}, s{base}, {off}")
        p(f"s_addc_u32 s{d+1}, s{base+1}, 0")
    else:
        p(f"s_mov_b32 s{d}, s{base}")
        p(f"s_mov_b32 s{d+1}, s{base+1}")
    p(f"s_mov_b32 s{d+2}, {size}")
    p(f"s_mov_b32 s{d+3}, 0x20000")

MF = "v_mfma_f32_32x32x16_bf16"
MF8 = "v_mfma_f32_32x32x8_bf16"
MF16 = "v_mfma_f32_16x16x32_bf16"
L2E = 1.4426950408889634
OOB = 0x7ff00000
SPIN = 100000
STO = 32768
SLOT = 49184; PUP = 8224; XP = 16416
BUF = (0, 73760); BUP = 36896
SCR = 3 * SLOT; SCR_W = 3600; SROW = 112
CSX = 4 * SCR_W
TOKA = SCR + CSX + 1536
LDS_BYTES = TOKA + 64
P_X, P_WQKV, P_WPHI, P_WO, P_WG, P_WU, P_WD, P_OUT, P_DBG, P_WS = 64, 66, 68, 70, 72, 74, 76, 78, 80, 82
S_X, S_WF, S_WG, S_WU, S_HF, S_KV, S_OF, S_FL = 4, 8, 12, 16, 20, 24, 28, 32
S_W, S_MT, S_J, S_FI = 36, 37, 38, 39
S_M0X, S_M0W, S_FB, S_CG, S_NL2E, S_M0P, S_SPIN, S_TOK, S_SO, S_SO2, S_KVB, S_BT = 3, 44, 45, 50, 55, 56, 57, 58, 60, 61, 62, 63
S_WX = 66
S_WFB = 80
S_RG = 100
S_W0 = 81
STAMPS = list(range(84, 102, 2))
V_FL, V_LANE, V_W, V_H, V_SW, V_SR, V_B0, V_TRL, TR = 0, 1, 2, 3, 4, 5, 6, 7, 8
T1, T2, T3, T4 = 12, 13, 14, 15
XT, ACC, RING, RA = 16, 48, 176, 192
MV, E, SM = 80, 96, 106
KA = 48
CSA, MB, RL, SEL, CSACC, CT, EP = 224, 226, 230, 232, 236, 244, 248
V_CW, V_CR, V_A, V_Bq = 244, 245, 246, 247
CS4, XA, XD, WD, STG = 192, 208, 212, 214, 216
OPTS = {}
def stamp(i, modes=(1, 3)):
    return [I(f"s_memrealtime {sr(STAMPS[i],2)}")] if OPTS.get("time", 0) in modes else []
def st5(i):
    return [I(f"s_memtime {sr(STAMPS[i],2)}"), I("s_waitcnt lgkmcnt(0)")] if OPTS.get("time", 0) == 5 else []
def st3(i):
    return [I(f"s_memrealtime {sr(STAMPS[i],2)}"), I("s_waitcnt lgkmcnt(0)")] if OPTS.get("time", 0) == 3 else []
def xreg(tt, s):
    if tt == 0: return ar(4*s, 4)
    if s < 28: return ar(144 + 4*s, 4)
    return vr(XT + 4*(s - 28), 4)
def acc(st, tt): return (RA if st == 4 else ACC + 32*st) + 16*tt

SLOW = []
def check_tokens(q, name, loads, pairs):
    def test(lst):
        for k, v in enumerate(pairs):
            if k == 0: lst.append(f"v_cmp_eq_u64 vcc, {sr(S_TOK,2)}, {vr(v,2)}")
            else:
                lst.append(f"v_cmp_eq_u64 s[42:43], {sr(S_TOK,2)}, {vr(v,2)}")
                lst.append("s_nop 1"); lst.append("s_and_b64 vcc, vcc, s[42:43]")
        lst.append("s_nop 1"); lst.append("s_cmp_eq_u64 vcc, -1")
    items = []; test(items)
    q.b(*(items + [f"s_cbranch_scc0 L{name}_slow", f"L{name}_ok:"]))
    s = Prog()
    s(f"L{name}_slow:")
    s(f"s_mov_b32 s{S_SPIN}, 0")
    s(f"L{name}_spin:")
    s("s_sleep 2")
    for l in loads: s(l)
    s("s_waitcnt vmcnt(0)")
    s(f"s_add_u32 s{S_SPIN}, s{S_SPIN}, 1")
    items = []; test(items)
    for t in items: s(t)
    s(f"s_cbranch_scc1 L{name}_ok")
    s(f"s_cmp_lt_u32 s{S_SPIN}, {SPIN}")
    s(f"s_cbranch_scc1 L{name}_spin")
    s(f"s_branch L{name}_ok")
    SLOW.append(s)

def flag_store(q, sidx, tmpv):
    q(f"v_mov_b32 v{tmpv}, s{S_TOK}")
    q(f"v_mov_b32 v{tmpv+1}, s{S_TOK+1}")
    q(f"buffer_store_dwordx2 {vr(tmpv,2)}, v{V_FL}, {sr(S_FL)}, s{sidx} offen sc1")

def row16_allreduce(p, v):
    for r in (8, 4, 2, 1):
        p(f"v_add_f32_dpp v{v}, v{v}, v{v} row_ror:{r} row_mask:0xf bank_mask:0xf")
def half_allreduce(p, v, t):
    row16_allreduce(p, v)
    p(f"v_mov_b32 v{t}, v{v}")
    p(f"v_permlane16_swap_b32 v{v}, v{t}")
    p(f"v_add_f32 v{v}, v{v}, v{t}")
def bf16_round(p, v):
    p(f"v_cvt_pk_bf16_f32 v{v}, v{v}, v{v}")
    p(f"v_and_b32 v{v}, 0xffff0000, v{v}")

def rg_next(q):
    q.b(f"s_add_u32 s{S_RG}, s{S_RG}, 1", f"s_cmp_eq_u32 s{S_RG}, 9", f"s_cselect_b32 s{S_RG}, 0, s{S_RG}")
def ring_group(g):
    b = (g % 3) * SLOT
    q = Prog()
    q(f"s_mul_i32 s{S_SO}, s{S_RG}, 589824")
    q(f"s_add_u32 s{S_SO}, s{S_SO}, s{S_FB}")
    for h8 in range(2):
        q(f"s_add_u32 m0, s{S_M0P}, {b + h8*1024}")
        if h8: q(f"s_add_u32 s{S_SO}, s{S_SO}, 73728")
        else: q("s_nop 0")
        q(f"buffer_load_dwordx4 v{WD}, {sr(S_WG)}, s{S_SO} offen lds", tag=f"W{g}")
        q(f"s_add_u32 m0, s{S_M0P}, {b + PUP + h8*1024}")
        q(f"s_nop 0")
        q(f"buffer_load_dwordx4 v{WD}, {sr(S_WU)}, s{S_SO} offen lds", tag=f"W{g}")
    for i in range(8):
        q(f"s_add_u32 m0, s{S_M0X}, {b + XP + i*1024}")
        q(f"s_add_u32 s{S_SO}, s{S_SO}, 9216" if i else f"s_lshl_b32 s{S_SO}, s{S_RG}, 7")
        q(f"buffer_load_dwordx4 v{XD + (i & 1)}, {sr(S_X)}, s{S_SO} offen lds", tag=f"X{g}")
    rg_next(q)
    return q

def x_copy(g):
    q = Prog()
    q.wait(vm=[f"X{g}"])
    for p_ in range(4):
        if g: q(f"v_add_u32 v{XA+p_}, {SLOT if g % 3 else (-2*SLOT) & 0xffffffff}, v{XA+p_}")
        for tt in range(2):
            q(f"ds_read_b128 {xreg(tt, 4*g+p_)}, v{XA+p_} offset:{tt*4096}")
    return q

def dma_unit_group(u, g):
    b = BUF[(u + 1) & 1]
    q = Prog()
    q(f"s_mul_i32 s{S_SO}, s{S_RG}, 589824")
    q(f"s_add_u32 m0, s{S_M0W}, {b + g*4096}")
    q(f"s_add_u32 s{S_SO}, s{S_SO}, s{S_FB+u}")
    q(f"buffer_load_dwordx4 v{V_W}, {sr(S_WG)}, s{S_SO} offen lds", tag=f"U{u}")
    q(f"s_add_u32 m0, s{S_M0W}, {b + BUP + g*4096}")
    rg_next(q)
    q(f"buffer_load_dwordx4 v{V_W}, {sr(S_WU)}, s{S_SO} offen lds", tag=f"U{u}")
    return q

def dma_wf(t):
    q = Prog()
    for g in range(9):
        q(f"s_lshl_b32 s{S_SO}, s{S_RG}, 12")
        q(f"s_add_u32 m0, s{S_M0W}, {t*BUP + g*4096}")
        q(f"s_add_u32 s{S_SO}, s{S_SO}, s{S_WFB}")
        q(f"buffer_load_dwordx4 v{V_B0}, {sr(S_WF)}, s{S_SO} offen sc1 lds", tag=f"T{t}")
        rg_next(q)
    if t == 0: q(f"s_add_u32 s{S_WFB}, s{S_WFB}, 36864")
    return q

TKR = STG + 6
GA = STG + 4
TOKLD = f"buffer_load_dwordx2 {vr(TKR,2)}, v{GA+1}, s[20:23], 0 offen sc1"
FA = 112
SR_ = 224
F_VA, F_VB, F_RHO, F_HF, F_DV, F_Z = 236, 238, 240, 241, 242, 243
def prologue(p):
    L = V_LANE
    p("s_cmp_ge_u32 s2, 256")
    p("s_cbranch_scc1 LK_end")
    p.add(st5(0))
    p("s_load_dwordx8 s[64:71], s[0:1], 0")
    p("s_load_dwordx8 s[72:79], s[0:1], 40")
    p("s_load_dwordx4 s[80:83], s[0:1], 72")
    p.add(stamp(0))
    p("v_lshrrev_b32 v14, 6, v0")
    p(f"v_and_b32 v{L}, 63, v0")
    p(f"v_readfirstlane_b32 s{S_W}, v14")
    p("s_and_b32 s40, s2, 7")
    p("s_lshr_b32 s41, s2, 3")
    p("s_and_b32 s42, s40, 1")
    p("s_lshl_b32 s42, s42, 2")
    p("s_and_b32 s43, s41, 3")
    p(f"s_add_u32 s{S_MT}, s42, s43")
    p("s_lshr_b32 s42, s40, 1")
    p("s_lshl_b32 s42, s42, 3")
    p("s_lshr_b32 s43, s41, 2")
    p(f"s_add_u32 s{S_J}, s42, s43")
    p(f"s_lshl_b32 s{S_M0W}, s{S_W}, 10")
    p(f"s_lshl_b32 s{S_M0P}, s{S_W}, 11")
    p(f"s_lshl_b32 s{S_M0X}, s{S_W}, 13")
    p(f"s_lshl_b32 s{S_BT}, s{S_W}, 3")
    p(f"s_add_u32 s{S_BT}, s{S_BT}, s{S_MT}")
    p(f"s_mul_i32 s40, s{S_J}, 144")
    p(f"s_and_b32 s41, s{S_J}, 1")
    p("s_lshl_b32 s42, s41, 4")
    p("s_add_u32 s42, s42, s40")
    p("s_cmp_eq_u32 s41, 0")
    p("s_cselect_b32 s43, 128, 0")
    p("s_add_u32 s43, s43, s40")
    p(f"s_add_u32 s40, s{S_J}, 1")
    p("s_and_b32 s40, s40, 2")
    p("s_lshl_b32 s40, s40, 4")
    p(f"s_add_u32 s{S_FB}, s42, s40")
    p(f"s_lshl_b32 s{S_FB}, s{S_FB}, 1")
    p(f"v_lshrrev_b32 v17, 5, v{L}")
    p(f"v_and_b32 v19, 31, v{L}")
    p(f"s_lshl_b32 s{S_FI}, s{S_MT}, 5")
    p(f"s_add_u32 s{S_FI}, s{S_FI}, s{S_J}")
    p(f"s_lshl_b32 s{S_FI}, s{S_FI}, 3")
    p(f"s_lshl_b32 s{S_SO2}, s{S_W}, 1")
    p(f"s_add_u32 s{S_SO2}, s{S_SO2}, s{S_FI}")
    p(f"v_add_u32 v16, s{S_SO2}, v17")
    p("v_mul_u32_u24 v15, 1152, v16")
    p("v_lshl_add_u32 v15, v19, 2, v15")
    p(f"s_add_u32 s{S_RG}, s{S_MT}, s{S_J}")
    p(f"s_mul_i32 s{S_KVB}, s{S_RG}, 7282")
    p(f"s_lshr_b32 s{S_KVB}, s{S_KVB}, 16")
    p(f"s_mul_i32 s{S_KVB}, s{S_KVB}, 9")
    p(f"s_sub_u32 s{S_RG}, s{S_RG}, s{S_KVB}")
    if OPTS.get("norot"): p(f"s_mov_b32 s{S_RG}, 0")
    p(f"v_lshrrev_b32 v12, 3, v{L}")
    p(f"s_lshl_b32 s{S_SO2}, s{S_MT}, 2")
    p(f"s_add_u32 s{S_SO2}, s{S_SO2}, s{S_W}")
    p(f"s_lshl_b32 s{S_SO2}, s{S_SO2}, 6")
    p(f"v_add_u32 v13, s{S_SO2}, v12")
    p("v_mul_u32_u24 v13, 1152, v13")
    p("v_lshrrev_b32 v12, 1, v12")
    p(f"v_and_b32 v14, 7, v{L}")
    p("v_xor_b32 v12, v12, v14")
    p(f"v_lshl_add_u32 v{XD}, v12, 4, v13")
    p(f"v_xor_b32 v{XD+1}, 64, v{XD}")
    p(f"v_bfe_u32 v12, v{L}, 2, 3")
    p(f"s_lshl_b32 s{S_SO2}, s{S_W}, 4")
    p(f"v_add_u32 v12, s{S_SO2}, v12")
    p("v_mul_u32_u24 v12, 9216, v12")
    p("v_lshl_add_u32 v12, v17, 6, v12")
    p(f"v_and_b32 v13, 3, v{L}")
    p(f"v_lshl_add_u32 v{WD}, v13, 4, v12")
    p(f"v_cmp_eq_u32 vcc, 0, v{L}")
    p(f"v_mov_b32 v18, {OOB}")
    p(f"v_cndmask_b32 v{V_FL}, v18, v{L}, vcc")
    p(f"v_lshlrev_b32 v{V_B0}, 4, v{L}")
    p("s_waitcnt lgkmcnt(0)")
    p.add(st5(1))
    srd(p, S_X, P_X, 0, X_SZ)
    code_touch(p)
    for i in range(9): p(f"buffer_load_dword v{SR_+i}, v15, {sr(S_X)}, 0 offen offset:{128*i}")
    srd(p, S_WG, P_WG, 0, WG_SZ)
    srd(p, S_WU, P_WU, 0, WG_SZ)
    srd(p, 24, P_WQKV, 0, WQKV_SZ)
    p(f"v_min_u32 v20, 15, v{L}")
    p("v_lshlrev_b32 v20, 7, v20")
    p("s_lshl_b32 s46, s2, 2")
    p(f"s_add_u32 s46, s46, s{S_W}")
    p("s_lshl_b32 s46, s46, 11")
    p(f"buffer_load_dword v{EP}, v20, s[24:27], s46 offen")
    g0 = ring_group(0).l
    cut = [k for k, i in enumerate(g0) if i.kind == "dma"][OPTS.get("cut", 5)] - 2
    p.add(g0[:cut])
    srd(p, 20, P_DBG, 0, 256)
    p(f"s_or_b32 s46, s2, s{S_W}")
    p(f"s_cmp_lg_u32 s46, 0")
    p("s_cbranch_scc1 LT_skip")
    p("s_memrealtime s[46:47]")
    p("v_mov_b32 v34, 0")
    p("v_mov_b32 v35, 0")
    p("s_waitcnt lgkmcnt(0)")
    p("s_or_b32 s46, s46, 1")
    p("v_mov_b32 v32, s46")
    p("v_mov_b32 v33, s47")
    p.l.append(Raw(f"    buffer_atomic_cmpswap_x2 v[32:35], v{V_FL}, s[20:23], 0 offen sc1"))
    p("LT_skip:")
    p.add(st5(2))
    p(f"s_add_u32 s{S_FB+1}, s{S_FB}, 64")
    p("s_lshl_b32 s40, s40, 1")
    p("s_sub_u32 s40, 64, s40")
    p("s_add_u32 s40, s40, s42")
    p(f"s_lshl_b32 s{S_FB+2}, s40, 1")
    p(f"s_add_u32 s42, s42, 96")
    p(f"s_lshl_b32 s{S_FB+3}, s42, 1")
    p(f"s_lshl_b32 s{S_FB+4}, s43, 1")
    for u in range(5): p(f"s_lshl_b32 s{S_CG+u}, s{S_FB+u}, 4")
    p(f"s_mul_i32 s{S_KVB}, s{S_J}, 4608")
    srd(p, S_WF, P_WS, WF_OFF, WF_SZ)
    srd(p, 28, P_WPHI, 0, WPHI_SZ)
    srd(p, S_FL, P_WS, FL_OFF, FL_SZ + ST_SZ)
    for i in range(4):
        p(f"s_xor_b32 s{S_WX+i}, s{S_W}, {i}")
        p(f"s_lshl_b32 s{S_WX+i}, s{S_WX+i}, 10")
    p(f"s_mul_i32 s{S_WFB}, s{S_J}, 73728")
    p(f"s_add_u32 s{S_WFB}, s{S_WFB}, s{S_M0W}")
    p(f"s_cmp_eq_u32 s{S_W}, 0")
    p(f"s_cselect_b32 s{S_W0}, 0, {OOB}")
    p(f"v_bfe_u32 v12, v{L}, 2, 2")
    p(f"v_and_b32 v13, 3, v{L}")
    p("v_lshlrev_b32 v13, 3, v13")
    p("v_lshl_add_u32 v12, v12, 6, v13")
    p(f"v_bfe_u32 v13, v{L}, 4, 1")
    p(f"v_mul_u32_u24 v14, {BUP}, v13")
    p("v_add_u32 v14, v14, v12")
    p(f"v_lshl_add_u32 v{V_TRL}, v17, 9, v14")
    p(f"v_mul_u32_u24 v14, {PUP}, v13")
    p("v_add_u32 v14, v14, v12")
    p("v_lshl_add_u32 v14, v17, 10, v14")
    for i in range(4):
        p(f"s_lshl_b32 s40, s{S_WX+i}, 1")
        p(f"v_add_u32 v{TR+i}, s40, v14")
    p(f"v_bfe_u32 v12, v{L}, 1, 3")
    p("v_xor_b32 v12, v12, v17")
    p(f"s_add_u32 s41, s{S_M0X}, {XP}")
    p("v_lshl_add_u32 v14, v19, 7, s41")
    for i in range(4):
        p(f"s_lshr_b32 s40, s{S_WX+i}, 9")
        p("v_xor_b32 v15, s40, v12")
        p(f"v_lshl_add_u32 v{XA+i}, v15, 4, v14")
    p(f"v_lshrrev_b32 v12, 2, v{L}")
    p(f"s_lshl_b32 s40, s{S_W}, 4")
    p("v_add_u32 v12, s40, v12")
    p("v_mul_u32_u24 v12, 9216, v12")
    p(f"v_and_b32 v14, 3, v{L}")
    p(f"v_lshl_add_u32 v{V_W}, v14, 4, v12")
    p(f"s_lshl_b32 s40, s{S_MT}, 4")
    p(f"s_lshl_b32 s41, s{S_W}, 2")
    p("s_add_u32 s40, s40, s41")
    p("v_add_u32 v12, s40, v13")
    p("v_mul_u32_u24 v12, 147456, v12")
    p(f"v_and_b32 v14, 15, v{L}")
    p("v_lshl_add_u32 v12, v14, 4, v12")
    p(f"v_lshl_add_u32 v{V_H}, v17, 8, v12")
    p(f"s_mul_i32 s40, s{S_W}, {SCR_W}")
    p(f"s_add_u32 s40, s40, {SCR}")
    p(f"v_mul_u32_u24 v12, {SROW}, v19")
    p("v_lshl_add_u32 v12, v17, 3, v12")
    p(f"v_add_u32 v{V_SW}, s40, v12")
    p(f"v_lshrrev_b32 v12, 4, v{L}")
    p(f"v_bfe_u32 v15, v{L}, 2, 2")
    p("v_lshl_add_u32 v12, v12, 3, v15")
    p(f"v_mul_u32_u24 v12, {SROW}, v12")
    p(f"v_and_b32 v15, 3, v{L}")
    p("v_lshl_add_u32 v12, v15, 3, v12")
    p(f"v_add_u32 v{V_SR}, s40, v12")
    p(f"s_lshl_b32 s41, s{S_W}, 7")
    p(f"s_add_u32 s41, s41, {SCR}")
    p(f"v_lshl_add_u32 v{V_CW}, v{L}, 3, s41")
    p("v_lshlrev_b32 v12, 3, v14")
    p("v_lshl_add_u32 v12, v13, 2, v12")
    p(f"v_add_u32 v{V_CR}, {SCR}, v12")
    p(f"s_mov_b32 s{S_NL2E}, 0x{np_f32(-L2E):08x}")
    p(f"v_lshlrev_b32 v16, 4, v16")
    p(f"v_add_u32 v16, {STO}, v16")
    p(f"v_cmp_eq_u32 vcc, 0, v19")
    p(f"v_cndmask_b32 v{GA}, v18, v16, vcc")
    p(f"v_mov_b32 v{F_Z}, 0")
    p(f"v_mov_b32 v{F_HF}, v17")
    p("v_bfe_u32 v22, v19, 2, 1")
    p("v_lshrrev_b32 v23, 3, v19")
    p("v_and_b32 v24, 3, v19")
    p(f"v_lshl_or_b32 v{F_RHO}, v23, 2, v24")
    p("v_mul_u32_u24 v24, 9, v22")
    p(f"v_cmp_gt_u32 vcc, 9, v{F_RHO}")
    p(f"v_subrev_u32 v25, 9, v{F_RHO}")
    p(f"v_cndmask_b32 v25, v25, v{F_RHO}, vcc")
    p("v_add_u32 v25, v25, v24")
    p(f"v_cmp_gt_u32 vcc, 2, v{F_RHO}")
    p(f"v_add3_u32 v26, v{F_RHO}, v24, 7")
    p(f"v_cndmask_b32 v26, v{F_Z}, v26, vcc")
    p(f"s_add_u32 s41, s{S_M0W}, {SCR + 3*SCR_W}")
    p(f"v_lshl_add_u32 v{F_VB}, v25, 1, s41")
    p(f"v_lshl_add_u32 v{F_VB+1}, v26, 1, s41")
    p("v_and_b32 v20, 0x13, v19")
    p("v_and_b32 v21, 4, v19")
    p("v_lshl_or_b32 v20, v21, 1, v20")
    p("v_and_b32 v21, 8, v19")
    p("v_lshrrev_b32 v21, 1, v21")
    p("v_or_b32 v20, v20, v21")
    p("v_mul_u32_u24 v20, 36, v20")
    p(f"v_add_u32 v{V_A}, s40, v20")
    p(f"v_lshl_add_u32 v{V_Bq}, v17, 4, v{V_A}")
    p("v_mul_u32_u24 v27, 288, v17")
    p(f"v_add_u32 v{F_VA}, v{F_VB}, v27")
    p(f"v_add_u32 v{F_VA+1}, v{F_VB+1}, v27")
    p(f"v_subrev_u32 v25, 2, v{F_RHO}")
    p("v_add_u32 v26, v25, v24")
    p("v_cmp_gt_u32 vcc, 9, v25")
    p("v_mov_b32 v31, 255")
    p("v_cndmask_b32 v26, v31, v26, vcc")
    p("v_lshlrev_b32 v27, 3, v17")
    p(f"v_sub_u32 v{F_DV}, v26, v27")
    for i in range(3):
        for r in (1, 2, 3): p(f"v_accvgpr_write_b32 a{FA+12+4*i+r}, 0")
    p.add(st5(3))
    p.add(g0[cut:])
    X = 96; M = STG; V = 118; R = SR_
    for i in range(9):
        p(f"v_lshlrev_b32 v{X+2*i}, 16, v{R+i}")
        p(f"v_and_b32 v{X+2*i+1}, 0xffff0000, v{R+i}")
    p("v_cmp_eq_u32 vcc, v14, v13")
    p("v_mov_b32 v12, 0x3f803f80")
    for r in range(4): p(f"v_cndmask_b32 v{SEL+r}, v{F_Z}, v12, vcc")
    for r in (CSA+1, MB+1, MB+3): p(f"v_mov_b32 v{r}, 0")
    p(f"v_add_f32 v{M}, v{X}, v{X+2}")
    p(f"v_add_f32 v{M+1}, v{X+1}, v{X+3}")
    for i in range(2, 9):
        p(f"v_add_f32 v{M}, v{M}, v{X+2*i}")
        p(f"v_add_f32 v{M+1}, v{M+1}, v{X+2*i+1}")
    p(f"v_add_f32 v{M}, v{M}, v{M+1}")
    half_allreduce(p, M, M+1)
    p(f"v_mul_f32 v{M}, 0x{np_f32(1/576):08x}, v{M}")
    for i in range(18): p(f"v_sub_f32 v{X+i}, v{X+i}, v{M}")
    p(f"v_mul_f32 v{V}, v{X}, v{X}")
    p(f"v_mul_f32 v{V+1}, v{X+1}, v{X+1}")
    for i in range(1, 9):
        p(f"v_fmac_f32 v{V}, v{X+2*i}, v{X+2*i}")
        p(f"v_fmac_f32 v{V+1}, v{X+2*i+1}, v{X+2*i+1}")
    p(f"v_add_f32 v{V}, v{V}, v{V+1}")
    half_allreduce(p, V, V+1)
    p(f"v_mul_f32 v{V}, 0x{np_f32(1/576):08x}, v{V}")
    bf16_round(p, M)
    bf16_round(p, V)
    p(f"v_add_f32 v{V}, 0x{np_f32(1e-5):08x}, v{V}")
    bf16_round(p, V)
    p(f"v_sqrt_f32 v{V}, v{V}")
    bf16_round(p, V)
    p(f"v_rcp_f32 v{M+1}, v{V}")
    p.add(st5(4))
    p(f"s_cmp_ge_u32 s{S_BT}, 18")
    p("s_cbranch_scc1 LP_nofl")
    p(f"s_add_u32 m0, s{S_M0W}, {SCR + 3*SCR_W}")
    p(f"s_mul_i32 s{S_SO}, s{S_J}, 648")
    p.l.append(Raw(f"    buffer_load_dwordx4 v{V_B0}, s[28:31], s{S_SO} offen lds"))
    p(f"v_mul_u32_u24 v20, 7282, v{L}")
    p("v_lshrrev_b32 v20, 16, v20")
    p("v_mul_u32_u24 v21, 9, v20")
    p(f"v_sub_u32 v21, v{L}, v21")
    p("v_mul_u32_u24 v20, 3456, v20")
    p("v_lshl_add_u32 v20, v21, 2, v20")
    p(f"s_mul_i32 s{S_SO}, s{S_BT}, {32*3456}")
    p(f"s_mul_i32 s41, s{S_J}, 36")
    p(f"s_add_u32 s{S_SO}, s{S_SO}, s41")
    for mat in range(3):
        for i in range(5):
            p(f"s_add_u32 m0, s40, {mat*1152 + i*252}")
            p(f"s_add_u32 s41, s{S_SO}, {mat*1152 + i*7*3456}")
            p.l.append(Raw(f"    buffer_load_dword v20, s[24:27], s41 offen lds"))
    p("LP_nofl:")
    p.add(st5(5))
    p(f"v_mov_b32 v{GA+1}, s{S_W0}")
    srd(p, S_KV, P_WS, KV_OFF, KV_SZ)
    srd(p, S_OF, P_WS, OF_OFF, OF_SZ)
    if OPTS.get("g1pre", 1): p.add(ring_group(1))
    p.add(st5(6))
    p.add(stamp(4, (1,)))

def fold_stream():
    q = Prog()
    B0, B1, D, O = XT, XT + 8, XT + 16, EP
    q.wait(vm=["W1"])
    for mat in range(3):
        q(f"v_add_u32 v{D}, {mat*1152}, v{V_Bq}")
        q(f"ds_read2_b32 {ar(FA+4*mat,2)}, v{D} offset0:0 offset1:1")
        q(f"ds_read2_b32 {ar(FA+4*mat+2,2)}, v{D} offset0:2 offset1:3")
        q(f"ds_read_b32 a{FA+12+4*mat}, v{V_A} offset:{mat*1152+32}")
    q(f"s_lshl_b32 s41, s{S_BT}, 11")
    q(f"s_add_u32 s41, s{S_WFB}, s41")
    q(f"s_sub_u32 s41, s41, s{S_M0W}")
    q(f"s_lshl_b32 s43, s{S_BT}, 8")
    q(f"s_add_u32 s43, s43, s{S_KVB}")
    q.b(f"s_cmp_lt_u32 s{S_BT}, 18", f"s_cselect_b32 s41, s41, {OOB}", f"s_cselect_b32 s43, s43, {OOB}")
    q("s_add_u32 s42, s41, 36864")
    for b in (B0, B1):
        for r in (5, 6, 7): q(f"v_mov_b32 v{b+r}, 0")
    for t in range(2):
        for e in range(8): q(f"ds_read_u16 v{D+e}, v{F_VA+t} offset:{e*36}")
        q(f"ds_read_u16 v{D+8}, v{F_VB+t} offset:{16*36}")
        q(f"ds_read_u16 v{D+9}, v{F_VB+t} offset:{17*36}")
        if t == 1:
            q(f"v_mov_b32 v{D+10}, 0x3f80")
            for r, sub in enumerate((0, 2, 4, 6, 16)):
                q(f"v_subrev_u32 v{D+11}, {sub}, v{F_DV}")
                q(f"v_lshlrev_b32 v{D+12}, 4, v{D+11}")
                q(f"v_cmp_gt_u32 vcc, 2, v{D+11}")
                q(f"v_lshlrev_b32 v{D+12}, v{D+12}, v{D+10}")
                q(f"v_cndmask_b32 v{B1+r}, v{F_Z}, v{D+12}, vcc")
        q(f"v_cmp_eq_u32 vcc, 0, v{F_HF}")
        for r in range(5): q(f"v_lshl_or_b32 v{D+r}, v{D+2*r+1}, 16, v{D+2*r}")
        q(f"v_cndmask_b32 v{D+4}, v{F_Z}, v{D+4}, vcc")
        q(f"v_cmp_gt_u32 vcc, {9 if t == 0 else 2}, v{F_RHO}")
        q("s_nop 0")
        for r in range(5): q(f"v_cndmask_b32 v{B0+r}, v{F_Z}, v{D+r}, vcc")
        if t == 0:
            for r in range(5): q(f"v_cndmask_b32 v{B1+r}, v{D+r}, v{F_Z}, vcc")
        a0 = FA + 4*t
        q(f"{MF} {vr(D,16)}, {ar(a0,4)}, {vr(B0,4)}, 0")
        q(f"{MF} {vr(D,16)}, {ar(a0+12,4)}, {vr(B0+4,4)}, {vr(D,16)}")
        q(f"{MF} {vr(D,16)}, {ar(a0+4,4)}, {vr(B1,4)}, {vr(D,16)}")
        q(f"{MF} {vr(D,16)}, {ar(a0+16,4)}, {vr(B1+4,4)}, {vr(D,16)}")
        for r in range(8): q(f"v_cvt_pk_bf16_f32 v{O+r}, v{D+2*r}, v{D+2*r+1}")
        for jj in range(2):
            q(f"buffer_store_dwordx4 {vr(O+4*jj,4)}, v{V_B0}, {sr(S_WF)}, s{41+t} offen offset:{1024*jj} sc1", tag="fold")
    q(f"v_cmp_gt_u32 vcc, 16, v{V_LANE}")
    q(f"v_mov_b32 v{D}, {OOB}")
    q(f"v_mov_b32 v{B0+4}, 0")
    q(f"v_cndmask_b32 v{D}, v{D}, v{V_B0}, vcc")
    q(f"buffer_store_dwordx4 {vr(B0+4,4)}, v{D}, {sr(S_KV)}, s43 offen sc1", tag="fold")
    return q

def code_touch(q):
    L = V_LANE
    q("s_getpc_b64 s[46:47]")
    q("LT_pc:")
    q("s_lshr_b32 s48, s2, 3")
    q("s_lshl_b32 s48, s48, 2")
    q(f"s_add_u32 s48, s48, s{S_W}")
    q("s_cmp_gt_u32 s48, 7")
    q("s_cbranch_scc1 LT_nocode")
    q("s_lshl_b32 s48, s48, 13")
    q(f"v_lshlrev_b32 v21, 7, v{L}")
    q(f"v_add_u32 v21, s48, v21")
    q(f"v_min_u32 v21, LK_end-LT_pc-4, v21")
    q.l.append(Raw(f"    global_load_dword v{EP+7}, v21, s[46:47]"))
    q("LT_nocode:")

def late_touch():
    q = Prog()
    L = V_LANE
    q(f"v_mul_u32_u24 v{T3}, 21846, v{L}")
    q(f"v_lshrrev_b32 v{T3}, 16, v{T3}")
    q(f"v_mul_u32_u24 v{T4}, 3, v{T3}")
    q(f"v_sub_u32 v{T4}, v{L}, v{T4}")
    q(f"v_mul_u32_u24 v{T3}, 9216, v{T3}")
    q(f"v_lshl_add_u32 v{T3}, v{T4}, 7, v{T3}")
    q(f"s_mul_i32 s41, s{S_J}, 288")
    q("s_and_b32 s41, s41, 0xffffff80")
    q(f"s_mul_i32 s42, s{S_BT}, {18*9216}")
    q("s_add_u32 s41, s41, s42")
    q(f"buffer_load_dword v{V_A}, v{T3}, {sr(S_WG)}, s41 offen")
    q(f"buffer_load_dword v{V_Bq}, v{T3}, {sr(S_WU)}, s41 offen")
    return q

def token_issue():
    q = Prog(); q(TOKLD); return q
def token_share():
    q = Prog()
    q(f"s_lshl_b32 s40, s{S_W}, 3")
    q(f"s_add_u32 s40, s40, {TOKA}")
    q(f"v_mov_b32 v{T1}, s40")
    q.b(f"v_readfirstlane_b32 s40, v{TKR}", f"s_or_b32 s40, s40, s{S_W}", "s_cbranch_scc0 LT_slow", "LT_ok:")
    s = Prog()
    s("LT_slow:"); s(f"s_mov_b32 s{S_SPIN}, 0"); s("LT_spin:"); s("s_sleep 2"); s(TOKLD); s("s_waitcnt vmcnt(0)")
    s(f"v_readfirstlane_b32 s40, v{TKR}"); s(f"s_add_u32 s{S_SPIN}, s{S_SPIN}, 1"); s("s_cmp_lg_u32 s40, 0"); s("s_cbranch_scc1 LT_ok")
    s(f"s_cmp_lt_u32 s{S_SPIN}, {SPIN}"); s("s_cbranch_scc1 LT_spin"); s("s_branch LT_ok")
    SLOW.append(s)
    q(f"ds_write_b64 v{T1}, {vr(TKR,2)}")
    return q
def token_and_stats():
    q = Prog()
    q(f"v_mov_b32 v{T1}, {TOKA}")
    q(f"ds_read_b64 {vr(TKR,2)}, v{T1}")
    q(f"v_readfirstlane_b32 s{S_TOK}, v{TKR}")
    q(f"v_readfirstlane_b32 s{S_TOK+1}, v{TKR+1}")
    q(f"v_mov_b32 v{STG+2}, v{TKR}")
    q(f"v_mov_b32 v{STG+3}, v{TKR+1}")
    q(f"buffer_store_dwordx4 {vr(STG,4)}, v{GA}, {sr(S_FL)}, 0 offen sc1")
    q.b(f"s_add_u32 s{S_HF}, s{P_WS}, {HF_OFF}", f"s_addc_u32 s{S_HF+1}, s{P_WS+1}, 0")
    q(f"s_mov_b32 s{S_HF+2}, {HF_SZ}")
    return q

def fold_flag():
    q = Prog()
    q(f"s_lshl_b32 s40, s{S_J}, 5")
    q(f"s_add_u32 s40, s40, s{S_BT}")
    q("s_lshl_b32 s40, s40, 3")
    q.wait(vm=["fold"])
    flag_store(q, 40, T1)
    return q

def st_loads():
    return [f"buffer_load_dwordx4 {vr(STG+4*tt,4)}, v{T3}, {sr(S_FL)}, 0 offen offset:{512*tt} sc1" for tt in range(2)]
def fw_load(): return f"buffer_load_dwordx2 {vr(T1,2)}, v{T4}, {sr(S_FL)}, 0 offen sc1"
def handoff_issue():
    q = Prog()
    q(f"s_lshl_b32 s40, s{S_MT}, 2")
    q(f"s_add_u32 s40, s40, s{S_W}")
    q("s_lshl_b32 s40, s40, 10")
    q(f"s_add_u32 s40, s40, {STO}")
    q(f"v_and_b32 v{T3}, 31, v{V_LANE}")
    q(f"v_lshl_add_u32 v{T3}, v{T3}, 4, s40")
    q(f"s_lshl_b32 s40, s{S_J}, 8")
    q(f"v_min_u32 v{T4}, 17, v{V_LANE}")
    q(f"v_lshl_add_u32 v{T4}, v{T4}, 3, s40")
    q(fw_load())
    for l in st_loads(): q(l)
    return q
def fw_check():
    q = Prog(); check_tokens(q, "W", [fw_load()], [T1]); return q
def st_check():
    q = Prog()
    check_tokens(q, "S", st_loads(), [STG+2, STG+6])
    q(f"v_cmp_gt_u32 vcc, 32, v{V_LANE}")
    for tt in range(2):
        q(f"v_cvt_pk_bf16_f32 v{STG+4*tt}, -v{STG+4*tt}, -v{STG+4*tt}")
        q(f"v_mul_f32 v{RL+tt}, s{S_NL2E}, v{STG+4*tt+1}")
    for tt in range(2): q(f"v_cndmask_b32 v{MB+2*tt}, v{CSA+1}, v{STG+4*tt}, vcc")
    return q

def cs_write(reg, area, dist=False):
    q = Prog()
    a = V_CW
    if dist:
        q(f"s_mul_i32 s40, s{S_W}, {SCR_W - 128}")
        q(f"v_add_u32 v{V_Bq}, s40, v{V_CW}")
        a = V_Bq
    if OPTS.get("nofix"): q("s_nop 0")
    else: q.b("s_mov_b64 exec, 0xffff", f"ds_write_b64 v{a}, {vr(reg,2)} offset:{area}", "s_mov_b64 exec, -1", tag="csw")
    return q

def mean_fix(q, st, area, stride=128):
    if OPTS.get("nofix"):
        q("s_nop 0"); return
    t = EP
    for w in range(4): q(f"ds_read_b32 v{t+w}, v{V_CR} offset:{area + w*stride}")
    q(f"v_add_f32 v{t}, v{t}, v{t+1}")
    q(f"v_add_f32 v{t+2}, v{t+2}, v{t+3}")
    q(f"v_add_f32 v{t}, v{t}, v{t+2}")
    q(f"v_cvt_pk_bf16_f32 v{t+1}, v{t}, v{t}")
    q(f"v_lshlrev_b32 v{t+1}, 16, v{t+1}")
    q(f"v_sub_f32 v{t+1}, v{t}, v{t+1}")
    q(f"v_cvt_pk_bf16_f32 v{CSA}, v{t}, v{t+1}")
    for tt in range(2):
        q(f"{MF8} {vr(acc(st,tt),16)}, {vr(CSA,2)}, {vr(MB+2*tt,2)}, {vr(acc(st,tt),16)}")

def ffn_epi(st, c, q=None):
    q = q or Prog()
    u, xy = c // 2, c & 1
    for tt in range(2):
        a = acc(st, tt)
        for r in range(8): q(f"v_mul_f32 v{EP+r}, {'s55' if OPTS.get('sgp') else 'v%d' % (RL+tt)}, v{a+r}")
        for r in range(8): q(f"v_exp_f32 v{EP+r}, v{EP+r}")
        for r in range(8): q(f"v_mul_f32 v{a+r}, v{a+r}, v{a+8+r}")
        for r in range(8): q(f"v_add_f32 v{EP+r}, 1.0, v{EP+r}")
        for r in range(8): q(f"v_rcp_f32 v{EP+r}, v{EP+r}")
        q(f"s_add_u32 s{S_SO2}, s{S_CG+u}, {xy*512 + tt*294912}")
        for r in range(8): q(f"v_mul_f32 v{a+r}, v{a+r}, v{EP+r}")
        for r in range(4): q(f"v_cvt_pk_bf16_f32 v{a+8+r}, v{a+2*r}, v{a+2*r+1}")
        if OPTS.get("nost"): q("s_nop 0")
        else: q(f"buffer_store_dwordx4 {vr(a+8,4)}, v{V_H}, {sr(S_HF)}, s{S_SO2} offen {OPTS.get('hst', 'sc1')}", tag=f"h{c}")
    return q

def softmax2(q, src, outs, rl):
    m, n, t, c1, c2, t2 = SM, SM+1, SM+2, SM+3, SM+4, SM+5
    q(f"v_max3_f32 v{m}, v{src[0]}, v{src[1]}, v{src[2]}")
    q(f"v_max3_f32 v{n}, -v{src[0]}, -v{src[1]}, -v{src[2]}")
    q(f"v_max3_f32 v{c1}, v{src[3]}, v{src[4]}, v{src[5]}")
    q(f"v_max3_f32 v{c2}, -v{src[3]}, -v{src[4]}, -v{src[5]}")
    q(f"v_max3_f32 v{t}, v{src[6]}, v{src[7]}, v{src[8]}")
    q(f"v_max3_f32 v{t2}, -v{src[6]}, -v{src[7]}, -v{src[8]}")
    q(f"v_max3_f32 v{m}, v{m}, v{c1}, v{t}")
    q(f"v_max3_f32 v{n}, v{n}, v{c2}, v{t2}")
    q(f"v_permlane32_swap_b32 v{m}, v{n}")
    q(f"v_max_f32 v{m}, v{m}, v{n}")
    q(f"v_mul_f32 v{m}, v{rl}, v{m}")
    q(f"v_mov_b32 v{n}, v{m}")
    q(f"v_permlane32_swap_b32 v{m}, v{n}")
    for i in range(9): q(f"v_fma_f32 v{E+i}, v{src[i]}, v{rl}, v{n}")
    for i in range(9): q(f"v_fma_f32 v{src[i]}, -v{src[i]}, v{rl}, v{m}")
    for i in range(9): q(f"v_exp_f32 v{E+i}, v{E+i}")
    for i in range(9): q(f"v_exp_f32 v{src[i]}, v{src[i]}")
    q(f"v_add_f32 v{n}, v{E}, v{E+1}")
    q(f"v_add_f32 v{c2}, v{E+2}, v{E+3}")
    q(f"v_add_f32 v{m}, v{src[0]}, v{src[1]}")
    q(f"v_add_f32 v{c1}, v{src[2]}, v{src[3]}")
    for i in (4, 6):
        q(f"v_add_f32 v{n}, v{n}, v{E+i}")
        q(f"v_add_f32 v{c2}, v{c2}, v{E+i+1}")
        q(f"v_add_f32 v{m}, v{m}, v{src[i]}")
        q(f"v_add_f32 v{c1}, v{c1}, v{src[i+1]}")
    q(f"v_add_f32 v{n}, v{n}, v{E+8}")
    q(f"v_add_f32 v{m}, v{m}, v{src[8]}")
    q(f"v_add_f32 v{n}, v{n}, v{c2}")
    q(f"v_add_f32 v{m}, v{m}, v{c1}")
    q(f"v_permlane32_swap_b32 v{m}, v{n}")
    q(f"v_add_f32 v{m}, v{m}, v{n}")
    q(f"v_rcp_f32 v{m}, v{m}")
    q(f"v_mov_b32 v{n}, v{m}")
    q(f"v_permlane32_swap_b32 v{m}, v{n}")
    for i in range(9): q(f"v_mul_f32 v{src[i]}, v{src[i]}, v{m}")
    for i in range(9): q(f"v_mul_f32 v{E+i}, v{E+i}, v{n}")
    allv = list(src) + [E + i for i in range(9)]
    for i in range(9): q(f"v_cvt_pk_bf16_f32 v{outs[i]}, v{allv[2*i]}, v{allv[2*i+1]}")

def moves_a2(q):
    for tt in range(2): q(f"v_mul_f32 v{SM+tt}, 0x{np_f32(-1/L2E):08x}, v{RL+tt}")
    for tt in range(2):
        a = acc(0, tt); m = MV + 8*tt
        q(f"v_mov_b32 v{m+6}, v{a}")
        q(f"v_mov_b32 v{m+7}, v{a+1}")
        for r in range(9): q(f"v_mul_f32 v{a+2+r}, v{a+2+r}, v{SM+tt}")
        for r in range(4): q(f"v_cvt_pk_bf16_f32 v{m+r}, v{a+2+2*r}, v{a+3+2*r}")
        q(f"v_cvt_pk_bf16_f32 v{m+4}, v{a+10}, 1.0")

PA = KA + 24
def k_part(q):
    KF = E
    for tt in range(2):
        a = acc(4, tt); m = MV + 8*tt
        src = [a+9+i for i in range(7)] + [m+6, m+7]
        outs = [a+10, a+11, a+12, a+13, a+14, a+15, E, E+1, m+5]
        softmax2(q, src, outs, RL+tt)
        for off, r in ((0, a+10), (16, a+12), (32, a+14), (48, E), (64, m), (80, m+2), (96, m+4)):
            q(f"ds_write_b64 v{V_SW}, {vr(r,2)} offset:{off}")
        for f, cb in enumerate((0, 16, 32, 48)):
            for sec in range(2):
                q(f"ds_read_b64_tr_b16 {vr(KF+4*f+2*sec,2)}, v{V_SR} offset:{sec*4*SROW + cb*2}")
        part_addr(q, tt)
        for rt, fa in enumerate((0, 1, 3)):
            for ct, fb in enumerate((2, 3)):
                d = KA + 4*(2*rt + ct)
                q(f"{MF16} {vr(d,4)}, {vr(KF+4*fa,4)}, {vr(KF+4*fb,4)}, {vr(d,4) if tt else '0'}")
    A1, A2, A4, A5 = PA, PA+1, PA+2, PA+3
    q(f"ds_write_b128 v{A1}, {vr(KA,4)}")
    q(f"ds_write_b128 v{A1}, {vr(KA+8,4)} offset:1024")
    q.b("s_mov_b32 exec_lo, 0xff00ff", "s_mov_b32 exec_hi, 0xff00ff", f"ds_write_b128 v{A2}, {vr(KA+4,4)} offset:2048",
        f"ds_write_b128 v{A2}, {vr(KA+12,4)} offset:2560", "s_mov_b32 exec_hi, 0", f"ds_write_b64 v{A5}, {vr(KA+22,2)} offset:3328",
        "s_mov_b32 exec_lo, -1", f"ds_write_b64 v{A4}, {vr(KA+18,2)} offset:3072", "s_mov_b32 exec_hi, -1")

def part_addr(q, half):
    L = V_LANE; A1, A2, A4, A5 = PA, PA+1, PA+2, PA+3
    if half == 0:
        q(f"s_mul_i32 s40, s{S_W}, {SCR_W}")
        q(f"s_add_u32 s40, s40, {SCR}")
        q(f"v_lshl_add_u32 v{A1}, v{L}, 4, s40")
        q(f"v_lshrrev_b32 v{V_A}, 4, v{L}")
        q(f"v_and_b32 v{V_Bq}, 15, v{L}")
        q(f"v_lshl_add_u32 v{V_A}, v{V_A}, 3, v{V_Bq}")
        q(f"v_lshl_add_u32 v{A2}, v{V_A}, 4, s40")
        q(f"v_lshl_add_u32 v{A4}, v{L}, 3, s40")
        q(f"v_lshl_add_u32 v{A5}, v{V_A}, 3, s40")

def kv_reduce():
    q = Prog()
    L = V_LANE; A1, A2, G1_, G2_ = T1, T2, T3, T4
    T = MV
    q(f"s_and_b32 s40, s{S_W}, 1")
    q(f"s_lshr_b32 s41, s{S_W}, 1")
    q.b("s_cmp_eq_u32 s41, 0", "s_cselect_b64 vcc, -1, 0")
    q(f"v_cndmask_b32 v{A1}, v{V_A}, v{L}, vcc")
    q("s_lshl_b32 s42, s40, 10")
    q("s_lshl_b32 s43, s40, 9")
    q("s_add_u32 s43, s43, 2048")
    q.b("s_cmp_eq_u32 s41, 0", "s_cselect_b32 s42, s42, s43")
    q(f"s_add_u32 s42, s42, {SCR}")
    q(f"v_lshl_add_u32 v{A1}, v{A1}, 4, s42")
    for w in range(4): q(f"ds_read_b128 {vr(T+4*w,4)}, v{A1} offset:{w*SCR_W}")
    q.b("s_cmp_eq_u32 s40, 0", "s_cselect_b64 vcc, -1, 0")
    q(f"v_cndmask_b32 v{A2}, v{V_A}, v{L}, vcc")
    q("s_lshl_b32 s42, s40, 8")
    q(f"s_add_u32 s42, s42, {SCR+3072}")
    q(f"v_lshl_add_u32 v{A2}, v{A2}, 3, s42")
    U = (RA+12, RA+14, RA+28, RA+30)
    for w in range(4): q(f"ds_read_b64 {vr(U[w],2)}, v{A2} offset:{w*SCR_W}")
    q(f"v_lshrrev_b32 v{G1_}, 5, v{L}")
    q(f"v_lshlrev_b32 v{G1_}, 10, v{G1_}")
    q(f"v_bfe_u32 v{G2_}, v{L}, 4, 1")
    q(f"v_lshlrev_b32 v{G2_}, 7, v{G2_}")
    q(f"v_lshl_add_u32 v{G2_}, v{V_Bq}, 2, v{G2_}")
    q("s_lshl_b32 s42, s40, 11")
    q("s_lshl_b32 s43, s41, 6")
    q("s_add_u32 s42, s42, s43")
    q(f"v_add3_u32 v{G1_}, v{G1_}, v{G2_}, s42")
    q("s_lshl_b32 s43, s41, 3")
    q("s_sub_u32 s43, 16, s43")
    q(f"v_cmp_gt_u32 vcc, s43, v{V_Bq}")
    q(f"v_mov_b32 v{A1}, {OOB}")
    q(f"v_cndmask_b32 v{G1_}, v{A1}, v{G1_}, vcc")
    q("s_lshl_b32 s42, s40, 6")
    q("s_add_u32 s42, s42, 4096")
    q(f"v_add_u32 v{G2_}, s42, v{G2_}")
    q("s_lshl_b32 s43, s40, 3")
    q("s_sub_u32 s43, 16, s43")
    q.b("s_cmp_eq_u32 s41, 0", "s_cselect_b32 s43, s43, 0")
    q(f"v_cmp_gt_u32 vcc, s43, v{V_Bq}")
    q(f"v_cmp_gt_u32 s[42:43], 32, v{L}")
    q("s_and_b64 vcc, vcc, s[42:43]")
    q(f"v_cndmask_b32 v{G2_}, v{A1}, v{G2_}, vcc")
    for i in range(4):
        q(f"v_add_f32 v{T+i}, v{T+i}, v{T+4+i}")
        q(f"v_add_f32 v{T+8+i}, v{T+8+i}, v{T+12+i}")
    for i in range(2):
        q(f"v_add_f32 v{U[0]+i}, v{U[0]+i}, v{U[1]+i}")
        q(f"v_add_f32 v{U[2]+i}, v{U[2]+i}, v{U[3]+i}")
    for i in range(4): q(f"v_add_f32 v{T+i}, v{T+i}, v{T+8+i}")
    for i in range(2): q(f"v_add_f32 v{U[0]+i}, v{U[0]+i}, v{U[2]+i}")
    for i in range(4):
        q(f"buffer_atomic_add_f32 v{T+i}, v{G1_}, {sr(S_KV)}, s{S_KVB} offen offset:{i*256}", tag="atom")
    for i in range(2):
        q(f"buffer_atomic_add_f32 v{U[0]+i}, v{G2_}, {sr(S_KV)}, s{S_KVB} offen offset:{i*256}", tag="atom")
    return q

def fk_publish():
    q = Prog()
    q(f"s_lshl_b32 s40, s{S_J}, 5")
    q(f"s_add_u32 s40, s40, s{S_BT}")
    q("s_lshl_b32 s40, s40, 3")
    q(f"s_add_u32 s40, s40, {FL_K}")
    q.wait(vm=["atom"])
    flag_store(q, 40, T1)
    q(f"s_lshl_b32 s40, s{S_J}, 8")
    q(f"s_add_u32 s40, s40, {FL_K}")
    q(f"v_and_b32 v{T3}, 31, v{V_LANE}")
    q(f"v_lshl_add_u32 v{T3}, v{T3}, 3, s40")
    q(f"v_lshlrev_b32 v{T4}, 2, v{V_LANE}")
    return q
def fk_load(): return f"buffer_load_dwordx2 {vr(T1,2)}, v{T3}, {sr(S_FL)}, 0 offen sc1"
KVL = MV; KVF = 100
def fk_check_and_load():
    q = Prog()
    check_tokens(q, "K", [fk_load()], [T1])
    q(f"s_add_u32 s40, s{S_KVB}, 4096")
    for s in range(18):
        so = f"s{S_KVB}" if s < 16 else "s40"
        q(f"buffer_load_dword v{KVL+s}, v{T4}, {sr(S_KV)}, {so} offen offset:{(s&15)*256} sc1")
    return q

def q_part():
    q = Prog()
    for tt in range(2):
        a = acc(4, tt)
        softmax2(q, [a+i for i in range(9)], [a+i for i in range(9)], RL+tt)
        for r in (9, 10, 11): q(f"v_mov_b32 v{a+r}, 0")
    return q

def o_finish():
    q = Prog()
    for i in range(9): q(f"v_cvt_pk_bf16_f32 v{KVF+i}, v{KVL+2*i}, v{KVL+2*i+1}")
    for r in (9, 10, 11): q(f"v_mov_b32 v{KVF+r}, 0")
    D_ = (acc(0, 0), acc(0, 1))
    q(f"s_lshl_b32 s40, s{S_MT}, 3")
    q(f"s_lshl_b32 s41, s{S_W}, 1")
    q("s_add_u32 s40, s40, s41")
    q("s_mul_i32 s40, s40, 40960")
    q(f"s_mul_i32 s41, s{S_J}, 1280")
    q("s_add_u32 s40, s40, s41")
    q("s_add_u32 s41, s40, 40960")
    for f in range(3):
        for tt in range(2):
            q(f"{MF} {vr(D_[tt],16)}, {vr(KVF+4*f,4)}, {vr(acc(4,tt)+4*f,4)}, {vr(D_[tt],16) if f else '0'}")
    for tt in range(2):
        d = D_[tt]
        q(f"v_add_f32 v{d+12}, 0x{np_f32(1e-6):08x}, v{d+9}")
        q(f"v_rcp_f32 v{d+12}, v{d+12}")
    for tt in range(2):
        d = D_[tt]
        for r in range(9): q(f"v_mul_f32 v{d+r}, v{d+r}, v{d+12}")
        for r in range(4): q(f"v_cvt_pk_bf16_f32 v{d+r}, v{d+2*r}, v{d+2*r+1}")
        q(f"v_cvt_pk_bf16_f32 v{d+4}, v{d+8}, 0")
        for r in range(5): q(f"buffer_store_dword v{d+r}, v{T4}, {sr(S_OF)}, s{40+tt} offen offset:{r*256} sc1")
    return q

def wd_prefetch(half):
    q = Prog()
    if half:
        q(f"v_add_u32 v{V_B0}, 4096, v{V_B0}")
        q(f"buffer_load_dword v{T2}, v{V_B0}, {sr(S_X)}, s{S_WFB} offen")
        return q
    q("s_lshl_b32 s40, s2, 2")
    q(f"s_add_u32 s40, s40, s{S_W}")
    q.b("s_cmp_lt_u32 s40, 648", f"s_cselect_b32 s{S_X}, s{P_WD}, s{P_WO}", f"s_cselect_b32 s{S_X+1}, s{P_WD+1}, s{P_WO+1}",
        f"s_cselect_b32 s41, 0, 648")
    q.b("s_cmp_lt_u32 s40, 648", f"s_mov_b32 s42, {WOIN_SZ}", f"s_cselect_b32 s{S_X+2}, {WG_SZ}, s42")
    q("s_sub_u32 s40, s40, s41")
    q(f"s_lshl_b32 s{S_WFB}, s40, 13")
    q(f"v_and_b32 v{V_B0}, 31, v{V_LANE}")
    q(f"v_lshlrev_b32 v{V_B0}, 7, v{V_B0}")
    q(f"buffer_load_dword v{T1}, v{V_B0}, {sr(S_X)}, s{S_WFB} offen")
    return q

def wg_flag(arr, tmp):
    q = Prog()
    q(f"s_add_u32 s40, s{S_FI}, s{S_W0}")
    q(f"s_add_u32 s40, s40, {arr}")
    flag_store(q, 40, tmp)
    return q

BFA = V_A
def b_decode():
    q = Prog()
    q("s_and_b32 s40, s2, 7")
    q("s_lshr_b32 s41, s2, 3")
    q("s_mul_i32 s42, s40, 29")
    q("s_min_u32 s43, s40, 2")
    q("s_add_u32 s42, s42, s43")
    q(f"s_add_u32 s{S_BT}, s42, s41")
    q.b("s_cmp_lt_u32 s40, 2", "s_cselect_b32 s43, 30, 29")
    q.b("s_cmp_lt_u32 s41, s43", f"s_cselect_b32 s{S_BT}, s{S_BT}, 255")
    q(f"s_mul_i32 s40, s{S_BT}, 7282")
    q("s_lshr_b32 s40, s40, 16")
    q("s_mul_i32 s40, s40, 80")
    q("s_add_u32 s41, s40, 79")
    q("s_min_u32 s40, s40, 2047")
    q("s_min_u32 s41, s41, 2047")
    q("s_and_b32 s40, s40, 0xf00")
    q("s_and_b32 s41, s41, 0xf00")
    q("s_sub_u32 s41, s41, 256")
    q(f"v_mov_b32 v{BFA}, s40")
    q(f"v_mov_b32 v{V_Bq}, s41")
    q(f"v_cmp_gt_u32 vcc, 32, v{V_LANE}")
    q(f"v_cndmask_b32 v{BFA}, v{V_Bq}, v{BFA}, vcc")
    q(f"v_lshl_add_u32 v{BFA}, v{V_LANE}, 3, v{BFA}")
    q(f"v_add_u32 v{BFA}, {FL_1}, v{BFA}")
    q(f"buffer_load_dwordx2 {vr(T1,2)}, v{BFA}, {sr(S_FL)}, 0 offen sc1")
    q.b("s_getpc_b64 s[42:43]", "LB_pc:")
    q(f"s_mul_i32 s40, s{S_W}, 36")
    q.l.append(Sized("s_add_u32 s40, s40, LK_tab-LB_pc", 8))
    q(f"v_min_u32 v{V_Bq}, 35, v{V_LANE}")
    q(f"v_add_u32 v{V_Bq}, s40, v{V_Bq}")
    q(f"global_load_ubyte v{V_Bq}, v{V_Bq}, s[42:43]")
    return q

def stage_a(p):
    frags = []
    def tr(p_, off): return [("ds_read_b64_tr_b16", 0, 2, TR + p_, off), ("ds_read_b64_tr_b16", 2, 2, TR + p_, off + 256)]
    for g in range(9):
        for p_ in range(4):
            for c in range(4):
                upd = []
                if g and c == 0: upd = [f"v_add_u32 v{TR+p_}, {SLOT if g % 3 else (-2*SLOT) & 0xffffffff}, v{TR+p_}"]
                frags.append((tr(p_, (c >> 1)*512 + (c & 1)*32), c, 4*g + p_, CS4 + 4*c if p_ == 0 else None, upd))
    chains = ["A1", "A2", 4, 5, 6, 7, 8]
    cset = {"A1": 4, "A2": 0, 4: 2, 5: 3, 6: 0, 7: 2, 8: 3}
    cs = {}
    for k, c in enumerate(chains):
        cs[c] = len(frags)
        for s in range(36):
            g, p_ = s >> 2, s & 3
            upd = []
            if c in ("A1", "A2"):
                if s < 4: upd = [f"s_add_u32 s{S_SPIN}, s{S_WX+p_}, {0 if c == 'A1' else BUP}", f"v_add_u32 v{TR+p_}, s{S_SPIN}, v{V_B0}"]
                rd = [("ds_read_b128", 0, 4, TR + p_, g*4096)]
            else:
                if s < 4 and not (c & 1): upd = [f"s_add_u32 s{S_SPIN}, s{S_WX+p_}, {BUF[(c//2 + 1) & 1]}", f"v_add_u32 v{TR+p_}, s{S_SPIN}, v{V_TRL}"]
                rd = tr(p_, g*4096 + (c & 1)*32)
            frags.append((rd, cset[c], s, CSACC + 4*(k & 1) if p_ == 0 else None, upd))
    NF = len(frags)
    bars = {16*g: [f"W{g}"] for g in range(9)}
    bars[cs["A1"]] = ["T0"]
    bars[cs["A2"]] = ["T1"]
    bars[cs[4]] = ["U2"]
    bars[cs[6]] = ["U3"] + [f"h{c}" for c in range(4)]
    bars[cs[8]] = ["U4", "h4", "h5"]
    def reads(n):
        slot = RING + 4*(n & 3)
        return [I(t) for t in frags[n][4]] + [I(f"{op} {vr(slot+o,cnt)}, v{va} offset:{off}", tag=f"fr{n}") for (op, o, cnt, va, off) in frags[n][0]]
    def barrier(tags): return [WaitTag(vm=tags), I("s_waitcnt lgkmcnt(0)"), I("s_barrier")]
    p.add(x_copy(0))
    p.add(barrier(bars[0]))
    p.add(stamp(1))
    p.add(st5(7))
    for n in range(4): p.add(reads(n))
    main = []; G = {}
    for n in range(NF):
        _, st, s, csa, _ = frags[n]
        G[n] = len(main)
        slot = RING + 4*(n & 3)
        mf = [I(f"{MF} {vr(acc(st,tt),16)}, {vr(slot,4)}, {xreg(tt,s)}, {vr(acc(st,tt),16) if s else '0'}") for tt in range(2)]
        f0 = barrier(bars[n + 3]) + reads(n + 3) if (n + 3 < NF and (n + 3) in bars and n + 3 >= 4) else []
        f1 = []
        if n + 1 < NF: f1.append(WaitTag(lg=[f"fr{n+1}"]))
        if n + 4 < NF and (n + 4) not in bars: f1 += reads(n + 4)
        if csa is not None and not OPTS.get("nocs"):
            main.append((I(f"{MF16} {vr(csa,4)}, {vr(SEL,4)}, {vr(slot,4)}, {vr(csa,4) if s else '0'}"), []))
        main.append((mf[0], f0)); main.append((mf[1], f1))
    G[NF] = len(main)
    C = {c: G[cs[c]] for c in cs}; C[9] = G[NF]
    def bar_gap(n): return G[n - 3] + (1 if (frags[n-3][3] is not None and not OPTS.get("nocs")) else 0)
    S = []
    def add(a, b, q, after=None, paced=False):
        S.append((a, b, q, after, paced)); return len(S) - 1
    for g in range(9):
        a, b = G[16*g], bar_gap(16*(g+1))
        q = Prog()
        if g == 0 and not OPTS.get("g1pre", 1): q.add(ring_group(1))
        if g + 2 < 9: q.add(ring_group(g + 2)); add(a, b + 5 - OPTS.get("rend", 0), q, None, OPTS.get("rpace", 1) == 1)
        if g + 1 < 9: add(b - 10, b, x_copy(g + 1))
    add(OPTS.get("f0", 12), G[42], fold_stream())
    add(G[20], G[21], token_issue())
    add(G[42], bar_gap(48), token_share())
    add(G[48], G[53], token_and_stats())
    add(G[72], G[75], fold_flag())
    add(G[16*6] + 8, G[16*6] + 16, handoff_issue())
    k = add(G[16*7], G[16*7] + 2, fw_check())
    add(G[16*7] + 2, bar_gap(16*8) - 10, dma_wf(0), None, True)
    add(G[16*8] + 14, G[16*8] + 22, st_check())
    q = Prog()
    for c in range(4): q.add(cs_write(CS4 + 4*c, 512*c))
    add(G[16*8 + 5], bar_gap(cs["A1"]), q)
    add(G[16*8], G[16*8] + 26, dma_wf(1), None, True)
    q = Prog()
    for g in range(9): q.add(dma_unit_group(2, g))
    add(C["A1"] - 4, C["A2"] + OPTS.get("dend", 10), q, None, True)
    for u, c in ((3, 4), (4, 6)):
        q = Prog()
        for g in range(9): q.add(dma_unit_group(u, g))
        add(C[c] - 4, C[c+1] + OPTS.get("dend", 10), q, None, True)
    area = {"A1": 2048, "A2": CSX, 4: CSX + 512, 5: CSX + 1024, 6: CSX, 7: CSX + 512, 8: CSX + 1024}
    nxt = {"A1": "A2", "A2": 4, 4: 5, 5: 6, 6: 7, 7: 8}
    MB_ = 12
    for k_, c in enumerate(chains[:-1]):
        add(C[nxt[c]] - 3, C[nxt[c]] + 6, cs_write(CSACC + 4*(k_ & 1), area[c]))
        if c != 4:
            g = C[nxt[c]] + MB_ - 1
            main[g] = (main[g][0], [WaitTag(lg=["csw"]), I("s_barrier")] + main[g][1])
    prev = None
    q = Prog()
    mean_fix(q, 0, 0); mean_fix(q, 1, 512); ffn_epi(0, 0, q); mean_fix(q, 2, 1024)
    prev = add(C["A1"] - 3, C["A2"] - 30, q)
    q = Prog(); ffn_epi(1, 1, q); mean_fix(q, 3, 1536)
    prev = add(C["A1"], C["A2"] + 5, q, prev)
    prev = add(C["A2"], C[4] - 40, ffn_epi(2, 2), prev)
    q = Prog(); mean_fix(q, 4, area["A1"]); ffn_epi(3, 3, q)
    prev = add(C["A2"] + MB_, C[4] + 6, q, prev)
    q = Prog(); mean_fix(q, 0, area["A2"])
    fixa2 = prev = add(C[4] + MB_, C[4] + MB_ + 10, q, prev)
    for c, st, a, dl in ((4, 2, C[6], C[7] - 1), (5, 3, C[6] + MB_, bar_gap(cs[8]) - 30), (6, 0, C[7] + MB_, C[8] + 10), (7, 2, C[8] + MB_, C[9])):
        q = Prog(); mean_fix(q, st, area[c]); ffn_epi(st, c, q)
        prev = add(a, dl, q, prev)
    q = Prog(); moves_a2(q); k_part(q)
    kp = add(C[4] + MB_, C[5] + 50, q, fixa2)
    add(C["A2"] + 10, C["A2"] + 20, wd_prefetch(0))
    add(C[5] + 12, C[5] + 14, wd_prefetch(1))
    red = add(C[6] - 2, C[6] + 30, kv_reduce())
    add(C[6] + 30, C[6] + 34, wg_flag(FL_1, T1))
    add(C[5], C[7] + 30, q_part(), kp)
    add(C[8] - 2, C[8] + 2, wg_flag(FL_M, V_A))
    add(C[6] + 62, C[7], fk_publish())
    q = Prog(); q(fk_load()); add(C[7] + 40, C[7] + 42, q)
    add(C[8] + 2, C[8] + 40, fk_check_and_load(), None, True)
    add(C[8] + 40, C[9] - 18, o_finish())
    add(C[9] - 18, C[9] - 4, b_decode())
    if OPTS.get("time") == 2:
        for i, g in enumerate([C["A1"], C["A2"], C[4], C[5], C[6], C[7], C[8]]):
            main[g-1] = (main[g-1][0], main[g-1][1] + [I(f"s_memtime {sr(STAMPS[i+1],2)}")])
        p(f"s_memtime {sr(STAMPS[0],2)}")
    if OPTS.get("time") == 4:
        for i in range(1, 8):
            g = G[16*(i + 1)] if i > 1 else G[16]
            main[g-1] = (main[g-1][0], main[g-1][1] + [I(f"s_memtime {sr(STAMPS[i],2)}")])
        p(f"s_memtime {sr(STAMPS[0],2)}")
    import asmgen
    asmgen.BYTES32 = OPTS.get("b32", 48); asmgen.CARRY = OPTS.get("carry", 8); asmgen.VMEM_COST = OPTS.get("vmc", 2)
    woven, loads = weave(main, S, OPTS.get('cap', 6))
    if OPTS.get("verbose"):
        print("done at", weave.done_at, C, file=sys.stderr)
        pts = [0, 72, 144, 216] + [C[c] for c in chains] + [C[9]]
        for a, b in zip(pts[:-1], pts[1:]):
            print("gaps", a, b, "slack", -sum(loads[a:b]), "over", sum(max(0, x) for x in loads[a:b]), file=sys.stderr)
    p.add(woven)
    AREA8[0] = area[8]
    a_tail_and_b(p, area[8])
NSLOT = 6
B_WD, B_WO, B_X, B_OUT = 4, 8, 12, 16
B_M, B_N, B_HB, B_WDB, B_HO, B_WDO, B_LB, B_IT, B_IX = 37, 38, 45, 46, 47, 48, 49, 50, 51
BV_H, BV_D, BV_T, BV_O, BV_XO, BV_R, BV_FD, BT0, BT1 = 16, 21, 25, 26, 31, 34, 36, 38, 39
BV_TAB, BV_FA = V_Bq, V_A
ACC1, ACC2, AF, XR, BV_RS = 48, 128, 208, 2, 40
TMP = 232
RED1 = 4 * NSLOT * 4096; RB = 0
def hreg(slot, tt): return ar(20*slot + 4*tt, 4)
def accr(base, tt, nt): return base + 16*tt + 4*nt

def issue_down(p, slot):
    p(f"v_readlane_b32 s40, v{BV_TAB}, s{B_IX}")
    p(f"s_add_u32 s{B_IX}, s{B_IX}, 1")
    p(f"s_lshl_b32 s41, s40, 10")
    p(f"s_add_u32 s{B_HO}, s{B_HB}, s41")
    p(f"s_mul_i32 s41, s40, {32*1152}")
    p(f"s_add_u32 s{B_WDO}, s{B_WDB}, s41")
    for i in range(4):
        p(f"s_add_u32 m0, s{B_LB}, {slot*4096 + i*1024}")
        p(f"buffer_load_dwordx4 {hreg(slot,i)}, v{BV_H+i}, {sr(S_HF)}, s{B_HO} offen sc1")
        p(f"buffer_load_dwordx4 v{BV_D+i}, {sr(B_WD)}, s{B_WDO} offen lds", tag=f"D{slot}")
    p(f"buffer_load_dwordx4 {hreg(slot,4)}, v{BV_H+4}, {sr(S_HF)}, s{B_HO} offen sc1")

def issue_s(p, slot, i):
    p(f"s_lshl_b32 s40, s{S_W}, 4")
    p(f"s_add_u32 s40, s40, {64*i}")
    p("s_lshl_b32 s41, s40, 7")
    for i4 in range(4):
        a = TMP + 4*i4
        p(f"v_add3_u32 v{a}, v{TMP+16}, s40, {4*i4}")
        p(f"v_mul_u32_u24 v{a+1}, 6554, v{a}")
        p(f"v_lshrrev_b32 v{a+1}, 16, v{a+1}")
        p(f"v_mul_u32_u24 v{a+2}, 10, v{a+1}")
        p(f"v_sub_u32 v{a+2}, v{a}, v{a+2}")
        p(f"v_lshl_add_u32 v{a}, v{a+1}, 3, v{a}")
        p(f"v_mul_u32_u24 v{a}, 1152, v{a}")
        p(f"v_add_u32 v{a}, v{a}, v{TMP+17}")
        p(f"v_cmp_gt_u32 vcc, 9, v{a+2}")
        p(f"v_cndmask_b32 v{a}, v{TMP+18}, v{a}, vcc")
        p(f"s_add_u32 m0, s{B_LB}, {slot*4096 + i4*1024}")
        p("s_nop 0")
        p(f"buffer_load_dwordx4 v{a}, {sr(B_WO)}, 0 offen lds", tag=f"D{slot}")
    for tt in range(5):
        for k in range(4):
            p(f"buffer_load_dword a{20*slot+4*tt+k}, v{BV_O+tt}, {sr(S_OF)}, s41 offen offset:{256*k} sc1")

def compute(p, slot, accb, manual, first=False):
    af = AF + (0 if accb == ACC2 else 0)
    if not manual: p.wait(vm=[f"D{slot}"])
    for nt in range(4):
        for sec in range(2):
            p(f"ds_read_b64_tr_b16 {vr(af+4*nt+2*sec,2)}, v{BV_T} offset:{slot*4096 + nt*8 + sec*1024}")
    for nt in range(4):
        if manual: p(f"s_waitcnt lgkmcnt({6-2*nt})")
        for tt in range(5):
            d = accr(accb, tt, nt)
            p(f"{MF16} {vr(d,4)}, {vr(af+4*nt,4)}, {hreg(slot,tt)}, {'0' if first else vr(d,4)}")

def time_out(p):
    if not OPTS.get("time"): return
    p("s_waitcnt vmcnt(0)")
    p.add(stamp(8))
    if OPTS.get("dbg"):
        p("s_load_dwordx2 s[46:47], s[0:1], 72")
        p("s_waitcnt lgkmcnt(0)")
        srd(p, 40, 46, 0, 256)
        p("s_and_b32 s44, s2, 63")
        p(f"s_or_b32 s44, s44, s{S_W}")
        p(f"s_cmp_eq_u32 s44, 0")
        p(f"s_cselect_b32 s44, 0, {OOB}")
        p("s_lshr_b32 s45, s2, 6")
        p("s_mul_i32 s45, s45, 12")
        p("s_add_u32 s44, s44, s45")
        p("s_add_u32 s44, s44, 16")
        for k, i in enumerate((1, 2, 8)):
            p(f"s_sub_u32 s45, s{STAMPS[i]}, s{STAMPS[0]}")
            p(f"v_mov_b32 v{28+k}, s45")
        p(f"buffer_store_dwordx3 v[28:30], v{V_FL}, s[40:43], s44 offen")
        return
    srd(p, 40, P_WS, WS_USED, 131072)
    p("s_waitcnt lgkmcnt(0)")
    for i in range(9): p(f"v_mov_b32 v{28+i}, s{STAMPS[i]}")
    p("s_lshl_b32 s44, s2, 2")
    p(f"s_add_u32 s44, s44, s{S_W}")
    p("s_lshl_b32 s44, s44, 6")
    p("v_mov_b32 v26, s44")
    p("buffer_store_dwordx4 v[28:31], v26, s[40:43], 0 offen")
    p("buffer_store_dwordx4 v[32:35], v26, s[40:43], 0 offen offset:16")
    p("buffer_store_dword v36, v26, s[40:43], 0 offen offset:32")

def zipweave(a, b):
    a = flat(a); b = flat(b)
    out = []; ia = ib = 0
    while ia < len(a) or ib < len(b):
        if ib >= len(b) or (ia < len(a) and ia * len(b) <= ib * len(a)):
            out.append(a[ia]); ia += 1
        else:
            out.append(b[ib]); ib += 1
    return out

def red_write(p, accb, w, base):
    for u in range(10):
        o = u % 4
        if o == w: continue
        tt, np_ = u >> 1, u & 1
        off = base + (u*3 + (w - o - 1) % 4) * 2048
        for h_ in range(2):
            p(f"ds_write_b128 v{BV_R + (off >> 16)}, {vr(accr(accb,tt,2*np_+h_),4)} offset:{(off & 0xffff) + h_*1024}")
def red_read(p, accb, u, base, t):
    tt, np_ = u >> 1, u & 1
    a = accr(accb, tt, 2*np_)
    for sl in range(3):
        off = base + (u*3 + sl) * 2048
        for h_ in range(2):
            p(f"ds_read_b128 {vr(t+8*sl+4*h_,4)}, v{BV_R + (off >> 16)} offset:{(off & 0xffff) + h_*1024}")
def red_add(p, accb, u, t):
    tt, np_ = u >> 1, u & 1
    a = accr(accb, tt, 2*np_)
    for sl in range(3):
        for r in range(8): p(f"v_add_f32 v{a+r}, v{a+r}, v{t+8*sl+r}")

def a_tail_and_b(p, area8):
    L = V_LANE
    p.add(cs_write(CSACC, area8))
    p(f"s_add_u32 s{S_WFB}, s{S_FI}, s{S_W0}")
    p(f"s_add_u32 s{S_WFB}, s{S_WFB}, {FL_2}")
    p(f"s_mul_i32 s43, s{S_BT}, 7282")
    p(f"s_lshr_b32 s{B_M}, s43, 16")
    p(f"s_mul_i32 s43, s{B_M}, 9")
    p(f"s_sub_u32 s{B_N}, s{S_BT}, s43")
    srd(p, B_WD, P_WD, 0, WG_SZ)
    p(f"v_lshlrev_b32 v{BV_H}, 4, v{L}")
    for tt in range(1, 5): p(f"v_add_u32 v{BV_H+tt}, {tt*147456}, v{BV_H}")
    p(f"v_lshrrev_b32 v{BT0}, 3, v{L}")
    p(f"v_mul_u32_u24 v{BT0}, 1152, v{BT0}")
    p(f"v_and_b32 v{BT1}, 7, v{L}")
    p(f"v_lshl_add_u32 v{BV_D}, v{BT1}, 4, v{BT0}")
    for i in range(1, 4): p(f"v_add_u32 v{BV_D+i}, {i*9216}, v{BV_D}")
    p(f"s_mul_i32 s{B_HB}, s{B_M}, {5*147456}")
    p(f"s_lshl_b32 s{B_WDB}, s{B_N}, 7")
    p(f"s_mul_i32 s{B_LB}, s{S_W}, {NSLOT*4096}")
    p(f"s_mov_b32 s{B_IX}, 0")
    check_tokens(p, "F1", [f"buffer_load_dwordx2 {vr(T1,2)}, v{BV_FA}, {sr(S_FL)}, 0 offen sc1"], [T1])
    p(f"v_mov_b32 v{BV_TAB}, v{BV_TAB}")
    p("s_waitcnt lgkmcnt(0)")
    p("s_barrier")
    p.add(stamp(2))
    p(f"s_cmp_eq_u32 s{S_BT}, 255")
    p("s_cbranch_scc1 LB_spare")
    epi = Prog(); mean_fix(epi, 3, area8); ffn_epi(3, 8, epi)
    for r in range(80): epi(f"v_mov_b32 v{ACC1+r}, 0")
    iss = Prog()
    for s in range(NSLOT - 1): issue_down(iss, s)
    z = zipweave(epi.l, iss.l)
    vms = [i for i in z if i.kind in VMK]
    assert max(k for k, i in enumerate(vms) if i.kind == "vst") < len(vms) - 9
    p.add(z)
    srd(p, B_WO, P_WO, 0, WOIN_SZ)
    srd(p, B_X, P_X, 0, X_SZ)
    srd(p, B_OUT, P_OUT, 0, X_SZ)
    p(f"v_add_u32 v{BV_FA}, {FL_M - FL_1}, v{BV_FA}")
    a, b = BT0, BT1
    p(f"v_lshrrev_b32 v{a}, 5, v{L}")
    p(f"v_lshlrev_b32 v{a}, 11, v{a}")
    p(f"v_bfe_u32 v{b}, v{L}, 4, 1")
    p(f"v_lshl_add_u32 v{a}, v{b}, 9, v{a}")
    p(f"v_bfe_u32 v{b}, v{L}, 2, 2")
    p(f"v_lshl_add_u32 v{a}, v{b}, 7, v{a}")
    p(f"v_and_b32 v{b}, 3, v{L}")
    p(f"v_lshl_add_u32 v{a}, v{b}, 5, v{a}")
    p(f"v_add_u32 v{BV_T}, s{B_LB}, v{a}")
    p(f"v_lshrrev_b32 v{a}, 5, v{L}")
    p(f"v_lshlrev_b32 v{a}, 10, v{a}")
    p(f"v_bfe_u32 v{b}, v{L}, 4, 1")
    p(f"v_lshl_add_u32 v{a}, v{b}, 7, v{a}")
    p(f"v_and_b32 v{b}, 15, v{L}")
    p(f"v_lshl_add_u32 v{a}, v{b}, 2, v{a}")
    p(f"s_mul_i32 s40, s{B_M}, 5")
    for tt in range(5):
        p(f"s_add_u32 s41, s40, {tt}")
        p("s_lshr_b32 s42, s41, 1")
        p("s_mul_i32 s42, s42, 40960")
        p("s_and_b32 s41, s41, 1")
        p("s_lshl_b32 s41, s41, 6")
        p("s_add_u32 s41, s41, s42")
        p(f"v_add_u32 v{BV_O+tt}, s41, v{a}")
    p(f"v_add_u32 v{BV_R}, {RED1}, v{BV_H}")
    p(f"s_mul_i32 s40, s{B_M}, 80")
    p(f"s_lshr_b32 s41, s{S_W}, 1")
    p("s_lshl_b32 s41, s41, 4")
    p("s_add_u32 s40, s40, s41")
    p(f"v_add_u32 v{a}, s40, v{b}")
    p(f"v_lshlrev_b32 v{BV_RS+3}, 4, v{a}")
    p(f"v_add_u32 v{BV_RS+3}, {STO+4}, v{BV_RS+3}")
    p(f"v_mul_u32_u24 v{a}, 1152, v{a}")
    p(f"v_lshrrev_b32 v{b}, 4, v{L}")
    p(f"v_lshl_add_u32 v{a}, v{b}, 5, v{a}")
    p(f"s_and_b32 s41, s{S_W}, 1")
    p("s_lshl_b32 s41, s41, 4")
    p(f"s_add_u32 s40, s{B_WDB}, s41")
    p(f"v_add_u32 v{BV_XO}, s40, v{a}")
    p(f"v_add_u32 v{BV_XO+1}, {32*1152}, v{BV_XO}")
    p(f"v_add_u32 v{BV_XO+2}, {64*1152}, v{BV_XO}")
    p(f"v_bfe_u32 v{TMP+16}, v{L}, 3, 2")
    p(f"v_lshrrev_b32 v{a}, 5, v{L}")
    p(f"v_mul_u32_u24 v{a}, {9*1152}, v{a}")
    p(f"v_and_b32 v{b}, 7, v{L}")
    p(f"v_lshl_add_u32 v{a}, v{b}, 4, v{a}")
    p(f"v_add_u32 v{TMP+17}, s{B_WDB}, v{a}")
    p(f"v_mov_b32 v{TMP+18}, {OOB}")
    p.add(st3(5))
    p(f"s_mov_b32 s{B_IT}, 0")

def stage_b():
    out = ""
    p = Prog()
    fl = f"buffer_load_dwordx2 {vr(BV_FD,2)}, v{BV_FA}, {sr(S_FL)}, 0 offen sc1"
    p("LB_loop:")
    for s in range(NSLOT):
        p(f"s_waitcnt vmcnt({36 if s == 0 else 37})")
        if s == 0:
            p(f"s_and_b32 s40, s{B_IT}, 1")
            p("s_cbranch_scc0 LF2_ok")
            check_tokens(p, "F2", [fl], [BV_FD])
            p(f"s_cmp_eq_u32 s{B_IT}, 1")
            p(f"s_cselect_b32 s40, {FL_2 - FL_M}, 0")
            p(f"v_add_u32 v{BV_FA}, s40, v{BV_FA}")
        if s == 3:
            p(f"s_cmp_eq_u32 s{B_IT}, 0")
            p("s_cbranch_scc0 LB_pub")
            p("s_barrier")
            flag_store(p, S_WFB, BT0)
            p("LB_pub:")
        issue_down(p, (s + NSLOT - 1) % NSLOT)
        if s == 0: p(fl)
        compute(p, s, ACC1, True)
    p(f"s_add_u32 s{B_IT}, s{B_IT}, 1")
    p(f"s_cmp_lt_u32 s{B_IT}, 5")
    p("s_cbranch_scc1 LB_loop")
    out += render(pad_hazards(flat(p.l)))
    seed = Prog()
    for s in range(NSLOT - 1): issue_down(seed, s)
    vm0 = [(set(i.wr), i.tag, i.kind) for i in seed.l if i.kind in VMK]
    p = Prog()
    p.add(st3(6))
    issue_down(p, 5); compute(p, 0, ACC1, False)
    issue_s(p, 0, 0); compute(p, 1, ACC1, False)
    compute(p, 2, ACC1, False)
    issue_s(p, 1, 1); compute(p, 3, ACC1, False)
    compute(p, 4, ACC1, False)
    issue_s(p, 2, 2)
    for u in range(3):
        p(f"buffer_load_dwordx4 {vr(XR+4*u,4)}, v{BV_XO+u}, {sr(B_X)}, 0 offen")
        p(f"buffer_load_dword v{BV_RS+u}, v{BV_RS+3}, {sr(S_FL)}, 0 offen offset:{512*u} sc1")
    compute(p, 5, ACC1, False)
    p.add(st3(7))
    issue_s(p, 3, 3)
    for w in range(1, 4):
        p(f"s_cmp_eq_u32 s{S_W}, {w}")
        p(f"s_cbranch_scc1 LB_w{w}")
    pre = insert_waits(flat(p.l), vm0=vm0)
    vm1 = list(insert_waits.vm)
    out += render(pad_hazards(pre))
    for w in range(4):
        p = Prog()
        if w: p(f"LB_w{w}:")
        p("s_nop 4")
        own = [u for u in range(10) if u % 4 == w]
        def comp(slot, first=False):
            c = Prog(); compute(c, slot, ACC2, False, first); return c.l
        x = Prog(); red_write(x, ACC1, w, RB)
        c = comp(0, True)
        p.add(c[:9]); p.add(zipweave(x.l, c[9:]))
        issue_s(p, 4, 4)
        p("s_waitcnt lgkmcnt(0)")
        p("s_barrier")
        for ui in range(len(own)): p(f"v_mul_f32 v{BV_RS+ui}, v{BV_RS+ui}, v{BV_RS+ui}")
        for ui, u in enumerate(own + [None] * (3 - len(own))):
            x = Prog()
            if u is not None:
                red_read(p, ACC1, u, RB, TMP)
                red_add(x, ACC1, u, TMP)
                f = accr(ACC1, u >> 1, 2*(u & 1))
                for r in range(8): x(f"v_mul_f32 v{f+r}, v{BV_RS+ui}, v{f+r}")
                for r in range(8): x(f"v_mul_f32 v{TMP+r}, s{S_NL2E}, v{f+r}")
                for r in range(8): x(f"v_exp_f32 v{TMP+r}, v{TMP+r}")
                for r in range(8): x(f"v_add_f32 v{TMP+r}, 1.0, v{TMP+r}")
                for r in range(8): x(f"v_rcp_f32 v{TMP+r}, v{TMP+r}")
                for r in range(8): x(f"v_mul_f32 v{f+r}, v{f+r}, v{TMP+r}")
            c = comp(1 + ui)
            p.add(c[:9]); p.add(zipweave(x.l, c[9:]))
        p("s_barrier")
        p.add(comp(4))
        if OPTS.get("time") in (1, 3): p.add(stamp(3))
        red_write(p, ACC2, w, RB)
        p("s_waitcnt lgkmcnt(0)")
        p("s_barrier")
        bufs = []
        for ui, u in enumerate(own):
            free = [x for x in range(10) if x % 4 != w]
            t = [accr(ACC2, x >> 1, 2*(x & 1)) for x in free]
            bufs.append(t[2*ui:2*ui+2] + [TMP + 8*ui] if ui < 3 else None)
            tt, np_ = u >> 1, u & 1
            for sl in range(3):
                off = RB + (u*3 + sl) * 2048
                for h_ in range(2):
                    p(f"ds_read_b128 {vr(bufs[ui][sl]+4*h_,4)}, v{BV_R + (off >> 16)} offset:{(off & 0xffff) + h_*1024}")
        for ui, u in enumerate(own):
            f = accr(ACC1, u >> 1, 2*(u & 1)); s_ = accr(ACC2, u >> 1, 2*(u & 1)); x = XR + 4*ui
            X8 = AF
            for r in range(4):
                p(f"v_lshlrev_b32 v{X8+2*r}, 16, v{x+r}")
                p(f"v_and_b32 v{X8+2*r+1}, 0xffff0000, v{x+r}")
            for sl in range(3):
                for r in range(8): p(f"v_add_f32 v{s_+r}, v{s_+r}, v{bufs[ui][sl]+r}")
            for r in range(8): p(f"v_fma_f32 v{f+r}, v{f+r}, v{s_+r}, v{X8+r}")
            for r in range(4): p(f"v_cvt_pk_bf16_f32 v{x+r}, v{f+2*r}, v{f+2*r+1}")
            p(f"buffer_store_dwordx4 {vr(x,4)}, v{BV_XO+ui}, {sr(B_OUT)}, 0 offen")
        time_out(p)
        p("s_endpgm")
        out += render(pad_hazards(insert_waits(flat(p.l), vm0=vm1)))
    p = Prog()
    p("LB_spare:")
    mean_fix(p, 3, AREA8[0]); ffn_epi(3, 8, p)
    p("s_waitcnt vmcnt(0)")
    p("s_barrier")
    flag_store(p, S_WFB, BT0)
    p("s_endpgm")
    out += finalize(p.l)
    return out
AREA8 = [0]

def ktable():
    lv = [[], [], []]
    for j in range(32):
        order = (0, 1, 2, 3) if j % 4 in (0, 3) else (1, 2, 0, 3)
        ks = lambda u: 9*(j >> 1) + (5 if j & 1 else 0) + u
        lv[0] += [ks(order[0]), ks(order[1])]; lv[1].append(ks(order[2])); lv[2].append(ks(3))
        if not j & 1: lv[2].append(9*(j >> 1) + 4)
    allk = sorted(lv[0]) + sorted(lv[1]) + sorted(lv[2])
    assert sorted(allk) == list(range(144))
    out = "LK_tab:\n"
    for w in range(4): out += ".byte " + ", ".join(str(allk[4*i + w]) for i in range(36)) + "\n"
    return out + ".p2align 2\n"

def gen(name, opts):
    OPTS.clear(); OPTS.update(opts); SLOW.clear()
    out = entry(name)
    p = Prog()
    prologue(p)
    stage_a(p)
    out += finalize(p.l)
    out += stage_b()
    for s in SLOW: out += finalize(s.l)
    out += "LK_end:\n    s_endpgm\n"
    out += ktable()
    out += kd(name, 512, 102, 256)
    return out

if __name__ == "__main__":
    NAME = "recurrent_scan__linear_kernel_hedgehog__swiglu_ffn__prompt"
    HDR = open(f"cdna_kernels/{NAME}.s.ref").read().split("; Override launch geometry")[0]
    opts = {}
    for a in sys.argv[2:]:
        k, v = a.split("=")
        opts[k] = int(v) if v.lstrip("-").isdigit() else v
    txt = HDR + f"; @launch grid=(256,1,1) block=(256,1,1) lds={LDS_BYTES}\n" + '.amdgcn_target "amdgcn-amd-amdhsa--gfx950"\n.text\n' + gen(NAME + "_kernel", opts)
    open(sys.argv[1], "w").write(txt)
```

```python
import struct, sys
from asmgen import *
from layout import *

def np_f32(x): return struct.unpack("<I", struct.pack("<f", x))[0]
def vr(b, n): return f"v[{b}:{b+n-1}]"
def ar(b, n): return f"a[{b}:{b+n-1}]"
def sr(b, n=4): return f"s[{b}:{b+n-1}]"
def srd(p, d, base, off, size):
    if off:
        p(f"s_add_u32 s{d}, s{base}, {off}")
        p(f"s_addc_u32 s{d+1}, s{base+1}, 0")
    else:
        p(f"s_mov_b32 s{d}, s{base}")
        p(f"s_mov_b32 s{d+1}, s{base+1}")
    p(f"s_mov_b32 s{d+2}, {size}")
    p(f"s_mov_b32 s{d+3}, 0x20000")

MF = "v_mfma_f32_32x32x16_bf16"
MF8 = "v_mfma_f32_32x32x8_bf16"
MF16 = "v_mfma_f32_16x16x32_bf16"
L2E = 1.4426950408889634
OOB = 0x7ff00000
SPIN = 100000
STO = 32768
SLOT = 49184; PUP = 8224; XP = 16416
BUF = (0, 73760); BUP = 36896
SCR = 3 * SLOT; SCR_W = 3600; SROW = 112
CSX = 4 * SCR_W
TOKA = SCR + CSX + 1536
LDS_BYTES = TOKA + 64
P_X, P_WQKV, P_WPHI, P_WO, P_WG, P_WU, P_WD, P_OUT, P_DBG, P_WS = 64, 66, 68, 70, 72, 74, 76, 78, 80, 82
S_X, S_WF, S_WG, S_WU, S_HF, S_KV, S_OF, S_FL = 4, 8, 12, 16, 20, 24, 28, 32
S_W, S_MT, S_J, S_FI = 36, 37, 38, 39
S_M0X, S_M0W, S_FB, S_CG, S_NL2E, S_M0P, S_SPIN, S_TOK, S_SO, S_SO2, S_KVB, S_BT = 3, 44, 45, 50, 55, 56, 57, 58, 60, 61, 62, 63
S_WX = 66
S_WFB = 80
S_RG = 100
S_W0 = 81
STAMPS = list(range(84, 102, 2))
V_FL, V_LANE, V_W, V_H, V_SW, V_SR, V_B0, V_TRL, TR = 0, 1, 2, 3, 4, 5, 6, 7, 8
T1, T2, T3, T4 = 12, 13, 14, 15
XT, ACC, RING, RA = 16, 48, 176, 192
MV, E, SM = 80, 96, 106
KA = 48
CSA, MB, RL, SEL, CSACC, CT, EP = 224, 226, 230, 232, 236, 244, 248
V_CW, V_CR, V_A, V_Bq = 244, 245, 246, 247
CS4, XA, XD, WD, STG = 192, 208, 212, 214, 216
OPTS = {}
def stamp(i, modes=(1, 3)):
    return [I(f"s_memrealtime {sr(STAMPS[i],2)}")] if OPTS.get("time", 0) in modes else []
def st5(i):
    return [I(f"s_memtime {sr(STAMPS[i],2)}"), I("s_waitcnt lgkmcnt(0)")] if OPTS.get("time", 0) == 5 else []
def st3(i):
    return [I(f"s_memrealtime {sr(STAMPS[i],2)}"), I("s_waitcnt lgkmcnt(0)")] if OPTS.get("time", 0) == 3 else []
def xreg(tt, s):
    if tt == 0: return ar(4*s, 4)
    if s < 28: return ar(144 + 4*s, 4)
    return vr(XT + 4*(s - 28), 4)
def acc(st, tt): return (RA if st == 4 else ACC + 32*st) + 16*tt

SLOW = []
def check_tokens(q, name, loads, pairs):
    def test(lst):
        for k, v in enumerate(pairs):
            if k == 0: lst.append(f"v_cmp_eq_u64 vcc, {sr(S_TOK,2)}, {vr(v,2)}")
            else:
                lst.append(f"v_cmp_eq_u64 s[42:43], {sr(S_TOK,2)}, {vr(v,2)}")
                lst.append("s_nop 1"); lst.append("s_and_b64 vcc, vcc, s[42:43]")
        lst.append("s_nop 1"); lst.append("s_cmp_eq_u64 vcc, -1")
    items = []; test(items)
    q.b(*(items + [f"s_cbranch_scc0 L{name}_slow", f"L{name}_ok:"]))
    s = Prog()
    s(f"L{name}_slow:")
    s(f"s_mov_b32 s{S_SPIN}, 0")
    s(f"L{name}_spin:")
    s("s_sleep 2")
    for l in loads: s(l)
    s("s_waitcnt vmcnt(0)")
    s(f"s_add_u32 s{S_SPIN}, s{S_SPIN}, 1")
    items = []; test(items)
    for t in items: s(t)
    s(f"s_cbranch_scc1 L{name}_ok")
    s(f"s_cmp_lt_u32 s{S_SPIN}, {SPIN}")
    s(f"s_cbranch_scc1 L{name}_spin")
    s(f"s_branch L{name}_ok")
    SLOW.append(s)

def flag_store(q, sidx, tmpv):
    q(f"v_mov_b32 v{tmpv}, s{S_TOK}")
    q(f"v_mov_b32 v{tmpv+1}, s{S_TOK+1}")
    q(f"buffer_store_dwordx2 {vr(tmpv,2)}, v{V_FL}, {sr(S_FL)}, s{sidx} offen sc1")

def row16_allreduce(p, v):
    for r in (8, 4, 2, 1):
        p(f"v_add_f32_dpp v{v}, v{v}, v{v} row_ror:{r} row_mask:0xf bank_mask:0xf")
def half_allreduce(p, v, t):
    row16_allreduce(p, v)
    p(f"v_mov_b32 v{t}, v{v}")
    p(f"v_permlane16_swap_b32 v{v}, v{t}")
    p(f"v_add_f32 v{v}, v{v}, v{t}")
def bf16_round(p, v):
    p(f"v_cvt_pk_bf16_f32 v{v}, v{v}, v{v}")
    p(f"v_and_b32 v{v}, 0xffff0000, v{v}")

def rg_next(q):
    q.b(f"s_add_u32 s{S_RG}, s{S_RG}, 1", f"s_cmp_eq_u32 s{S_RG}, 9", f"s_cselect_b32 s{S_RG}, 0, s{S_RG}")
def ring_group(g):
    b = (g % 3) * SLOT
    q = Prog()
    q(f"s_mul_i32 s{S_SO}, s{S_RG}, 589824")
    q(f"s_add_u32 s{S_SO}, s{S_SO}, s{S_FB}")
    for h8 in range(2):
        q(f"s_add_u32 m0, s{S_M0P}, {b + h8*1024}")
        if h8: q(f"s_add_u32 s{S_SO}, s{S_SO}, 73728")
        else: q("s_nop 0")
        q(f"buffer_load_dwordx4 v{WD}, {sr(S_WG)}, s{S_SO} offen lds", tag=f"W{g}")
        q(f"s_add_u32 m0, s{S_M0P}, {b + PUP + h8*1024}")
        q(f"s_nop 0")
        q(f"buffer_load_dwordx4 v{WD}, {sr(S_WU)}, s{S_SO} offen lds", tag=f"W{g}")
    for i in range(8):
        q(f"s_add_u32 m0, s{S_M0X}, {b + XP + i*1024}")
        q(f"s_add_u32 s{S_SO}, s{S_SO}, 9216" if i else f"s_lshl_b32 s{S_SO}, s{S_RG}, 7")
        q(f"buffer_load_dwordx4 v{XD + (i & 1)}, {sr(S_X)}, s{S_SO} offen lds", tag=f"X{g}")
    rg_next(q)
    return q

def x_copy(g):
    q = Prog()
    q.wait(vm=[f"X{g}"])
    for p_ in range(4):
        if g: q(f"v_add_u32 v{XA+p_}, {SLOT if g % 3 else (-2*SLOT) & 0xffffffff}, v{XA+p_}")
        for tt in range(2):
            q(f"ds_read_b128 {xreg(tt, 4*g+p_)}, v{XA+p_} offset:{tt*4096}")
    return q

def dma_unit_group(u, g):
    b = BUF[(u + 1) & 1]
    q = Prog()
    q(f"s_mul_i32 s{S_SO}, s{S_RG}, 589824")
    q(f"s_add_u32 m0, s{S_M0W}, {b + g*4096}")
    q(f"s_add_u32 s{S_SO}, s{S_SO}, s{S_FB+u}")
    q(f"buffer_load_dwordx4 v{V_W}, {sr(S_WG)}, s{S_SO} offen lds", tag=f"U{u}")
    q(f"s_add_u32 m0, s{S_M0W}, {b + BUP + g*4096}")
    rg_next(q)
    q(f"buffer_load_dwordx4 v{V_W}, {sr(S_WU)}, s{S_SO} offen lds", tag=f"U{u}")
    return q

def dma_wf(t):
    q = Prog()
    for g in range(9):
        q(f"s_lshl_b32 s{S_SO}, s{S_RG}, 12")
        q(f"s_add_u32 m0, s{S_M0W}, {t*BUP + g*4096}")
        q(f"s_add_u32 s{S_SO}, s{S_SO}, s{S_WFB}")
        q(f"buffer_load_dwordx4 v{V_B0}, {sr(S_WF)}, s{S_SO} offen sc1 lds", tag=f"T{t}")
        rg_next(q)
    if t == 0: q(f"s_add_u32 s{S_WFB}, s{S_WFB}, 36864")
    return q

TKR = STG + 6
GA = STG + 4
TOKLD = f"buffer_load_dwordx2 {vr(TKR,2)}, v{GA+1}, s[20:23], 0 offen sc1"
FA = 112
SR_ = 224
F_VA, F_VB, F_RHO, F_HF, F_DV, F_Z = 236, 238, 240, 241, 242, 243
def prologue(p):
    L = V_LANE
    p("s_cmp_ge_u32 s2, 256")
    p("s_cbranch_scc1 LK_end")
    p.add(st5(0))
    p("s_load_dwordx8 s[64:71], s[0:1], 0")
    p("s_load_dwordx8 s[72:79], s[0:1], 40")
    p("s_load_dwordx4 s[80:83], s[0:1], 72")
    p.add(stamp(0))
    p("v_lshrrev_b32 v14, 6, v0")
    p(f"v_and_b32 v{L}, 63, v0")
    p(f"v_readfirstlane_b32 s{S_W}, v14")
    p("s_and_b32 s40, s2, 7")
    p("s_lshr_b32 s41, s2, 3")
    p("s_and_b32 s42, s40, 1")
    p("s_lshl_b32 s42, s42, 2")
    p("s_and_b32 s43, s41, 3")
    p(f"s_add_u32 s{S_MT}, s42, s43")
    p("s_lshr_b32 s42, s40, 1")
    p("s_lshl_b32 s42, s42, 3")
    p("s_lshr_b32 s43, s41, 2")
    p(f"s_add_u32 s{S_J}, s42, s43")
    p(f"s_lshl_b32 s{S_M0W}, s{S_W}, 10")
    p(f"s_lshl_b32 s{S_M0P}, s{S_W}, 11")
    p(f"s_lshl_b32 s{S_M0X}, s{S_W}, 13")
    p(f"s_lshl_b32 s{S_BT}, s{S_W}, 3")
    p(f"s_add_u32 s{S_BT}, s{S_BT}, s{S_MT}")
    p(f"s_mul_i32 s40, s{S_J}, 144")
    p(f"s_and_b32 s41, s{S_J}, 1")
    p("s_lshl_b32 s42, s41, 4")
    p("s_add_u32 s42, s42, s40")
    p("s_cmp_eq_u32 s41, 0")
    p("s_cselect_b32 s43, 128, 0")
    p("s_add_u32 s43, s43, s40")
    p(f"s_add_u32 s40, s{S_J}, 1")
    p("s_and_b32 s40, s40, 2")
    p("s_lshl_b32 s40, s40, 4")
    p(f"s_add_u32 s{S_FB}, s42, s40")
    p(f"s_lshl_b32 s{S_FB}, s{S_FB}, 1")
    p(f"v_lshrrev_b32 v17, 5, v{L}")
    p(f"v_and_b32 v19, 31, v{L}")
    p(f"s_lshl_b32 s{S_FI}, s{S_MT}, 5")
    p(f"s_add_u32 s{S_FI}, s{S_FI}, s{S_J}")
    p(f"s_lshl_b32 s{S_FI}, s{S_FI}, 3")
    p(f"s_lshl_b32 s{S_SO2}, s{S_W}, 1")
    p(f"s_add_u32 s{S_SO2}, s{S_SO2}, s{S_FI}")
    p(f"v_add_u32 v16, s{S_SO2}, v17")
    p("v_mul_u32_u24 v15, 1152, v16")
    p("v_lshl_add_u32 v15, v19, 2, v15")
    p(f"s_add_u32 s{S_RG}, s{S_MT}, s{S_J}")
    p(f"s_mul_i32 s{S_KVB}, s{S_RG}, 7282")
    p(f"s_lshr_b32 s{S_KVB}, s{S_KVB}, 16")
    p(f"s_mul_i32 s{S_KVB}, s{S_KVB}, 9")
    p(f"s_sub_u32 s{S_RG}, s{S_RG}, s{S_KVB}")
    if OPTS.get("norot"): p(f"s_mov_b32 s{S_RG}, 0")
    p(f"v_lshrrev_b32 v12, 3, v{L}")
    p(f"s_lshl_b32 s{S_SO2}, s{S_MT}, 2")
    p(f"s_add_u32 s{S_SO2}, s{S_SO2}, s{S_W}")
    p(f"s_lshl_b32 s{S_SO2}, s{S_SO2}, 6")
    p(f"v_add_u32 v13, s{S_SO2}, v12")
    p("v_mul_u32_u24 v13, 1152, v13")
    p("v_lshrrev_b32 v12, 1, v12")
    p(f"v_and_b32 v14, 7, v{L}")
    p("v_xor_b32 v12, v12, v14")
    p(f"v_lshl_add_u32 v{XD}, v12, 4, v13")
    p(f"v_xor_b32 v{XD+1}, 64, v{XD}")
    p(f"v_bfe_u32 v12, v{L}, 2, 3")
    p(f"s_lshl_b32 s{S_SO2}, s{S_W}, 4")
    p(f"v_add_u32 v12, s{S_SO2}, v12")
    p("v_mul_u32_u24 v12, 9216, v12")
    p("v_lshl_add_u32 v12, v17, 6, v12")
    p(f"v_and_b32 v13, 3, v{L}")
    p(f"v_lshl_add_u32 v{WD}, v13, 4, v12")
    p(f"v_cmp_eq_u32 vcc, 0, v{L}")
    p(f"v_mov_b32 v18, {OOB}")
    p(f"v_cndmask_b32 v{V_FL}, v18, v{L}, vcc")
    p(f"v_lshlrev_b32 v{V_B0}, 4, v{L}")
    p("s_waitcnt lgkmcnt(0)")
    p.add(st5(1))
    srd(p, S_X, P_X, 0, X_SZ)
    code_touch(p)
    for i in range(9): p(f"buffer_load_dword v{SR_+i}, v15, {sr(S_X)}, 0 offen offset:{128*i}")
    srd(p, S_WG, P_WG, 0, WG_SZ)
    srd(p, S_WU, P_WU, 0, WG_SZ)
    srd(p, 24, P_WQKV, 0, WQKV_SZ)
    p(f"v_min_u32 v20, 15, v{L}")
    p("v_lshlrev_b32 v20, 7, v20")
    p("s_lshl_b32 s46, s2, 2")
    p(f"s_add_u32 s46, s46, s{S_W}")
    p("s_lshl_b32 s46, s46, 11")
    p(f"buffer_load_dword v{EP}, v20, s[24:27], s46 offen")
    g0 = ring_group(0).l
    cut = [k for k, i in enumerate(g0) if i.kind == "dma"][OPTS.get("cut", 5)] - 2
    p.add(g0[:cut])
    srd(p, 20, P_DBG, 0, 256)
    p(f"s_or_b32 s46, s2, s{S_W}")
    p(f"s_cmp_lg_u32 s46, 0")
    p("s_cbranch_scc1 LT_skip")
    p("s_memrealtime s[46:47]")
    p("v_mov_b32 v34, 0")
    p("v_mov_b32 v35, 0")
    p("s_waitcnt lgkmcnt(0)")
    p("s_or_b32 s46, s46, 1")
    p("v_mov_b32 v32, s46")
    p("v_mov_b32 v33, s47")
    p.l.append(Raw(f"    buffer_atomic_cmpswap_x2 v[32:35], v{V_FL}, s[20:23], 0 offen sc1"))
    p("LT_skip:")
    p.add(st5(2))
    p(f"s_add_u32 s{S_FB+1}, s{S_FB}, 64")
    p("s_lshl_b32 s40, s40, 1")
    p("s_sub_u32 s40, 64, s40")
    p("s_add_u32 s40, s40, s42")
    p(f"s_lshl_b32 s{S_FB+2}, s40, 1")
    p(f"s_add_u32 s42, s42, 96")
    p(f"s_lshl_b32 s{S_FB+3}, s42, 1")
    p(f"s_lshl_b32 s{S_FB+4}, s43, 1")
    for u in range(5): p(f"s_lshl_b32 s{S_CG+u}, s{S_FB+u}, 4")
    p(f"s_mul_i32 s{S_KVB}, s{S_J}, 4608")
    srd(p, S_WF, P_WS, WF_OFF, WF_SZ)
    srd(p, 28, P_WPHI, 0, WPHI_SZ)
    srd(p, S_FL, P_WS, FL_OFF, FL_SZ + ST_SZ)
    for i in range(4):
        p(f"s_xor_b32 s{S_WX+i}, s{S_W}, {i}")
        p(f"s_lshl_b32 s{S_WX+i}, s{S_WX+i}, 10")
    p(f"s_mul_i32 s{S_WFB}, s{S_J}, 73728")
    p(f"s_add_u32 s{S_WFB}, s{S_WFB}, s{S_M0W}")
    p(f"s_cmp_eq_u32 s{S_W}, 0")
    p(f"s_cselect_b32 s{S_W0}, 0, {OOB}")
    p(f"v_bfe_u32 v12, v{L}, 2, 2")
    p(f"v_and_b32 v13, 3, v{L}")
    p("v_lshlrev_b32 v13, 3, v13")
    p("v_lshl_add_u32 v12, v12, 6, v13")
    p(f"v_bfe_u32 v13, v{L}, 4, 1")
    p(f"v_mul_u32_u24 v14, {BUP}, v13")
    p("v_add_u32 v14, v14, v12")
    p(f"v_lshl_add_u32 v{V_TRL}, v17, 9, v14")
    p(f"v_mul_u32_u24 v14, {PUP}, v13")
    p("v_add_u32 v14, v14, v12")
    p("v_lshl_add_u32 v14, v17, 10, v14")
    for i in range(4):
        p(f"s_lshl_b32 s40, s{S_WX+i}, 1")
        p(f"v_add_u32 v{TR+i}, s40, v14")
    p(f"v_bfe_u32 v12, v{L}, 1, 3")
    p("v_xor_b32 v12, v12, v17")
    p(f"s_add_u32 s41, s{S_M0X}, {XP}")
    p("v_lshl_add_u32 v14, v19, 7, s41")
    for i in range(4):
        p(f"s_lshr_b32 s40, s{S_WX+i}, 9")
        p("v_xor_b32 v15, s40, v12")
        p(f"v_lshl_add_u32 v{XA+i}, v15, 4, v14")
    p(f"v_lshrrev_b32 v12, 2, v{L}")
    p(f"s_lshl_b32 s40, s{S_W}, 4")
    p("v_add_u32 v12, s40, v12")
    p("v_mul_u32_u24 v12, 9216, v12")
    p(f"v_and_b32 v14, 3, v{L}")
    p(f"v_lshl_add_u32 v{V_W}, v14, 4, v12")
    p(f"s_lshl_b32 s40, s{S_MT}, 4")
    p(f"s_lshl_b32 s41, s{S_W}, 2")
    p("s_add_u32 s40, s40, s41")
    p("v_add_u32 v12, s40, v13")
    p("v_mul_u32_u24 v12, 147456, v12")
    p(f"v_and_b32 v14, 15, v{L}")
    p("v_lshl_add_u32 v12, v14, 4, v12")
    p(f"v_lshl_add_u32 v{V_H}, v17, 8, v12")
    p(f"s_mul_i32 s40, s{S_W}, {SCR_W}")
    p(f"s_add_u32 s40, s40, {SCR}")
    p(f"v_mul_u32_u24 v12, {SROW}, v19")
    p("v_lshl_add_u32 v12, v17, 3, v12")
    p(f"v_add_u32 v{V_SW}, s40, v12")
    p(f"v_lshrrev_b32 v12, 4, v{L}")
    p(f"v_bfe_u32 v15, v{L}, 2, 2")
    p("v_lshl_add_u32 v12, v12, 3, v15")
    p(f"v_mul_u32_u24 v12, {SROW}, v12")
    p(f"v_and_b32 v15, 3, v{L}")
    p("v_lshl_add_u32 v12, v15, 3, v12")
    p(f"v_add_u32 v{V_SR}, s40, v12")
    p(f"s_lshl_b32 s41, s{S_W}, 7")
    p(f"s_add_u32 s41, s41, {SCR}")
    p(f"v_lshl_add_u32 v{V_CW}, v{L}, 3, s41")
    p("v_lshlrev_b32 v12, 3, v14")
    p("v_lshl_add_u32 v12, v13, 2, v12")
    p(f"v_add_u32 v{V_CR}, {SCR}, v12")
    p(f"s_mov_b32 s{S_NL2E}, 0x{np_f32(-L2E):08x}")
    p(f"v_lshlrev_b32 v16, 4, v16")
    p(f"v_add_u32 v16, {STO}, v16")
    p(f"v_cmp_eq_u32 vcc, 0, v19")
    p(f"v_cndmask_b32 v{GA}, v18, v16, vcc")
    p(f"v_mov_b32 v{F_Z}, 0")
    p(f"v_mov_b32 v{F_HF}, v17")
    p("v_bfe_u32 v22, v19, 2, 1")
    p("v_lshrrev_b32 v23, 3, v19")
    p("v_and_b32 v24, 3, v19")
    p(f"v_lshl_or_b32 v{F_RHO}, v23, 2, v24")
    p("v_mul_u32_u24 v24, 9, v22")
    p(f"v_cmp_gt_u32 vcc, 9, v{F_RHO}")
    p(f"v_subrev_u32 v25, 9, v{F_RHO}")
    p(f"v_cndmask_b32 v25, v25, v{F_RHO}, vcc")
    p("v_add_u32 v25, v25, v24")
    p(f"v_cmp_gt_u32 vcc, 2, v{F_RHO}")
    p(f"v_add3_u32 v26, v{F_RHO}, v24, 7")
    p(f"v_cndmask_b32 v26, v{F_Z}, v26, vcc")
    p(f"s_add_u32 s41, s{S_M0W}, {SCR + 3*SCR_W}")
    p(f"v_lshl_add_u32 v{F_VB}, v25, 1, s41")
    p(f"v_lshl_add_u32 v{F_VB+1}, v26, 1, s41")
    p("v_and_b32 v20, 0x13, v19")
    p("v_and_b32 v21, 4, v19")
    p("v_lshl_or_b32 v20, v21, 1, v20")
    p("v_and_b32 v21, 8, v19")
    p("v_lshrrev_b32 v21, 1, v21")
    p("v_or_b32 v20, v20, v21")
    p("v_mul_u32_u24 v20, 36, v20")
    p(f"v_add_u32 v{V_A}, s40, v20")
    p(f"v_lshl_add_u32 v{V_Bq}, v17, 4, v{V_A}")
    p("v_mul_u32_u24 v27, 288, v17")
    p(f"v_add_u32 v{F_VA}, v{F_VB}, v27")
    p(f"v_add_u32 v{F_VA+1}, v{F_VB+1}, v27")
    p(f"v_subrev_u32 v25, 2, v{F_RHO}")
    p("v_add_u32 v26, v25, v24")
    p("v_cmp_gt_u32 vcc, 9, v25")
    p("v_mov_b32 v31, 255")
    p("v_cndmask_b32 v26, v31, v26, vcc")
    p("v_lshlrev_b32 v27, 3, v17")
    p(f"v_sub_u32 v{F_DV}, v26, v27")
    for i in range(3):
        for r in (1, 2, 3): p(f"v_accvgpr_write_b32 a{FA+12+4*i+r}, 0")
    p.add(st5(3))
    p.add(g0[cut:])
    X = 96; M = STG; V = 118; R = SR_
    for i in range(9):
        p(f"v_lshlrev_b32 v{X+2*i}, 16, v{R+i}")
        p(f"v_and_b32 v{X+2*i+1}, 0xffff0000, v{R+i}")
    p("v_cmp_eq_u32 vcc, v14, v13")
    p("v_mov_b32 v12, 0x3f803f80")
    for r in range(4): p(f"v_cndmask_b32 v{SEL+r}, v{F_Z}, v12, vcc")
    for r in (CSA+1, MB+1, MB+3): p(f"v_mov_b32 v{r}, 0")
    p(f"v_add_f32 v{M}, v{X}, v{X+2}")
    p(f"v_add_f32 v{M+1}, v{X+1}, v{X+3}")
    for i in range(2, 9):
        p(f"v_add_f32 v{M}, v{M}, v{X+2*i}")
        p(f"v_add_f32 v{M+1}, v{M+1}, v{X+2*i+1}")
    p(f"v_add_f32 v{M}, v{M}, v{M+1}")
    half_allreduce(p, M, M+1)
    p(f"v_mul_f32 v{M}, 0x{np_f32(1/576):08x}, v{M}")
    for i in range(18): p(f"v_sub_f32 v{X+i}, v{X+i}, v{M}")
    p(f"v_mul_f32 v{V}, v{X}, v{X}")
    p(f"v_mul_f32 v{V+1}, v{X+1}, v{X+1}")
    for i in range(1, 9):
        p(f"v_fmac_f32 v{V}, v{X+2*i}, v{X+2*i}")
        p(f"v_fmac_f32 v{V+1}, v{X+2*i+1}, v{X+2*i+1}")
    p(f"v_add_f32 v{V}, v{V}, v{V+1}")
    half_allreduce(p, V, V+1)
    p(f"v_mul_f32 v{V}, 0x{np_f32(1/576):08x}, v{V}")
    bf16_round(p, M)
    bf16_round(p, V)
    p(f"v_add_f32 v{V}, 0x{np_f32(1e-5):08x}, v{V}")
    bf16_round(p, V)
    p(f"v_sqrt_f32 v{V}, v{V}")
    bf16_round(p, V)
    p(f"v_rcp_f32 v{M+1}, v{V}")
    p.add(st5(4))
    p(f"s_cmp_ge_u32 s{S_BT}, 18")
    p("s_cbranch_scc1 LP_nofl")
    p(f"s_add_u32 m0, s{S_M0W}, {SCR + 3*SCR_W}")
    p(f"s_mul_i32 s{S_SO}, s{S_J}, 648")
    p.l.append(Raw(f"    buffer_load_dwordx4 v{V_B0}, s[28:31], s{S_SO} offen lds"))
    p(f"v_mul_u32_u24 v20, 7282, v{L}")
    p("v_lshrrev_b32 v20, 16, v20")
    p("v_mul_u32_u24 v21, 9, v20")
    p(f"v_sub_u32 v21, v{L}, v21")
    p("v_mul_u32_u24 v20, 3456, v20")
    p("v_lshl_add_u32 v20, v21, 2, v20")
    p(f"s_mul_i32 s{S_SO}, s{S_BT}, {32*3456}")
    p(f"s_mul_i32 s41, s{S_J}, 36")
    p(f"s_add_u32 s{S_SO}, s{S_SO}, s41")
    for mat in range(3):
        for i in range(5):
            p(f"s_add_u32 m0, s40, {mat*1152 + i*252}")
            p(f"s_add_u32 s41, s{S_SO}, {mat*1152 + i*7*3456}")
            p.l.append(Raw(f"    buffer_load_dword v20, s[24:27], s41 offen lds"))
    p("LP_nofl:")
    p.add(st5(5))
    p(f"v_mov_b32 v{GA+1}, s{S_W0}")
    srd(p, S_KV, P_WS, KV_OFF, KV_SZ)
    srd(p, S_OF, P_WS, OF_OFF, OF_SZ)
    if OPTS.get("g1pre", 1): p.add(ring_group(1))
    p.add(st5(6))
    p.add(stamp(4, (1,)))

def fold_stream():
    q = Prog()
    B0, B1, D, O = XT, XT + 8, XT + 16, EP
    q.wait(vm=["W1"])
    for mat in range(3):
        q(f"v_add_u32 v{D}, {mat*1152}, v{V_Bq}")
        q(f"ds_read2_b32 {ar(FA+4*mat,2)}, v{D} offset0:0 offset1:1")
        q(f"ds_read2_b32 {ar(FA+4*mat+2,2)}, v{D} offset0:2 offset1:3")
        q(f"ds_read_b32 a{FA+12+4*mat}, v{V_A} offset:{mat*1152+32}")
    q(f"s_lshl_b32 s41, s{S_BT}, 11")
    q(f"s_add_u32 s41, s{S_WFB}, s41")
    q(f"s_sub_u32 s41, s41, s{S_M0W}")
    q(f"s_lshl_b32 s43, s{S_BT}, 8")
    q(f"s_add_u32 s43, s43, s{S_KVB}")
    q.b(f"s_cmp_lt_u32 s{S_BT}, 18", f"s_cselect_b32 s41, s41, {OOB}", f"s_cselect_b32 s43, s43, {OOB}")
    q("s_add_u32 s42, s41, 36864")
    for b in (B0, B1):
        for r in (5, 6, 7): q(f"v_mov_b32 v{b+r}, 0")
    for t in range(2):
        for e in range(8): q(f"ds_read_u16 v{D+e}, v{F_VA+t} offset:{e*36}")
        q(f"ds_read_u16 v{D+8}, v{F_VB+t} offset:{16*36}")
        q(f"ds_read_u16 v{D+9}, v{F_VB+t} offset:{17*36}")
        if t == 1:
            q(f"v_mov_b32 v{D+10}, 0x3f80")
            for r, sub in enumerate((0, 2, 4, 6, 16)):
                q(f"v_subrev_u32 v{D+11}, {sub}, v{F_DV}")
                q(f"v_lshlrev_b32 v{D+12}, 4, v{D+11}")
                q(f"v_cmp_gt_u32 vcc, 2, v{D+11}")
                q(f"v_lshlrev_b32 v{D+12}, v{D+12}, v{D+10}")
                q(f"v_cndmask_b32 v{B1+r}, v{F_Z}, v{D+12}, vcc")
        q(f"v_cmp_eq_u32 vcc, 0, v{F_HF}")
        for r in range(5): q(f"v_lshl_or_b32 v{D+r}, v{D+2*r+1}, 16, v{D+2*r}")
        q(f"v_cndmask_b32 v{D+4}, v{F_Z}, v{D+4}, vcc")
        q(f"v_cmp_gt_u32 vcc, {9 if t == 0 else 2}, v{F_RHO}")
        q("s_nop 0")
        for r in range(5): q(f"v_cndmask_b32 v{B0+r}, v{F_Z}, v{D+r}, vcc")
        if t == 0:
            for r in range(5): q(f"v_cndmask_b32 v{B1+r}, v{D+r}, v{F_Z}, vcc")
        a0 = FA + 4*t
        q(f"{MF} {vr(D,16)}, {ar(a0,4)}, {vr(B0,4)}, 0")
        q(f"{MF} {vr(D,16)}, {ar(a0+12,4)}, {vr(B0+4,4)}, {vr(D,16)}")
        q(f"{MF} {vr(D,16)}, {ar(a0+4,4)}, {vr(B1,4)}, {vr(D,16)}")
        q(f"{MF} {vr(D,16)}, {ar(a0+16,4)}, {vr(B1+4,4)}, {vr(D,16)}")
        for r in range(8): q(f"v_cvt_pk_bf16_f32 v{O+r}, v{D+2*r}, v{D+2*r+1}")
        for jj in range(2):
            q(f"buffer_store_dwordx4 {vr(O+4*jj,4)}, v{V_B0}, {sr(S_WF)}, s{41+t} offen offset:{1024*jj} sc1", tag="fold")
    q(f"v_cmp_gt_u32 vcc, 16, v{V_LANE}")
    q(f"v_mov_b32 v{D}, {OOB}")
    q(f"v_mov_b32 v{B0+4}, 0")
    q(f"v_cndmask_b32 v{D}, v{D}, v{V_B0}, vcc")
    q(f"buffer_store_dwordx4 {vr(B0+4,4)}, v{D}, {sr(S_KV)}, s43 offen sc1", tag="fold")
    return q

def code_touch(q):
    L = V_LANE
    q("s_getpc_b64 s[46:47]")
    q("LT_pc:")
    q("s_lshr_b32 s48, s2, 3")
    q("s_lshl_b32 s48, s48, 2")
    q(f"s_add_u32 s48, s48, s{S_W}")
    q("s_cmp_gt_u32 s48, 7")
    q("s_cbranch_scc1 LT_nocode")
    q("s_lshl_b32 s48, s48, 13")
    q(f"v_lshlrev_b32 v21, 7, v{L}")
    q(f"v_add_u32 v21, s48, v21")
    q(f"v_min_u32 v21, LK_end-LT_pc-4, v21")
    q.l.append(Raw(f"    global_load_dword v{EP+7}, v21, s[46:47]"))
    q("LT_nocode:")

def late_touch():
    q = Prog()
    L = V_LANE
    q(f"v_mul_u32_u24 v{T3}, 21846, v{L}")
    q(f"v_lshrrev_b32 v{T3}, 16, v{T3}")
    q(f"v_mul_u32_u24 v{T4}, 3, v{T3}")
    q(f"v_sub_u32 v{T4}, v{L}, v{T4}")
    q(f"v_mul_u32_u24 v{T3}, 9216, v{T3}")
    q(f"v_lshl_add_u32 v{T3}, v{T4}, 7, v{T3}")
    q(f"s_mul_i32 s41, s{S_J}, 288")
    q("s_and_b32 s41, s41, 0xffffff80")
    q(f"s_mul_i32 s42, s{S_BT}, {18*9216}")
    q("s_add_u32 s41, s41, s42")
    q(f"buffer_load_dword v{V_A}, v{T3}, {sr(S_WG)}, s41 offen")
    q(f"buffer_load_dword v{V_Bq}, v{T3}, {sr(S_WU)}, s41 offen")
    return q

def token_issue():
    q = Prog(); q(TOKLD); return q
def token_share():
    q = Prog()
    q(f"s_lshl_b32 s40, s{S_W}, 3")
    q(f"s_add_u32 s40, s40, {TOKA}")
    q(f"v_mov_b32 v{T1}, s40")
    q.b(f"v_readfirstlane_b32 s40, v{TKR}", f"s_or_b32 s40, s40, s{S_W}", "s_cbranch_scc0 LT_slow", "LT_ok:")
    s = Prog()
    s("LT_slow:"); s(f"s_mov_b32 s{S_SPIN}, 0"); s("LT_spin:"); s("s_sleep 2"); s(TOKLD); s("s_waitcnt vmcnt(0)")
    s(f"v_readfirstlane_b32 s40, v{TKR}"); s(f"s_add_u32 s{S_SPIN}, s{S_SPIN}, 1"); s("s_cmp_lg_u32 s40, 0"); s("s_cbranch_scc1 LT_ok")
    s(f"s_cmp_lt_u32 s{S_SPIN}, {SPIN}"); s("s_cbranch_scc1 LT_spin"); s("s_branch LT_ok")
    SLOW.append(s)
    q(f"ds_write_b64 v{T1}, {vr(TKR,2)}")
    return q
def token_and_stats():
    q = Prog()
    q(f"v_mov_b32 v{T1}, {TOKA}")
    q(f"ds_read_b64 {vr(TKR,2)}, v{T1}")
    q(f"v_readfirstlane_b32 s{S_TOK}, v{TKR}")
    q(f"v_readfirstlane_b32 s{S_TOK+1}, v{TKR+1}")
    q(f"v_mov_b32 v{STG+2}, v{TKR}")
    q(f"v_mov_b32 v{STG+3}, v{TKR+1}")
    q(f"buffer_store_dwordx4 {vr(STG,4)}, v{GA}, {sr(S_FL)}, 0 offen sc1")
    q.b(f"s_add_u32 s{S_HF}, s{P_WS}, {HF_OFF}", f"s_addc_u32 s{S_HF+1}, s{P_WS+1}, 0")
    q(f"s_mov_b32 s{S_HF+2}, {HF_SZ}")
    return q

def fold_flag():
    q = Prog()
    q(f"s_lshl_b32 s40, s{S_J}, 5")
    q(f"s_add_u32 s40, s40, s{S_BT}")
    q("s_lshl_b32 s40, s40, 3")
    q.wait(vm=["fold"])
    flag_store(q, 40, T1)
    return q

def st_loads():
    return [f"buffer_load_dwordx4 {vr(STG+4*tt,4)}, v{T3}, {sr(S_FL)}, 0 offen offset:{512*tt} sc1" for tt in range(2)]
def fw_load(): return f"buffer_load_dwordx2 {vr(T1,2)}, v{T4}, {sr(S_FL)}, 0 offen sc1"
def handoff_issue():
    q = Prog()
    q(f"s_lshl_b32 s40, s{S_MT}, 2")
    q(f"s_add_u32 s40, s40, s{S_W}")
    q("s_lshl_b32 s40, s40, 10")
    q(f"s_add_u32 s40, s40, {STO}")
    q(f"v_and_b32 v{T3}, 31, v{V_LANE}")
    q(f"v_lshl_add_u32 v{T3}, v{T3}, 4, s40")
    q(f"s_lshl_b32 s40, s{S_J}, 8")
    q(f"v_min_u32 v{T4}, 17, v{V_LANE}")
    q(f"v_lshl_add_u32 v{T4}, v{T4}, 3, s40")
    q(fw_load())
    for l in st_loads(): q(l)
    return q
def fw_check():
    q = Prog(); check_tokens(q, "W", [fw_load()], [T1]); return q
def st_check():
    q = Prog()
    check_tokens(q, "S", st_loads(), [STG+2, STG+6])
    q(f"v_cmp_gt_u32 vcc, 32, v{V_LANE}")
    for tt in range(2):
        q(f"v_cvt_pk_bf16_f32 v{STG+4*tt}, -v{STG+4*tt}, -v{STG+4*tt}")
        q(f"v_mul_f32 v{RL+tt}, s{S_NL2E}, v{STG+4*tt+1}")
    for tt in range(2): q(f"v_cndmask_b32 v{MB+2*tt}, v{CSA+1}, v{STG+4*tt}, vcc")
    return q

def cs_write(reg, area, dist=False):
    q = Prog()
    a = V_CW
    if dist:
        q(f"s_mul_i32 s40, s{S_W}, {SCR_W - 128}")
        q(f"v_add_u32 v{V_Bq}, s40, v{V_CW}")
        a = V_Bq
    if OPTS.get("nofix"): q("s_nop 0")
    else: q.b("s_mov_b64 exec, 0xffff", f"ds_write_b64 v{a}, {vr(reg,2)} offset:{area}", "s_mov_b64 exec, -1", tag="csw")
    return q

def mean_fix(q, st, area, stride=128):
    if OPTS.get("nofix"):
        q("s_nop 0"); return
    t = EP
    for w in range(4): q(f"ds_read_b32 v{t+w}, v{V_CR} offset:{area + w*stride}")
    q(f"v_add_f32 v{t}, v{t}, v{t+1}")
    q(f"v_add_f32 v{t+2}, v{t+2}, v{t+3}")
    q(f"v_add_f32 v{t}, v{t}, v{t+2}")
    q(f"v_cvt_pk_bf16_f32 v{t+1}, v{t}, v{t}")
    q(f"v_lshlrev_b32 v{t+1}, 16, v{t+1}")
    q(f"v_sub_f32 v{t+1}, v{t}, v{t+1}")
    q(f"v_cvt_pk_bf16_f32 v{CSA}, v{t}, v{t+1}")
    for tt in range(2):
        q(f"{MF8} {vr(acc(st,tt),16)}, {vr(CSA,2)}, {vr(MB+2*tt,2)}, {vr(acc(st,tt),16)}")

def ffn_epi(st, c, q=None):
    q = q or Prog()
    u, xy = c // 2, c & 1
    for tt in range(2):
        a = acc(st, tt)
        for r in range(8): q(f"v_mul_f32 v{EP+r}, {'s55' if OPTS.get('sgp') else 'v%d' % (RL+tt)}, v{a+r}")
        for r in range(8): q(f"v_exp_f32 v{EP+r}, v{EP+r}")
        for r in range(8): q(f"v_mul_f32 v{a+r}, v{a+r}, v{a+8+r}")
        for r in range(8): q(f"v_add_f32 v{EP+r}, 1.0, v{EP+r}")
        for r in range(8): q(f"v_rcp_f32 v{EP+r}, v{EP+r}")
        q(f"s_add_u32 s{S_SO2}, s{S_CG+u}, {xy*512 + tt*294912}")
        for r in range(8): q(f"v_mul_f32 v{a+r}, v{a+r}, v{EP+r}")
        for r in range(4): q(f"v_cvt_pk_bf16_f32 v{a+8+r}, v{a+2*r}, v{a+2*r+1}")
        if OPTS.get("nost"): q("s_nop 0")
        else: q(f"buffer_store_dwordx4 {vr(a+8,4)}, v{V_H}, {sr(S_HF)}, s{S_SO2} offen {OPTS.get('hst', 'sc1')}", tag=f"h{c}")
    return q

def softmax2(q, src, outs, rl):
    m, n, t, c1, c2, t2 = SM, SM+1, SM+2, SM+3, SM+4, SM+5
    q(f"v_max3_f32 v{m}, v{src[0]}, v{src[1]}, v{src[2]}")
    q(f"v_max3_f32 v{n}, -v{src[0]}, -v{src[1]}, -v{src[2]}")
    q(f"v_max3_f32 v{c1}, v{src[3]}, v{src[4]}, v{src[5]}")
    q(f"v_max3_f32 v{c2}, -v{src[3]}, -v{src[4]}, -v{src[5]}")
    q(f"v_max3_f32 v{t}, v{src[6]}, v{src[7]}, v{src[8]}")
    q(f"v_max3_f32 v{t2}, -v{src[6]}, -v{src[7]}, -v{src[8]}")
    q(f"v_max3_f32 v{m}, v{m}, v{c1}, v{t}")
    q(f"v_max3_f32 v{n}, v{n}, v{c2}, v{t2}")
    q(f"v_permlane32_swap_b32 v{m}, v{n}")
    q(f"v_max_f32 v{m}, v{m}, v{n}")
    q(f"v_mul_f32 v{m}, v{rl}, v{m}")
    q(f"v_mov_b32 v{n}, v{m}")
    q(f"v_permlane32_swap_b32 v{m}, v{n}")
    for i in range(9): q(f"v_fma_f32 v{E+i}, v{src[i]}, v{rl}, v{n}")
    for i in range(9): q(f"v_fma_f32 v{src[i]}, -v{src[i]}, v{rl}, v{m}")
    for i in range(9): q(f"v_exp_f32 v{E+i}, v{E+i}")
    for i in range(9): q(f"v_exp_f32 v{src[i]}, v{src[i]}")
    q(f"v_add_f32 v{n}, v{E}, v{E+1}")
    q(f"v_add_f32 v{c2}, v{E+2}, v{E+3}")
    q(f"v_add_f32 v{m}, v{src[0]}, v{src[1]}")
    q(f"v_add_f32 v{c1}, v{src[2]}, v{src[3]}")
    for i in (4, 6):
        q(f"v_add_f32 v{n}, v{n}, v{E+i}")
        q(f"v_add_f32 v{c2}, v{c2}, v{E+i+1}")
        q(f"v_add_f32 v{m}, v{m}, v{src[i]}")
        q(f"v_add_f32 v{c1}, v{c1}, v{src[i+1]}")
    q(f"v_add_f32 v{n}, v{n}, v{E+8}")
    q(f"v_add_f32 v{m}, v{m}, v{src[8]}")
    q(f"v_add_f32 v{n}, v{n}, v{c2}")
    q(f"v_add_f32 v{m}, v{m}, v{c1}")
    q(f"v_permlane32_swap_b32 v{m}, v{n}")
    q(f"v_add_f32 v{m}, v{m}, v{n}")
    q(f"v_rcp_f32 v{m}, v{m}")
    q(f"v_mov_b32 v{n}, v{m}")
    q(f"v_permlane32_swap_b32 v{m}, v{n}")
    for i in range(9): q(f"v_mul_f32 v{src[i]}, v{src[i]}, v{m}")
    for i in range(9): q(f"v_mul_f32 v{E+i}, v{E+i}, v{n}")
    allv = list(src) + [E + i for i in range(9)]
    for i in range(9): q(f"v_cvt_pk_bf16_f32 v{outs[i]}, v{allv[2*i]}, v{allv[2*i+1]}")

def moves_a2(q):
    for tt in range(2): q(f"v_mul_f32 v{SM+tt}, 0x{np_f32(-1/L2E):08x}, v{RL+tt}")
    for tt in range(2):
        a = acc(0, tt); m = MV + 8*tt
        q(f"v_mov_b32 v{m+6}, v{a}")
        q(f"v_mov_b32 v{m+7}, v{a+1}")
        for r in range(9): q(f"v_mul_f32 v{a+2+r}, v{a+2+r}, v{SM+tt}")
        for r in range(4): q(f"v_cvt_pk_bf16_f32 v{m+r}, v{a+2+2*r}, v{a+3+2*r}")
        q(f"v_cvt_pk_bf16_f32 v{m+4}, v{a+10}, 1.0")

PA = KA + 24
def k_part(q):
    KF = E
    for tt in range(2):
        a = acc(4, tt); m = MV + 8*tt
        src = [a+9+i for i in range(7)] + [m+6, m+7]
        outs = [a+10, a+11, a+12, a+13, a+14, a+15, E, E+1, m+5]
        softmax2(q, src, outs, RL+tt)
        for off, r in ((0, a+10), (16, a+12), (32, a+14), (48, E), (64, m), (80, m+2), (96, m+4)):
            q(f"ds_write_b64 v{V_SW}, {vr(r,2)} offset:{off}")
        for f, cb in enumerate((0, 16, 32, 48)):
            for sec in range(2):
                q(f"ds_read_b64_tr_b16 {vr(KF+4*f+2*sec,2)}, v{V_SR} offset:{sec*4*SROW + cb*2}")
        part_addr(q, tt)
        for rt, fa in enumerate((0, 1, 3)):
            for ct, fb in enumerate((2, 3)):
                d = KA + 4*(2*rt + ct)
                q(f"{MF16} {vr(d,4)}, {vr(KF+4*fa,4)}, {vr(KF+4*fb,4)}, {vr(d,4) if tt else '0'}")
    A1, A2, A4, A5 = PA, PA+1, PA+2, PA+3
    q(f"ds_write_b128 v{A1}, {vr(KA,4)}")
    q(f"ds_write_b128 v{A1}, {vr(KA+8,4)} offset:1024")
    q.b("s_mov_b32 exec_lo, 0xff00ff", "s_mov_b32 exec_hi, 0xff00ff", f"ds_write_b128 v{A2}, {vr(KA+4,4)} offset:2048",
        f"ds_write_b128 v{A2}, {vr(KA+12,4)} offset:2560", "s_mov_b32 exec_hi, 0", f"ds_write_b64 v{A5}, {vr(KA+22,2)} offset:3328",
        "s_mov_b32 exec_lo, -1", f"ds_write_b64 v{A4}, {vr(KA+18,2)} offset:3072", "s_mov_b32 exec_hi, -1")

def part_addr(q, half):
    L = V_LANE; A1, A2, A4, A5 = PA, PA+1, PA+2, PA+3
    if half == 0:
        q(f"s_mul_i32 s40, s{S_W}, {SCR_W}")
        q(f"s_add_u32 s40, s40, {SCR}")
        q(f"v_lshl_add_u32 v{A1}, v{L}, 4, s40")
        q(f"v_lshrrev_b32 v{V_A}, 4, v{L}")
        q(f"v_and_b32 v{V_Bq}, 15, v{L}")
        q(f"v_lshl_add_u32 v{V_A}, v{V_A}, 3, v{V_Bq}")
        q(f"v_lshl_add_u32 v{A2}, v{V_A}, 4, s40")
        q(f"v_lshl_add_u32 v{A4}, v{L}, 3, s40")
        q(f"v_lshl_add_u32 v{A5}, v{V_A}, 3, s40")

def kv_reduce():
    q = Prog()
    L = V_LANE; A1, A2, G1_, G2_ = T1, T2, T3, T4
    T = MV
    q(f"s_and_b32 s40, s{S_W}, 1")
    q(f"s_lshr_b32 s41, s{S_W}, 1")
    q.b("s_cmp_eq_u32 s41, 0", "s_cselect_b64 vcc, -1, 0")
    q(f"v_cndmask_b32 v{A1}, v{V_A}, v{L}, vcc")
    q("s_lshl_b32 s42, s40, 10")
    q("s_lshl_b32 s43, s40, 9")
    q("s_add_u32 s43, s43, 2048")
    q.b("s_cmp_eq_u32 s41, 0", "s_cselect_b32 s42, s42, s43")
    q(f"s_add_u32 s42, s42, {SCR}")
    q(f"v_lshl_add_u32 v{A1}, v{A1}, 4, s42")
    for w in range(4): q(f"ds_read_b128 {vr(T+4*w,4)}, v{A1} offset:{w*SCR_W}")
    q.b("s_cmp_eq_u32 s40, 0", "s_cselect_b64 vcc, -1, 0")
    q(f"v_cndmask_b32 v{A2}, v{V_A}, v{L}, vcc")
    q("s_lshl_b32 s42, s40, 8")
    q(f"s_add_u32 s42, s42, {SCR+3072}")
    q(f"v_lshl_add_u32 v{A2}, v{A2}, 3, s42")
    U = (RA+12, RA+14, RA+28, RA+30)
    for w in range(4): q(f"ds_read_b64 {vr(U[w],2)}, v{A2} offset:{w*SCR_W}")
    q(f"v_lshrrev_b32 v{G1_}, 5, v{L}")
    q(f"v_lshlrev_b32 v{G1_}, 10, v{G1_}")
    q(f"v_bfe_u32 v{G2_}, v{L}, 4, 1")
    q(f"v_lshlrev_b32 v{G2_}, 7, v{G2_}")
    q(f"v_lshl_add_u32 v{G2_}, v{V_Bq}, 2, v{G2_}")
    q("s_lshl_b32 s42, s40, 11")
    q("s_lshl_b32 s43, s41, 6")
    q("s_add_u32 s42, s42, s43")
    q(f"v_add3_u32 v{G1_}, v{G1_}, v{G2_}, s42")
    q("s_lshl_b32 s43, s41, 3")
    q("s_sub_u32 s43, 16, s43")
    q(f"v_cmp_gt_u32 vcc, s43, v{V_Bq}")
    q(f"v_mov_b32 v{A1}, {OOB}")
    q(f"v_cndmask_b32 v{G1_}, v{A1}, v{G1_}, vcc")
    q("s_lshl_b32 s42, s40, 6")
    q("s_add_u32 s42, s42, 4096")
    q(f"v_add_u32 v{G2_}, s42, v{G2_}")
    q("s_lshl_b32 s43, s40, 3")
    q("s_sub_u32 s43, 16, s43")
    q.b("s_cmp_eq_u32 s41, 0", "s_cselect_b32 s43, s43, 0")
    q(f"v_cmp_gt_u32 vcc, s43, v{V_Bq}")
    q(f"v_cmp_gt_u32 s[42:43], 32, v{L}")
    q("s_and_b64 vcc, vcc, s[42:43]")
    q(f"v_cndmask_b32 v{G2_}, v{A1}, v{G2_}, vcc")
    for i in range(4):
        q(f"v_add_f32 v{T+i}, v{T+i}, v{T+4+i}")
        q(f"v_add_f32 v{T+8+i}, v{T+8+i}, v{T+12+i}")
    for i in range(2):
        q(f"v_add_f32 v{U[0]+i}, v{U[0]+i}, v{U[1]+i}")
        q(f"v_add_f32 v{U[2]+i}, v{U[2]+i}, v{U[3]+i}")
    for i in range(4): q(f"v_add_f32 v{T+i}, v{T+i}, v{T+8+i}")
    for i in range(2): q(f"v_add_f32 v{U[0]+i}, v{U[0]+i}, v{U[2]+i}")
    for i in range(4):
        q(f"buffer_atomic_add_f32 v{T+i}, v{G1_}, {sr(S_KV)}, s{S_KVB} offen offset:{i*256}", tag="atom")
    for i in range(2):
        q(f"buffer_atomic_add_f32 v{U[0]+i}, v{G2_}, {sr(S_KV)}, s{S_KVB} offen offset:{i*256}", tag="atom")
    return q

def fk_publish():
    q = Prog()
    q(f"s_lshl_b32 s40, s{S_J}, 5")
    q(f"s_add_u32 s40, s40, s{S_BT}")
    q("s_lshl_b32 s40, s40, 3")
    q(f"s_add_u32 s40, s40, {FL_K}")
    q.wait(vm=["atom"])
    flag_store(q, 40, T1)
    q(f"s_lshl_b32 s40, s{S_J}, 8")
    q(f"s_add_u32 s40, s40, {FL_K}")
    q(f"v_and_b32 v{T3}, 31, v{V_LANE}")
    q(f"v_lshl_add_u32 v{T3}, v{T3}, 3, s40")
    q(f"v_lshlrev_b32 v{T4}, 2, v{V_LANE}")
    return q
def fk_load(): return f"buffer_load_dwordx2 {vr(T1,2)}, v{T3}, {sr(S_FL)}, 0 offen sc1"
KVL = MV; KVF = 100
def fk_check_and_load():
    q = Prog()
    check_tokens(q, "K", [fk_load()], [T1])
    q(f"s_add_u32 s40, s{S_KVB}, 4096")
    for s in range(18):
        so = f"s{S_KVB}" if s < 16 else "s40"
        q(f"buffer_load_dword v{KVL+s}, v{T4}, {sr(S_KV)}, {so} offen offset:{(s&15)*256} sc1")
    return q

def q_part():
    q = Prog()
    for tt in range(2):
        a = acc(4, tt)
        softmax2(q, [a+i for i in range(9)], [a+i for i in range(9)], RL+tt)
        for r in (9, 10, 11): q(f"v_mov_b32 v{a+r}, 0")
    return q

def o_finish():
    q = Prog()
    for i in range(9): q(f"v_cvt_pk_bf16_f32 v{KVF+i}, v{KVL+2*i}, v{KVL+2*i+1}")
    for r in (9, 10, 11): q(f"v_mov_b32 v{KVF+r}, 0")
    D_ = (acc(0, 0), acc(0, 1))
    q(f"s_lshl_b32 s40, s{S_MT}, 3")
    q(f"s_lshl_b32 s41, s{S_W}, 1")
    q("s_add_u32 s40, s40, s41")
    q("s_mul_i32 s40, s40, 40960")
    q(f"s_mul_i32 s41, s{S_J}, 1280")
    q("s_add_u32 s40, s40, s41")
    q("s_add_u32 s41, s40, 40960")
    for f in range(3):
        for tt in range(2):
            q(f"{MF} {vr(D_[tt],16)}, {vr(KVF+4*f,4)}, {vr(acc(4,tt)+4*f,4)}, {vr(D_[tt],16) if f else '0'}")
    for tt in range(2):
        d = D_[tt]
        q(f"v_add_f32 v{d+12}, 0x{np_f32(1e-6):08x}, v{d+9}")
        q(f"v_rcp_f32 v{d+12}, v{d+12}")
    for tt in range(2):
        d = D_[tt]
        for r in range(9): q(f"v_mul_f32 v{d+r}, v{d+r}, v{d+12}")
        for r in range(4): q(f"v_cvt_pk_bf16_f32 v{d+r}, v{d+2*r}, v{d+2*r+1}")
        q(f"v_cvt_pk_bf16_f32 v{d+4}, v{d+8}, 0")
        for r in range(5): q(f"buffer_store_dword v{d+r}, v{T4}, {sr(S_OF)}, s{40+tt} offen offset:{r*256} sc1")
    return q

def wd_prefetch(half):
    q = Prog()
    if half:
        q(f"v_add_u32 v{V_B0}, 4096, v{V_B0}")
        q(f"buffer_load_dword v{T2}, v{V_B0}, {sr(S_X)}, s{S_WFB} offen")
        return q
    q("s_lshl_b32 s40, s2, 2")
    q(f"s_add_u32 s40, s40, s{S_W}")
    q.b("s_cmp_lt_u32 s40, 648", f"s_cselect_b32 s{S_X}, s{P_WD}, s{P_WO}", f"s_cselect_b32 s{S_X+1}, s{P_WD+1}, s{P_WO+1}",
        f"s_cselect_b32 s41, 0, 648")
    q.b("s_cmp_lt_u32 s40, 648", f"s_mov_b32 s42, {WOIN_SZ}", f"s_cselect_b32 s{S_X+2}, {WG_SZ}, s42")
    q("s_sub_u32 s40, s40, s41")
    q(f"s_lshl_b32 s{S_WFB}, s40, 13")
    q(f"v_and_b32 v{V_B0}, 31, v{V_LANE}")
    q(f"v_lshlrev_b32 v{V_B0}, 7, v{V_B0}")
    q(f"buffer_load_dword v{T1}, v{V_B0}, {sr(S_X)}, s{S_WFB} offen")
    return q

def wg_flag(arr, tmp):
    q = Prog()
    q(f"s_add_u32 s40, s{S_FI}, s{S_W0}")
    q(f"s_add_u32 s40, s40, {arr}")
    flag_store(q, 40, tmp)
    return q

BFA = V_A
def b_decode():
    q = Prog()
    q("s_and_b32 s40, s2, 7")
    q("s_lshr_b32 s41, s2, 3")
    q("s_mul_i32 s42, s40, 29")
    q("s_min_u32 s43, s40, 2")
    q("s_add_u32 s42, s42, s43")
    q(f"s_add_u32 s{S_BT}, s42, s41")
    q.b("s_cmp_lt_u32 s40, 2", "s_cselect_b32 s43, 30, 29")
    q.b("s_cmp_lt_u32 s41, s43", f"s_cselect_b32 s{S_BT}, s{S_BT}, 255")
    q(f"s_mul_i32 s40, s{S_BT}, 7282")
    q("s_lshr_b32 s40, s40, 16")
    q("s_mul_i32 s40, s40, 80")
    q("s_add_u32 s41, s40, 79")
    q("s_min_u32 s40, s40, 2047")
    q("s_min_u32 s41, s41, 2047")
    q("s_and_b32 s40, s40, 0xf00")
    q("s_and_b32 s41, s41, 0xf00")
    q("s_sub_u32 s41, s41, 256")
    q(f"v_mov_b32 v{BFA}, s40")
    q(f"v_mov_b32 v{V_Bq}, s41")
    q(f"v_cmp_gt_u32 vcc, 32, v{V_LANE}")
    q(f"v_cndmask_b32 v{BFA}, v{V_Bq}, v{BFA}, vcc")
    q(f"v_lshl_add_u32 v{BFA}, v{V_LANE}, 3, v{BFA}")
    q(f"v_add_u32 v{BFA}, {FL_1}, v{BFA}")
    q(f"buffer_load_dwordx2 {vr(T1,2)}, v{BFA}, {sr(S_FL)}, 0 offen sc1")
    q.b("s_getpc_b64 s[42:43]", "LB_pc:")
    q(f"s_mul_i32 s40, s{S_W}, 36")
    q.l.append(Sized("s_add_u32 s40, s40, LK_tab-LB_pc", 8))
    q(f"v_min_u32 v{V_Bq}, 35, v{V_LANE}")
    q(f"v_add_u32 v{V_Bq}, s40, v{V_Bq}")
    q(f"global_load_ubyte v{V_Bq}, v{V_Bq}, s[42:43]")
    return q

def stage_a(p):
    frags = []
    def tr(p_, off): return [("ds_read_b64_tr_b16", 0, 2, TR + p_, off), ("ds_read_b64_tr_b16", 2, 2, TR + p_, off + 256)]
    for g in range(9):
        for p_ in range(4):
            for c in range(4):
                upd = []
                if g and c == 0: upd = [f"v_add_u32 v{TR+p_}, {SLOT if g % 3 else (-2*SLOT) & 0xffffffff}, v{TR+p_}"]
                frags.append((tr(p_, (c >> 1)*512 + (c & 1)*32), c, 4*g + p_, CS4 + 4*c if p_ == 0 else None, upd))
    chains = ["A1", "A2", 4, 5, 6, 7, 8]
    cset = {"A1": 4, "A2": 0, 4: 2, 5: 3, 6: 0, 7: 2, 8: 3}
    cs = {}
    for k, c in enumerate(chains):
        cs[c] = len(frags)
        for s in range(36):
            g, p_ = s >> 2, s & 3
            upd = []
            if c in ("A1", "A2"):
                if s < 4: upd = [f"s_add_u32 s{S_SPIN}, s{S_WX+p_}, {0 if c == 'A1' else BUP}", f"v_add_u32 v{TR+p_}, s{S_SPIN}, v{V_B0}"]
                rd = [("ds_read_b128", 0, 4, TR + p_, g*4096)]
            else:
                if s < 4 and not (c & 1): upd = [f"s_add_u32 s{S_SPIN}, s{S_WX+p_}, {BUF[(c//2 + 1) & 1]}", f"v_add_u32 v{TR+p_}, s{S_SPIN}, v{V_TRL}"]
                rd = tr(p_, g*4096 + (c & 1)*32)
            frags.append((rd, cset[c], s, CSACC + 4*(k & 1) if p_ == 0 else None, upd))
    NF = len(frags)
    bars = {16*g: [f"W{g}"] for g in range(9)}
    bars[cs["A1"]] = ["T0"]
    bars[cs["A2"]] = ["T1"]
    bars[cs[4]] = ["U2"]
    bars[cs[6]] = ["U3"] + [f"h{c}" for c in range(4)]
    bars[cs[8]] = ["U4", "h4", "h5"]
    def reads(n):
        slot = RING + 4*(n & 3)
        return [I(t) for t in frags[n][4]] + [I(f"{op} {vr(slot+o,cnt)}, v{va} offset:{off}", tag=f"fr{n}") for (op, o, cnt, va, off) in frags[n][0]]
    def barrier(tags): return [WaitTag(vm=tags), I("s_waitcnt lgkmcnt(0)"), I("s_barrier")]
    p.add(x_copy(0))
    p.add(barrier(bars[0]))
    p.add(stamp(1))
    p.add(st5(7))
    for n in range(4): p.add(reads(n))
    main = []; G = {}
    for n in range(NF):
        _, st, s, csa, _ = frags[n]
        G[n] = len(main)
        slot = RING + 4*(n & 3)
        mf = [I(f"{MF} {vr(acc(st,tt),16)}, {vr(slot,4)}, {xreg(tt,s)}, {vr(acc(st,tt),16) if s else '0'}") for tt in range(2)]
        f0 = barrier(bars[n + 3]) + reads(n + 3) if (n + 3 < NF and (n + 3) in bars and n + 3 >= 4) else []
        f1 = []
        if n + 1 < NF: f1.append(WaitTag(lg=[f"fr{n+1}"]))
        if n + 4 < NF and (n + 4) not in bars: f1 += reads(n + 4)
        if csa is not None and not OPTS.get("nocs"):
            main.append((I(f"{MF16} {vr(csa,4)}, {vr(SEL,4)}, {vr(slot,4)}, {vr(csa,4) if s else '0'}"), []))
        main.append((mf[0], f0)); main.append((mf[1], f1))
    G[NF] = len(main)
    C = {c: G[cs[c]] for c in cs}; C[9] = G[NF]
    def bar_gap(n): return G[n - 3] + (1 if (frags[n-3][3] is not None and not OPTS.get("nocs")) else 0)
    S = []
    def add(a, b, q, after=None, paced=False):
        S.append((a, b, q, after, paced)); return len(S) - 1
    for g in range(9):
        a, b = G[16*g], bar_gap(16*(g+1))
        q = Prog()
        if g == 0 and not OPTS.get("g1pre", 1): q.add(ring_group(1))
        if g + 2 < 9: q.add(ring_group(g + 2)); add(a, b + 5 - OPTS.get("rend", 0), q, None, OPTS.get("rpace", 1) == 1)
        if g + 1 < 9: add(b - 10, b, x_copy(g + 1))
    add(OPTS.get("f0", 12), G[42], fold_stream())
    add(G[20], G[21], token_issue())
    add(G[42], bar_gap(48), token_share())
    add(G[48], G[53], token_and_stats())
    add(G[72], G[75], fold_flag())
    add(G[16*6] + 8, G[16*6] + 16, handoff_issue())
    k = add(G[16*7], G[16*7] + 2, fw_check())
    add(G[16*7] + 2, bar_gap(16*8) - 10, dma_wf(0), None, True)
    add(G[16*8] + 14, G[16*8] + 22, st_check())
    q = Prog()
    for c in range(4): q.add(cs_write(CS4 + 4*c, 512*c))
    add(G[16*8 + 5], bar_gap(cs["A1"]), q)
    add(G[16*8], G[16*8] + 26, dma_wf(1), None, True)
    q = Prog()
    for g in range(9): q.add(dma_unit_group(2, g))
    add(C["A1"] - 4, C["A2"] + OPTS.get("dend", 10), q, None, True)
    for u, c in ((3, 4), (4, 6)):
        q = Prog()
        for g in range(9): q.add(dma_unit_group(u, g))
        add(C[c] - 4, C[c+1] + OPTS.get("dend", 10), q, None, True)
    area = {"A1": 2048, "A2": CSX, 4: CSX + 512, 5: CSX + 1024, 6: CSX, 7: CSX + 512, 8: CSX + 1024}
    nxt = {"A1": "A2", "A2": 4, 4: 5, 5: 6, 6: 7, 7: 8}
    MB_ = 12
    for k_, c in enumerate(chains[:-1]):
        add(C[nxt[c]] - 3, C[nxt[c]] + 6, cs_write(CSACC + 4*(k_ & 1), area[c]))
        if c != 4:
            g = C[nxt[c]] + MB_ - 1
            main[g] = (main[g][0], [WaitTag(lg=["csw"]), I("s_barrier")] + main[g][1])
    prev = None
    q = Prog()
    mean_fix(q, 0, 0); mean_fix(q, 1, 512); ffn_epi(0, 0, q); mean_fix(q, 2, 1024)
    prev = add(C["A1"] - 3, C["A2"] - 30, q)
    q = Prog(); ffn_epi(1, 1, q); mean_fix(q, 3, 1536)
    prev = add(C["A1"], C["A2"] + 5, q, prev)
    prev = add(C["A2"], C[4] - 40, ffn_epi(2, 2), prev)
    q = Prog(); mean_fix(q, 4, area["A1"]); ffn_epi(3, 3, q)
    prev = add(C["A2"] + MB_, C[4] + 6, q, prev)
    q = Prog(); mean_fix(q, 0, area["A2"])
    fixa2 = prev = add(C[4] + MB_, C[4] + MB_ + 10, q, prev)
    for c, st, a, dl in ((4, 2, C[6], C[7] - 1), (5, 3, C[6] + MB_, bar_gap(cs[8]) - 30), (6, 0, C[7] + MB_, C[8] + 10), (7, 2, C[8] + MB_, C[9])):
        q = Prog(); mean_fix(q, st, area[c]); ffn_epi(st, c, q)
        prev = add(a, dl, q, prev)
    q = Prog(); moves_a2(q); k_part(q)
    kp = add(C[4] + MB_, C[5] + 50, q, fixa2)
    add(C["A2"] + 10, C["A2"] + 20, wd_prefetch(0))
    add(C[5] + 12, C[5] + 14, wd_prefetch(1))
    red = add(C[6] - 2, C[6] + 30, kv_reduce())
    add(C[6] + 30, C[6] + 34, wg_flag(FL_1, T1))
    add(C[5], C[7] + 30, q_part(), kp)
    add(C[8] - 2, C[8] + 2, wg_flag(FL_M, V_A))
    add(C[6] + 62, C[7], fk_publish())
    q = Prog(); q(fk_load()); add(C[7] + 40, C[7] + 42, q)
    add(C[8] + 2, C[8] + 40, fk_check_and_load(), None, True)
    add(C[8] + 40, C[9] - 18, o_finish())
    add(C[9] - 18, C[9] - 4, b_decode())
    if OPTS.get("time") == 2:
        for i, g in enumerate([C["A1"], C["A2"], C[4], C[5], C[6], C[7], C[8]]):
            main[g-1] = (main[g-1][0], main[g-1][1] + [I(f"s_memtime {sr(STAMPS[i+1],2)}")])
        p(f"s_memtime {sr(STAMPS[0],2)}")
    if OPTS.get("time") == 4:
        for i in range(1, 8):
            g = G[16*(i + 1)] if i > 1 else G[16]
            main[g-1] = (main[g-1][0], main[g-1][1] + [I(f"s_memtime {sr(STAMPS[i],2)}")])
        p(f"s_memtime {sr(STAMPS[0],2)}")
    import asmgen
    asmgen.BYTES32 = OPTS.get("b32", 48); asmgen.CARRY = OPTS.get("carry", 8); asmgen.VMEM_COST = OPTS.get("vmc", 2)
    woven, loads = weave(main, S, OPTS.get('cap', 6))
    if OPTS.get("verbose"):
        print("done at", weave.done_at, C, file=sys.stderr)
        pts = [0, 72, 144, 216] + [C[c] for c in chains] + [C[9]]
        for a, b in zip(pts[:-1], pts[1:]):
            print("gaps", a, b, "slack", -sum(loads[a:b]), "over", sum(max(0, x) for x in loads[a:b]), file=sys.stderr)
    p.add(woven)
    AREA8[0] = area[8]
    a_tail_and_b(p, area[8])
NSLOT = 6
B_WD, B_WO, B_X, B_OUT = 4, 8, 12, 16
B_M, B_N, B_HB, B_WDB, B_HO, B_WDO, B_LB, B_IT, B_IX = 37, 38, 45, 46, 47, 48, 49, 50, 51
BV_H, BV_D, BV_T, BV_O, BV_XO, BV_R, BV_FD, BT0, BT1 = 16, 21, 25, 26, 31, 34, 36, 38, 39
BV_TAB, BV_FA = V_Bq, V_A
ACC1, ACC2, AF, XR, BV_RS = 48, 128, 208, 2, 40
TMP = 232
RED1 = 4 * NSLOT * 4096; RB = 0
def hreg(slot, tt): return ar(20*slot + 4*tt, 4)
def accr(base, tt, nt): return base + 16*tt + 4*nt

def issue_down(p, slot):
    p(f"v_readlane_b32 s40, v{BV_TAB}, s{B_IX}")
    p(f"s_add_u32 s{B_IX}, s{B_IX}, 1")
    p(f"s_lshl_b32 s41, s40, 10")
    p(f"s_add_u32 s{B_HO}, s{B_HB}, s41")
    p(f"s_mul_i32 s41, s40, {32*1152}")
    p(f"s_add_u32 s{B_WDO}, s{B_WDB}, s41")
    for i in range(4):
        p(f"s_add_u32 m0, s{B_LB}, {slot*4096 + i*1024}")
        p(f"buffer_load_dwordx4 {hreg(slot,i)}, v{BV_H+i}, {sr(S_HF)}, s{B_HO} offen sc1")
        p(f"buffer_load_dwordx4 v{BV_D+i}, {sr(B_WD)}, s{B_WDO} offen lds", tag=f"D{slot}")
    p(f"buffer_load_dwordx4 {hreg(slot,4)}, v{BV_H+4}, {sr(S_HF)}, s{B_HO} offen sc1")

def issue_s(p, slot, i):
    p(f"s_lshl_b32 s40, s{S_W}, 4")
    p(f"s_add_u32 s40, s40, {64*i}")
    p("s_lshl_b32 s41, s40, 7")
    for i4 in range(4):
        a = TMP + 4*i4
        p(f"v_add3_u32 v{a}, v{TMP+16}, s40, {4*i4}")
        p(f"v_mul_u32_u24 v{a+1}, 6554, v{a}")
        p(f"v_lshrrev_b32 v{a+1}, 16, v{a+1}")
        p(f"v_mul_u32_u24 v{a+2}, 10, v{a+1}")
        p(f"v_sub_u32 v{a+2}, v{a}, v{a+2}")
        p(f"v_lshl_add_u32 v{a}, v{a+1}, 3, v{a}")
        p(f"v_mul_u32_u24 v{a}, 1152, v{a}")
        p(f"v_add_u32 v{a}, v{a}, v{TMP+17}")
        p(f"v_cmp_gt_u32 vcc, 9, v{a+2}")
        p(f"v_cndmask_b32 v{a}, v{TMP+18}, v{a}, vcc")
        p(f"s_add_u32 m0, s{B_LB}, {slot*4096 + i4*1024}")
        p("s_nop 0")
        p(f"buffer_load_dwordx4 v{a}, {sr(B_WO)}, 0 offen lds", tag=f"D{slot}")
    for tt in range(5):
        for k in range(4):
            p(f"buffer_load_dword a{20*slot+4*tt+k}, v{BV_O+tt}, {sr(S_OF)}, s41 offen offset:{256*k} sc1")

def compute(p, slot, accb, manual, first=False):
    af = AF + (0 if accb == ACC2 else 0)
    if not manual: p.wait(vm=[f"D{slot}"])
    for nt in range(4):
        for sec in range(2):
            p(f"ds_read_b64_tr_b16 {vr(af+4*nt+2*sec,2)}, v{BV_T} offset:{slot*4096 + nt*8 + sec*1024}")
    for nt in range(4):
        if manual: p(f"s_waitcnt lgkmcnt({6-2*nt})")
        for tt in range(5):
            d = accr(accb, tt, nt)
            p(f"{MF16} {vr(d,4)}, {vr(af+4*nt,4)}, {hreg(slot,tt)}, {'0' if first else vr(d,4)}")

PADN = []
def time_out(p):
    if not OPTS.get("time"): return
    p("s_waitcnt vmcnt(0)")
    p.add(stamp(8))
    if OPTS.get("pad"):
        lab = f"LPAD{len(PADN)}"; PADN.append(1)
        p(f"{lab}:")
        p("s_memrealtime s[46:47]")
        p("s_waitcnt lgkmcnt(0)")
        p(f"s_sub_u32 s46, s46, s{STAMPS[0]}")
        p(f"s_cmp_lt_u32 s46, {OPTS['pad']}")
        p(f"s_cbranch_scc1 {lab}")
        return
    if OPTS.get("dbg"):
        p("s_load_dwordx2 s[46:47], s[0:1], 72")
        p("s_waitcnt lgkmcnt(0)")
        srd(p, 40, 46, 0, 256)
        p("s_and_b32 s44, s2, 63")
        p(f"s_or_b32 s44, s44, s{S_W}")
        p(f"s_cmp_eq_u32 s44, 0")
        p(f"s_cselect_b32 s44, 0, {OOB}")
        p("s_lshr_b32 s45, s2, 6")
        p("s_mul_i32 s45, s45, 12")
        p("s_add_u32 s44, s44, s45")
        p("s_add_u32 s44, s44, 16")
        for k, i in enumerate((1, 2, 8)):
            p(f"s_sub_u32 s45, s{STAMPS[i]}, s{STAMPS[0]}")
            p(f"v_mov_b32 v{28+k}, s45")
        p(f"buffer_store_dwordx3 v[28:30], v{V_FL}, s[40:43], s44 offen")
        return
    srd(p, 40, P_WS, WS_USED, 131072)
    p("s_waitcnt lgkmcnt(0)")
    for i in range(9): p(f"v_mov_b32 v{28+i}, s{STAMPS[i]}")
    p("s_lshl_b32 s44, s2, 2")
    p(f"s_add_u32 s44, s44, s{S_W}")
    p("s_lshl_b32 s44, s44, 6")
    p("v_mov_b32 v26, s44")
    p("buffer_store_dwordx4 v[28:31], v26, s[40:43], 0 offen")
    p("buffer_store_dwordx4 v[32:35], v26, s[40:43], 0 offen offset:16")
    p("buffer_store_dword v36, v26, s[40:43], 0 offen offset:32")

def zipweave(a, b):
    a = flat(a); b = flat(b)
    out = []; ia = ib = 0
    while ia < len(a) or ib < len(b):
        if ib >= len(b) or (ia < len(a) and ia * len(b) <= ib * len(a)):
            out.append(a[ia]); ia += 1
        else:
            out.append(b[ib]); ib += 1
    return out

def red_write(p, accb, w, base):
    for u in range(10):
        o = u % 4
        if o == w: continue
        tt, np_ = u >> 1, u & 1
        off = base + (u*3 + (w - o - 1) % 4) * 2048
        for h_ in range(2):
            p(f"ds_write_b128 v{BV_R + (off >> 16)}, {vr(accr(accb,tt,2*np_+h_),4)} offset:{(off & 0xffff) + h_*1024}")
def red_read(p, accb, u, base, t):
    tt, np_ = u >> 1, u & 1
    a = accr(accb, tt, 2*np_)
    for sl in range(3):
        off = base + (u*3 + sl) * 2048
        for h_ in range(2):
            p(f"ds_read_b128 {vr(t+8*sl+4*h_,4)}, v{BV_R + (off >> 16)} offset:{(off & 0xffff) + h_*1024}")
def red_add(p, accb, u, t):
    tt, np_ = u >> 1, u & 1
    a = accr(accb, tt, 2*np_)
    for sl in range(3):
        for r in range(8): p(f"v_add_f32 v{a+r}, v{a+r}, v{t+8*sl+r}")

def a_tail_and_b(p, area8):
    L = V_LANE
    p.add(cs_write(CSACC, area8))
    p(f"s_add_u32 s{S_WFB}, s{S_FI}, s{S_W0}")
    p(f"s_add_u32 s{S_WFB}, s{S_WFB}, {FL_2}")
    p(f"s_mul_i32 s43, s{S_BT}, 7282")
    p(f"s_lshr_b32 s{B_M}, s43, 16")
    p(f"s_mul_i32 s43, s{B_M}, 9")
    p(f"s_sub_u32 s{B_N}, s{S_BT}, s43")
    srd(p, B_WD, P_WD, 0, WG_SZ)
    p(f"v_lshlrev_b32 v{BV_H}, 4, v{L}")
    for tt in range(1, 5): p(f"v_add_u32 v{BV_H+tt}, {tt*147456}, v{BV_H}")
    p(f"v_lshrrev_b32 v{BT0}, 3, v{L}")
    p(f"v_mul_u32_u24 v{BT0}, 1152, v{BT0}")
    p(f"v_and_b32 v{BT1}, 7, v{L}")
    p(f"v_lshl_add_u32 v{BV_D}, v{BT1}, 4, v{BT0}")
    for i in range(1, 4): p(f"v_add_u32 v{BV_D+i}, {i*9216}, v{BV_D}")
    p(f"s_mul_i32 s{B_HB}, s{B_M}, {5*147456}")
    p(f"s_lshl_b32 s{B_WDB}, s{B_N}, 7")
    p(f"s_mul_i32 s{B_LB}, s{S_W}, {NSLOT*4096}")
    p(f"s_mov_b32 s{B_IX}, 0")
    check_tokens(p, "F1", [f"buffer_load_dwordx2 {vr(T1,2)}, v{BV_FA}, {sr(S_FL)}, 0 offen sc1"], [T1])
    p(f"v_mov_b32 v{BV_TAB}, v{BV_TAB}")
    p("s_waitcnt lgkmcnt(0)")
    p("s_barrier")
    p.add(stamp(2))
    p(f"s_cmp_eq_u32 s{S_BT}, 255")
    p("s_cbranch_scc1 LB_spare")
    epi = Prog(); mean_fix(epi, 3, area8); ffn_epi(3, 8, epi)
    for r in range(80): epi(f"v_mov_b32 v{ACC1+r}, 0")
    iss = Prog()
    for s in range(NSLOT - 1): issue_down(iss, s)
    z = zipweave(epi.l, iss.l)
    vms = [i for i in z if i.kind in VMK]
    assert max(k for k, i in enumerate(vms) if i.kind == "vst") < len(vms) - 9
    p.add(z)
    srd(p, B_WO, P_WO, 0, WOIN_SZ)
    srd(p, B_X, P_X, 0, X_SZ)
    srd(p, B_OUT, P_OUT, 0, X_SZ)
    p(f"v_add_u32 v{BV_FA}, {FL_M - FL_1}, v{BV_FA}")
    a, b = BT0, BT1
    p(f"v_lshrrev_b32 v{a}, 5, v{L}")
    p(f"v_lshlrev_b32 v{a}, 11, v{a}")
    p(f"v_bfe_u32 v{b}, v{L}, 4, 1")
    p(f"v_lshl_add_u32 v{a}, v{b}, 9, v{a}")
    p(f"v_bfe_u32 v{b}, v{L}, 2, 2")
    p(f"v_lshl_add_u32 v{a}, v{b}, 7, v{a}")
    p(f"v_and_b32 v{b}, 3, v{L}")
    p(f"v_lshl_add_u32 v{a}, v{b}, 5, v{a}")
    p(f"v_add_u32 v{BV_T}, s{B_LB}, v{a}")
    p(f"v_lshrrev_b32 v{a}, 5, v{L}")
    p(f"v_lshlrev_b32 v{a}, 10, v{a}")
    p(f"v_bfe_u32 v{b}, v{L}, 4, 1")
    p(f"v_lshl_add_u32 v{a}, v{b}, 7, v{a}")
    p(f"v_and_b32 v{b}, 15, v{L}")
    p(f"v_lshl_add_u32 v{a}, v{b}, 2, v{a}")
    p(f"s_mul_i32 s40, s{B_M}, 5")
    for tt in range(5):
        p(f"s_add_u32 s41, s40, {tt}")
        p("s_lshr_b32 s42, s41, 1")
        p("s_mul_i32 s42, s42, 40960")
        p("s_and_b32 s41, s41, 1")
        p("s_lshl_b32 s41, s41, 6")
        p("s_add_u32 s41, s41, s42")
        p(f"v_add_u32 v{BV_O+tt}, s41, v{a}")
    p(f"v_add_u32 v{BV_R}, {RED1}, v{BV_H}")
    p(f"s_mul_i32 s40, s{B_M}, 80")
    p(f"s_lshr_b32 s41, s{S_W}, 1")
    p("s_lshl_b32 s41, s41, 4")
    p("s_add_u32 s40, s40, s41")
    p(f"v_add_u32 v{a}, s40, v{b}")
    p(f"v_lshlrev_b32 v{BV_RS+3}, 4, v{a}")
    p(f"v_add_u32 v{BV_RS+3}, {STO+4}, v{BV_RS+3}")
    p(f"v_mul_u32_u24 v{a}, 1152, v{a}")
    p(f"v_lshrrev_b32 v{b}, 4, v{L}")
    p(f"v_lshl_add_u32 v{a}, v{b}, 5, v{a}")
    p(f"s_and_b32 s41, s{S_W}, 1")
    p("s_lshl_b32 s41, s41, 4")
    p(f"s_add_u32 s40, s{B_WDB}, s41")
    p(f"v_add_u32 v{BV_XO}, s40, v{a}")
    p(f"v_add_u32 v{BV_XO+1}, {32*1152}, v{BV_XO}")
    p(f"v_add_u32 v{BV_XO+2}, {64*1152}, v{BV_XO}")
    p(f"v_bfe_u32 v{TMP+16}, v{L}, 3, 2")
    p(f"v_lshrrev_b32 v{a}, 5, v{L}")
    p(f"v_mul_u32_u24 v{a}, {9*1152}, v{a}")
    p(f"v_and_b32 v{b}, 7, v{L}")
    p(f"v_lshl_add_u32 v{a}, v{b}, 4, v{a}")
    p(f"v_add_u32 v{TMP+17}, s{B_WDB}, v{a}")
    p(f"v_mov_b32 v{TMP+18}, {OOB}")
    p.add(st3(5))
    p(f"s_mov_b32 s{B_IT}, 0")

def stage_b():
    out = ""
    p = Prog()
    fl = f"buffer_load_dwordx2 {vr(BV_FD,2)}, v{BV_FA}, {sr(S_FL)}, 0 offen sc1"
    p("LB_loop:")
    for s in range(NSLOT):
        p(f"s_waitcnt vmcnt({36 if s == 0 else 37})")
        if s == 0:
            p(f"s_and_b32 s40, s{B_IT}, 1")
            p("s_cbranch_scc0 LF2_ok")
            check_tokens(p, "F2", [fl], [BV_FD])
            p(f"s_cmp_eq_u32 s{B_IT}, 1")
            p(f"s_cselect_b32 s40, {FL_2 - FL_M}, 0")
            p(f"v_add_u32 v{BV_FA}, s40, v{BV_FA}")
        if s == 3:
            p(f"s_cmp_eq_u32 s{B_IT}, 0")
            p("s_cbranch_scc0 LB_pub")
            p("s_barrier")
            flag_store(p, S_WFB, BT0)
            p("LB_pub:")
        issue_down(p, (s + NSLOT - 1) % NSLOT)
        if s == 0: p(fl)
        compute(p, s, ACC1, True)
    p(f"s_add_u32 s{B_IT}, s{B_IT}, 1")
    p(f"s_cmp_lt_u32 s{B_IT}, 5")
    p("s_cbranch_scc1 LB_loop")
    out += render(pad_hazards(flat(p.l)))
    seed = Prog()
    for s in range(NSLOT - 1): issue_down(seed, s)
    vm0 = [(set(i.wr), i.tag, i.kind) for i in seed.l if i.kind in VMK]
    p = Prog()
    p.add(st3(6))
    issue_down(p, 5); compute(p, 0, ACC1, False)
    issue_s(p, 0, 0); compute(p, 1, ACC1, False)
    compute(p, 2, ACC1, False)
    issue_s(p, 1, 1); compute(p, 3, ACC1, False)
    compute(p, 4, ACC1, False)
    issue_s(p, 2, 2)
    for u in range(3):
        p(f"buffer_load_dwordx4 {vr(XR+4*u,4)}, v{BV_XO+u}, {sr(B_X)}, 0 offen")
        p(f"buffer_load_dword v{BV_RS+u}, v{BV_RS+3}, {sr(S_FL)}, 0 offen offset:{512*u} sc1")
    compute(p, 5, ACC1, False)
    p.add(st3(7))
    issue_s(p, 3, 3)
    for w in range(1, 4):
        p(f"s_cmp_eq_u32 s{S_W}, {w}")
        p(f"s_cbranch_scc1 LB_w{w}")
    pre = insert_waits(flat(p.l), vm0=vm0)
    vm1 = list(insert_waits.vm)
    out += render(pad_hazards(pre))
    for w in range(4):
        p = Prog()
        if w: p(f"LB_w{w}:")
        p("s_nop 4")
        own = [u for u in range(10) if u % 4 == w]
        def comp(slot, first=False):
            c = Prog(); compute(c, slot, ACC2, False, first); return c.l
        x = Prog(); red_write(x, ACC1, w, RB)
        c = comp(0, True)
        p.add(c[:9]); p.add(zipweave(x.l, c[9:]))
        issue_s(p, 4, 4)
        p("s_waitcnt lgkmcnt(0)")
        p("s_barrier")
        for ui in range(len(own)): p(f"v_mul_f32 v{BV_RS+ui}, v{BV_RS+ui}, v{BV_RS+ui}")
        for ui, u in enumerate(own + [None] * (3 - len(own))):
            x = Prog()
            if u is not None:
                red_read(p, ACC1, u, RB, TMP)
                red_add(x, ACC1, u, TMP)
                f = accr(ACC1, u >> 1, 2*(u & 1))
                for r in range(8): x(f"v_mul_f32 v{f+r}, v{BV_RS+ui}, v{f+r}")
                for r in range(8): x(f"v_mul_f32 v{TMP+r}, s{S_NL2E}, v{f+r}")
                for r in range(8): x(f"v_exp_f32 v{TMP+r}, v{TMP+r}")
                for r in range(8): x(f"v_add_f32 v{TMP+r}, 1.0, v{TMP+r}")
                for r in range(8): x(f"v_rcp_f32 v{TMP+r}, v{TMP+r}")
                for r in range(8): x(f"v_mul_f32 v{f+r}, v{f+r}, v{TMP+r}")
            c = comp(1 + ui)
            p.add(c[:9]); p.add(zipweave(x.l, c[9:]))
        p("s_barrier")
        p.add(comp(4))
        if OPTS.get("time") in (1, 3): p.add(stamp(3))
        red_write(p, ACC2, w, RB)
        p("s_waitcnt lgkmcnt(0)")
        p("s_barrier")
        bufs = []
        for ui, u in enumerate(own):
            free = [x for x in range(10) if x % 4 != w]
            t = [accr(ACC2, x >> 1, 2*(x & 1)) for x in free]
            bufs.append(t[2*ui:2*ui+2] + [TMP + 8*ui] if ui < 3 else None)
            tt, np_ = u >> 1, u & 1
            for sl in range(3):
                off = RB + (u*3 + sl) * 2048
                for h_ in range(2):
                    p(f"ds_read_b128 {vr(bufs[ui][sl]+4*h_,4)}, v{BV_R + (off >> 16)} offset:{(off & 0xffff) + h_*1024}")
        for ui, u in enumerate(own):
            f = accr(ACC1, u >> 1, 2*(u & 1)); s_ = accr(ACC2, u >> 1, 2*(u & 1)); x = XR + 4*ui
            X8 = AF
            for r in range(4):
                p(f"v_lshlrev_b32 v{X8+2*r}, 16, v{x+r}")
                p(f"v_and_b32 v{X8+2*r+1}, 0xffff0000, v{x+r}")
            for sl in range(3):
                for r in range(8): p(f"v_add_f32 v{s_+r}, v{s_+r}, v{bufs[ui][sl]+r}")
            for r in range(8): p(f"v_fma_f32 v{f+r}, v{f+r}, v{s_+r}, v{X8+r}")
            for r in range(4): p(f"v_cvt_pk_bf16_f32 v{x+r}, v{f+2*r}, v{f+2*r+1}")
            p(f"buffer_store_dwordx4 {vr(x,4)}, v{BV_XO+ui}, {sr(B_OUT)}, 0 offen")
        time_out(p)
        p("s_endpgm")
        out += render(pad_hazards(insert_waits(flat(p.l), vm0=vm1)))
    p = Prog()
    p("LB_spare:")
    mean_fix(p, 3, AREA8[0]); ffn_epi(3, 8, p)
    p("s_waitcnt vmcnt(0)")
    p("s_barrier")
    flag_store(p, S_WFB, BT0)
    p("s_endpgm")
    out += finalize(p.l)
    return out
AREA8 = [0]

def ktable():
    lv = [[], [], []]
    for j in range(32):
        order = (0, 1, 2, 3) if j % 4 in (0, 3) else (1, 2, 0, 3)
        ks = lambda u: 9*(j >> 1) + (5 if j & 1 else 0) + u
        lv[0] += [ks(order[0]), ks(order[1])]; lv[1].append(ks(order[2])); lv[2].append(ks(3))
        if not j & 1: lv[2].append(9*(j >> 1) + 4)
    allk = sorted(lv[0]) + sorted(lv[1]) + sorted(lv[2])
    assert sorted(allk) == list(range(144))
    out = "LK_tab:\n"
    for w in range(4): out += ".byte " + ", ".join(str(allk[4*i + w]) for i in range(36)) + "\n"
    return out + ".p2align 2\n"

def gen(name, opts):
    OPTS.clear(); OPTS.update(opts); SLOW.clear()
    out = entry(name)
    p = Prog()
    prologue(p)
    stage_a(p)
    out += finalize(p.l)
    out += stage_b()
    for s in SLOW: out += finalize(s.l)
    out += "LK_end:\n    s_endpgm\n"
    out += ktable()
    out += kd(name, 512, 102, 256)
    return out

if __name__ == "__main__":
    NAME = "recurrent_scan__linear_kernel_hedgehog__swiglu_ffn__prompt"
    HDR = open(f"cdna_kernels/{NAME}.s.ref").read().split("; Override launch geometry")[0]
    opts = {}
    for a in sys.argv[2:]:
        k, v = a.split("=")
        opts[k] = int(v) if v.lstrip("-").isdigit() else v
    txt = HDR + f"; @launch grid=(256,1,1) block=(256,1,1) lds={LDS_BYTES}\n" + '.amdgcn_target "amdgcn-amd-amdhsa--gfx950"\n.text\n' + gen(NAME + "_kernel", opts)
    open(sys.argv[1], "w").write(txt)
```

```python
import struct, sys
from asmgen import *
from layout import *

def np_f32(x): return struct.unpack("<I", struct.pack("<f", x))[0]
def vr(b, n): return f"v[{b}:{b+n-1}]"
def ar(b, n): return f"a[{b}:{b+n-1}]"
def sr(b, n=4): return f"s[{b}:{b+n-1}]"
def srd(p, d, base, off, size):
    if off:
        p(f"s_add_u32 s{d}, s{base}, {off}")
        p(f"s_addc_u32 s{d+1}, s{base+1}, 0")
    else:
        p(f"s_mov_b32 s{d}, s{base}")
        p(f"s_mov_b32 s{d+1}, s{base+1}")
    p(f"s_mov_b32 s{d+2}, {size}")
    p(f"s_mov_b32 s{d+3}, 0x20000")

MF = "v_mfma_f32_32x32x16_bf16"
MF8 = "v_mfma_f32_32x32x8_bf16"
MF16 = "v_mfma_f32_16x16x32_bf16"
L2E = 1.4426950408889634
OOB = 0x7ff00000
SPIN = 100000
STO = 32768
SLOT = 49184; PUP = 8224; XP = 16416
BUF = (0, 73760); BUP = 36896
SCR = 3 * SLOT; SCR_W = 3600; SROW = 112
CSX = 4 * SCR_W
TOKA = SCR + CSX + 1536
LDS_BYTES = TOKA + 64
P_X, P_WQKV, P_WPHI, P_WO, P_WG, P_WU, P_WD, P_OUT, P_DBG, P_WS = 64, 66, 68, 70, 72, 74, 76, 78, 80, 82
S_X, S_WF, S_WG, S_WU, S_HF, S_KV, S_OF, S_FL = 4, 8, 12, 16, 20, 24, 28, 32
S_W, S_MT, S_J, S_FI = 36, 37, 38, 39
S_M0X, S_M0W, S_FB, S_CG, S_NL2E, S_M0P, S_SPIN, S_TOK, S_SO, S_SO2, S_KVB, S_BT = 3, 44, 45, 50, 55, 56, 57, 58, 60, 61, 62, 63
S_WX = 66
S_WFB = 80
S_RG = 100
S_W0 = 81
STAMPS = list(range(84, 102, 2))
V_FL, V_LANE, V_W, V_H, V_SW, V_SR, V_B0, V_TRL, TR = 0, 1, 2, 3, 4, 5, 6, 7, 8
T1, T2, T3, T4 = 12, 13, 14, 15
XT, ACC, RING, RA = 16, 48, 176, 192
MV, E, SM = 80, 96, 106
KA = 48
CSA, MB, RL, SEL, CSACC, CT, EP = 224, 226, 230, 232, 236, 244, 248
V_CW, V_CR, V_A, V_Bq = 244, 245, 246, 247
CS4, XA, XD, WD, STG = 192, 208, 212, 214, 216
OPTS = {}
def stamp(i, modes=(1, 3)):
    return [I(f"s_memrealtime {sr(STAMPS[i],2)}")] if OPTS.get("time", 0) in modes else []
def st5(i):
    return [I(f"s_memtime {sr(STAMPS[i],2)}"), I("s_waitcnt lgkmcnt(0)")] if OPTS.get("time", 0) == 5 else []
def st3(i):
    return [I(f"s_memrealtime {sr(STAMPS[i],2)}"), I("s_waitcnt lgkmcnt(0)")] if OPTS.get("time", 0) == 3 else []
def xreg(tt, s):
    if tt == 0: return ar(4*s, 4)
    if s < 28: return ar(144 + 4*s, 4)
    return vr(XT + 4*(s - 28), 4)
def acc(st, tt): return (RA if st == 4 else ACC + 32*st) + 16*tt

SLOW = []
def check_tokens(q, name, loads, pairs):
    def test(lst):
        for k, v in enumerate(pairs):
            if k == 0: lst.append(f"v_cmp_eq_u64 vcc, {sr(S_TOK,2)}, {vr(v,2)}")
            else:
                lst.append(f"v_cmp_eq_u64 s[42:43], {sr(S_TOK,2)}, {vr(v,2)}")
                lst.append("s_nop 1"); lst.append("s_and_b64 vcc, vcc, s[42:43]")
        lst.append("s_nop 1"); lst.append("s_cmp_eq_u64 vcc, -1")
    items = []; test(items)
    q.b(*(items + [f"s_cbranch_scc0 L{name}_slow", f"L{name}_ok:"]))
    s = Prog()
    s(f"L{name}_slow:")
    s(f"s_mov_b32 s{S_SPIN}, 0")
    s(f"L{name}_spin:")
    s("s_sleep 2")
    for l in loads: s(l)
    s("s_waitcnt vmcnt(0)")
    s(f"s_add_u32 s{S_SPIN}, s{S_SPIN}, 1")
    items = []; test(items)
    for t in items: s(t)
    s(f"s_cbranch_scc1 L{name}_ok")
    s(f"s_cmp_lt_u32 s{S_SPIN}, {SPIN}")
    s(f"s_cbranch_scc1 L{name}_spin")
    s(f"s_branch L{name}_ok")
    SLOW.append(s)

def flag_store(q, sidx, tmpv):
    q(f"v_mov_b32 v{tmpv}, s{S_TOK}")
    q(f"v_mov_b32 v{tmpv+1}, s{S_TOK+1}")
    q(f"buffer_store_dwordx2 {vr(tmpv,2)}, v{V_FL}, {sr(S_FL)}, s{sidx} offen sc1")

def row16_allreduce(p, v):
    for r in (8, 4, 2, 1):
        p(f"v_add_f32_dpp v{v}, v{v}, v{v} row_ror:{r} row_mask:0xf bank_mask:0xf")
def half_allreduce(p, v, t):
    row16_allreduce(p, v)
    p(f"v_mov_b32 v{t}, v{v}")
    p(f"v_permlane16_swap_b32 v{v}, v{t}")
    p(f"v_add_f32 v{v}, v{v}, v{t}")
def bf16_round(p, v):
    p(f"v_cvt_pk_bf16_f32 v{v}, v{v}, v{v}")
    p(f"v_and_b32 v{v}, 0xffff0000, v{v}")

def rg_next(q):
    q.b(f"s_add_u32 s{S_RG}, s{S_RG}, 1", f"s_cmp_eq_u32 s{S_RG}, 9", f"s_cselect_b32 s{S_RG}, 0, s{S_RG}")
def ring_group(g):
    b = (g % 3) * SLOT
    q = Prog()
    q(f"s_mul_i32 s{S_SO}, s{S_RG}, 589824")
    q(f"s_add_u32 s{S_SO}, s{S_SO}, s{S_FB}")
    for h8 in range(2):
        q(f"s_add_u32 m0, s{S_M0P}, {b + h8*1024}")
        if h8: q(f"s_add_u32 s{S_SO}, s{S_SO}, 73728")
        else: q("s_nop 0")
        q(f"buffer_load_dwordx4 v{WD}, {sr(S_WG)}, s{S_SO} offen lds", tag=f"W{g}")
        q(f"s_add_u32 m0, s{S_M0P}, {b + PUP + h8*1024}")
        q(f"s_nop 0")
        q(f"buffer_load_dwordx4 v{WD}, {sr(S_WU)}, s{S_SO} offen lds", tag=f"W{g}")
    for i in range(8):
        q(f"s_add_u32 m0, s{S_M0X}, {b + XP + i*1024}")
        q(f"s_add_u32 s{S_SO}, s{S_SO}, 9216" if i else f"s_lshl_b32 s{S_SO}, s{S_RG}, 7")
        q(f"buffer_load_dwordx4 v{XD + (i & 1)}, {sr(S_X)}, s{S_SO} offen lds", tag=f"X{g}")
    rg_next(q)
    return q

def x_copy(g):
    q = Prog()
    q.wait(vm=[f"X{g}"])
    for p_ in range(4):
        if g: q(f"v_add_u32 v{XA+p_}, {SLOT if g % 3 else (-2*SLOT) & 0xffffffff}, v{XA+p_}")
        for tt in range(2):
            q(f"ds_read_b128 {xreg(tt, 4*g+p_)}, v{XA+p_} offset:{tt*4096}")
    return q

def dma_unit_group(u, g):
    b = BUF[(u + 1) & 1]
    q = Prog()
    q(f"s_mul_i32 s{S_SO}, s{S_RG}, 589824")
    q(f"s_add_u32 m0, s{S_M0W}, {b + g*4096}")
    q(f"s_add_u32 s{S_SO}, s{S_SO}, s{S_FB+u}")
    q(f"buffer_load_dwordx4 v{V_W}, {sr(S_WG)}, s{S_SO} offen lds", tag=f"U{u}")
    q(f"s_add_u32 m0, s{S_M0W}, {b + BUP + g*4096}")
    rg_next(q)
    q(f"buffer_load_dwordx4 v{V_W}, {sr(S_WU)}, s{S_SO} offen lds", tag=f"U{u}")
    return q

def dma_wf(t):
    q = Prog()
    for g in range(9):
        q(f"s_lshl_b32 s{S_SO}, s{S_RG}, 12")
        q(f"s_add_u32 m0, s{S_M0W}, {t*BUP + g*4096}")
        q(f"s_add_u32 s{S_SO}, s{S_SO}, s{S_WFB}")
        q(f"buffer_load_dwordx4 v{V_B0}, {sr(S_WF)}, s{S_SO} offen sc1 lds", tag=f"T{t}")
        rg_next(q)
    if t == 0: q(f"s_add_u32 s{S_WFB}, s{S_WFB}, 36864")
    return q

TKR = STG + 6
GA = STG + 4
TOKLD = f"buffer_load_dwordx2 {vr(TKR,2)}, v{GA+1}, s[20:23], 0 offen sc1"
FA = 112
SR_ = 224
F_VA, F_VB, F_RHO, F_HF, F_DV, F_Z = 236, 238, 240, 241, 242, 243
def prologue(p):
    L = V_LANE
    p("s_cmp_ge_u32 s2, 256")
    p("s_cbranch_scc1 LK_end")
    p.add(st5(0))
    p("s_load_dwordx8 s[64:71], s[0:1], 0")
    p("s_load_dwordx8 s[72:79], s[0:1], 40")
    p("s_load_dwordx4 s[80:83], s[0:1], 72")
    p.add(stamp(0))
    p("v_lshrrev_b32 v14, 6, v0")
    p(f"v_and_b32 v{L}, 63, v0")
    p(f"v_readfirstlane_b32 s{S_W}, v14")
    p("s_and_b32 s40, s2, 7")
    p("s_lshr_b32 s41, s2, 3")
    p("s_and_b32 s42, s40, 1")
    p("s_lshl_b32 s42, s42, 2")
    p("s_and_b32 s43, s41, 3")
    p(f"s_add_u32 s{S_MT}, s42, s43")
    p("s_lshr_b32 s42, s40, 1")
    p("s_lshl_b32 s42, s42, 3")
    p("s_lshr_b32 s43, s41, 2")
    p(f"s_add_u32 s{S_J}, s42, s43")
    p(f"s_lshl_b32 s{S_M0W}, s{S_W}, 10")
    p(f"s_lshl_b32 s{S_M0P}, s{S_W}, 11")
    p(f"s_lshl_b32 s{S_M0X}, s{S_W}, 13")
    p(f"s_lshl_b32 s{S_BT}, s{S_W}, 3")
    p(f"s_add_u32 s{S_BT}, s{S_BT}, s{S_MT}")
    p(f"s_mul_i32 s40, s{S_J}, 144")
    p(f"s_and_b32 s41, s{S_J}, 1")
    p("s_lshl_b32 s42, s41, 4")
    p("s_add_u32 s42, s42, s40")
    p("s_cmp_eq_u32 s41, 0")
    p("s_cselect_b32 s43, 128, 0")
    p("s_add_u32 s43, s43, s40")
    p(f"s_add_u32 s40, s{S_J}, 1")
    p("s_and_b32 s40, s40, 2")
    p("s_lshl_b32 s40, s40, 4")
    p(f"s_add_u32 s{S_FB}, s42, s40")
    p(f"s_lshl_b32 s{S_FB}, s{S_FB}, 1")
    p(f"v_lshrrev_b32 v17, 5, v{L}")
    p(f"v_and_b32 v19, 31, v{L}")
    p(f"s_lshl_b32 s{S_FI}, s{S_MT}, 5")
    p(f"s_add_u32 s{S_FI}, s{S_FI}, s{S_J}")
    p(f"s_lshl_b32 s{S_FI}, s{S_FI}, 3")
    p(f"s_lshl_b32 s{S_SO2}, s{S_W}, 1")
    p(f"s_add_u32 s{S_SO2}, s{S_SO2}, s{S_FI}")
    p(f"v_add_u32 v16, s{S_SO2}, v17")
    p("v_mul_u32_u24 v15, 1152, v16")
    p("v_lshl_add_u32 v15, v19, 2, v15")
    p(f"s_add_u32 s{S_RG}, s{S_MT}, s{S_J}")
    p(f"s_mul_i32 s{S_KVB}, s{S_RG}, 7282")
    p(f"s_lshr_b32 s{S_KVB}, s{S_KVB}, 16")
    p(f"s_mul_i32 s{S_KVB}, s{S_KVB}, 9")
    p(f"s_sub_u32 s{S_RG}, s{S_RG}, s{S_KVB}")
    if OPTS.get("norot"): p(f"s_mov_b32 s{S_RG}, 0")
    p(f"v_lshrrev_b32 v12, 3, v{L}")
    p(f"s_lshl_b32 s{S_SO2}, s{S_MT}, 2")
    p(f"s_add_u32 s{S_SO2}, s{S_SO2}, s{S_W}")
    p(f"s_lshl_b32 s{S_SO2}, s{S_SO2}, 6")
    p(f"v_add_u32 v13, s{S_SO2}, v12")
    p("v_mul_u32_u24 v13, 1152, v13")
    p("v_lshrrev_b32 v12, 1, v12")
    p(f"v_and_b32 v14, 7, v{L}")
    p("v_xor_b32 v12, v12, v14")
    p(f"v_lshl_add_u32 v{XD}, v12, 4, v13")
    p(f"v_xor_b32 v{XD+1}, 64, v{XD}")
    p(f"v_bfe_u32 v12, v{L}, 2, 3")
    p(f"s_lshl_b32 s{S_SO2}, s{S_W}, 4")
    p(f"v_add_u32 v12, s{S_SO2}, v12")
    p("v_mul_u32_u24 v12, 9216, v12")
    p("v_lshl_add_u32 v12, v17, 6, v12")
    p(f"v_and_b32 v13, 3, v{L}")
    p(f"v_lshl_add_u32 v{WD}, v13, 4, v12")
    p(f"v_cmp_eq_u32 vcc, 0, v{L}")
    p(f"v_mov_b32 v18, {OOB}")
    p(f"v_cndmask_b32 v{V_FL}, v18, v{L}, vcc")
    p(f"v_lshlrev_b32 v{V_B0}, 4, v{L}")
    p("s_waitcnt lgkmcnt(0)")
    p.add(st5(1))
    srd(p, S_X, P_X, 0, X_SZ)
    code_touch(p)
    for i in range(9): p(f"buffer_load_dword v{SR_+i}, v15, {sr(S_X)}, 0 offen offset:{128*i}")
    srd(p, S_WG, P_WG, 0, WG_SZ)
    srd(p, S_WU, P_WU, 0, WG_SZ)
    srd(p, 24, P_WQKV, 0, WQKV_SZ)
    p(f"v_min_u32 v20, 15, v{L}")
    p("v_lshlrev_b32 v20, 7, v20")
    p("s_lshl_b32 s46, s2, 2")
    p(f"s_add_u32 s46, s46, s{S_W}")
    p("s_lshl_b32 s46, s46, 11")
    p(f"buffer_load_dword v{EP}, v20, s[24:27], s46 offen")
    g0 = ring_group(0).l
    cut = [k for k, i in enumerate(g0) if i.kind == "dma"][OPTS.get("cut", 5)] - 2
    p.add(g0[:cut])
    srd(p, 20, P_DBG, 0, 256)
    p(f"s_or_b32 s46, s2, s{S_W}")
    p(f"s_cmp_lg_u32 s46, 0")
    p("s_cbranch_scc1 LT_skip")
    p("s_memrealtime s[46:47]")
    p("v_mov_b32 v34, 0")
    p("v_mov_b32 v35, 0")
    p("s_waitcnt lgkmcnt(0)")
    p("s_or_b32 s46, s46, 1")
    p("v_mov_b32 v32, s46")
    p("v_mov_b32 v33, s47")
    p.l.append(Raw(f"    buffer_atomic_cmpswap_x2 v[32:35], v{V_FL}, s[20:23], 0 offen sc1"))
    p("LT_skip:")
    p.add(st5(2))
    p(f"s_add_u32 s{S_FB+1}, s{S_FB}, 64")
    p("s_lshl_b32 s40, s40, 1")
    p("s_sub_u32 s40, 64, s40")
    p("s_add_u32 s40, s40, s42")
    p(f"s_lshl_b32 s{S_FB+2}, s40, 1")
    p(f"s_add_u32 s42, s42, 96")
    p(f"s_lshl_b32 s{S_FB+3}, s42, 1")
    p(f"s_lshl_b32 s{S_FB+4}, s43, 1")
    for u in range(5): p(f"s_lshl_b32 s{S_CG+u}, s{S_FB+u}, 4")
    p(f"s_mul_i32 s{S_KVB}, s{S_J}, 4608")
    srd(p, S_WF, P_WS, WF_OFF, WF_SZ)
    srd(p, 28, P_WPHI, 0, WPHI_SZ)
    srd(p, S_FL, P_WS, FL_OFF, FL_SZ + ST_SZ)
    for i in range(4):
        p(f"s_xor_b32 s{S_WX+i}, s{S_W}, {i}")
        p(f"s_lshl_b32 s{S_WX+i}, s{S_WX+i}, 10")
    p(f"s_mul_i32 s{S_WFB}, s{S_J}, 73728")
    p(f"s_add_u32 s{S_WFB}, s{S_WFB}, s{S_M0W}")
    p(f"s_cmp_eq_u32 s{S_W}, 0")
    p(f"s_cselect_b32 s{S_W0}, 0, {OOB}")
    p(f"v_bfe_u32 v12, v{L}, 2, 2")
    p(f"v_and_b32 v13, 3, v{L}")
    p("v_lshlrev_b32 v13, 3, v13")
    p("v_lshl_add_u32 v12, v12, 6, v13")
    p(f"v_bfe_u32 v13, v{L}, 4, 1")
    p(f"v_mul_u32_u24 v14, {BUP}, v13")
    p("v_add_u32 v14, v14, v12")
    p(f"v_lshl_add_u32 v{V_TRL}, v17, 9, v14")
    p(f"v_mul_u32_u24 v14, {PUP}, v13")
    p("v_add_u32 v14, v14, v12")
    p("v_lshl_add_u32 v14, v17, 10, v14")
    for i in range(4):
        p(f"s_lshl_b32 s40, s{S_WX+i}, 1")
        p(f"v_add_u32 v{TR+i}, s40, v14")
    p(f"v_bfe_u32 v12, v{L}, 1, 3")
    p("v_xor_b32 v12, v12, v17")
    p(f"s_add_u32 s41, s{S_M0X}, {XP}")
    p("v_lshl_add_u32 v14, v19, 7, s41")
    for i in range(4):
        p(f"s_lshr_b32 s40, s{S_WX+i}, 9")
        p("v_xor_b32 v15, s40, v12")
        p(f"v_lshl_add_u32 v{XA+i}, v15, 4, v14")
    p(f"v_lshrrev_b32 v12, 2, v{L}")
    p(f"s_lshl_b32 s40, s{S_W}, 4")
    p("v_add_u32 v12, s40, v12")
    p("v_mul_u32_u24 v12, 9216, v12")
    p(f"v_and_b32 v14, 3, v{L}")
    p(f"v_lshl_add_u32 v{V_W}, v14, 4, v12")
    p(f"s_lshl_b32 s40, s{S_MT}, 4")
    p(f"s_lshl_b32 s41, s{S_W}, 2")
    p("s_add_u32 s40, s40, s41")
    p("v_add_u32 v12, s40, v13")
    p("v_mul_u32_u24 v12, 147456, v12")
    p(f"v_and_b32 v14, 15, v{L}")
    p("v_lshl_add_u32 v12, v14, 4, v12")
    p(f"v_lshl_add_u32 v{V_H}, v17, 8, v12")
    p(f"s_mul_i32 s40, s{S_W}, {SCR_W}")
    p(f"s_add_u32 s40, s40, {SCR}")
    p(f"v_mul_u32_u24 v12, {SROW}, v19")
    p("v_lshl_add_u32 v12, v17, 3, v12")
    p(f"v_add_u32 v{V_SW}, s40, v12")
    p(f"v_lshrrev_b32 v12, 4, v{L}")
    p(f"v_bfe_u32 v15, v{L}, 2, 2")
    p("v_lshl_add_u32 v12, v12, 3, v15")
    p(f"v_mul_u32_u24 v12, {SROW}, v12")
    p(f"v_and_b32 v15, 3, v{L}")
    p("v_lshl_add_u32 v12, v15, 3, v12")
    p(f"v_add_u32 v{V_SR}, s40, v12")
    p(f"s_lshl_b32 s41, s{S_W}, 7")
    p(f"s_add_u32 s41, s41, {SCR}")
    p(f"v_lshl_add_u32 v{V_CW}, v{L}, 3, s41")
    p("v_lshlrev_b32 v12, 3, v14")
    p("v_lshl_add_u32 v12, v13, 2, v12")
    p(f"v_add_u32 v{V_CR}, {SCR}, v12")
    p(f"s_mov_b32 s{S_NL2E}, 0x{np_f32(-L2E):08x}")
    p(f"v_lshlrev_b32 v16, 4, v16")
    p(f"v_add_u32 v16, {STO}, v16")
    p(f"v_cmp_eq_u32 vcc, 0, v19")
    p(f"v_cndmask_b32 v{GA}, v18, v16, vcc")
    p(f"v_mov_b32 v{F_Z}, 0")
    p(f"v_mov_b32 v{F_HF}, v17")
    p("v_bfe_u32 v22, v19, 2, 1")
    p("v_lshrrev_b32 v23, 3, v19")
    p("v_and_b32 v24, 3, v19")
    p(f"v_lshl_or_b32 v{F_RHO}, v23, 2, v24")
    p("v_mul_u32_u24 v24, 9, v22")
    p(f"v_cmp_gt_u32 vcc, 9, v{F_RHO}")
    p(f"v_subrev_u32 v25, 9, v{F_RHO}")
    p(f"v_cndmask_b32 v25, v25, v{F_RHO}, vcc")
    p("v_add_u32 v25, v25, v24")
    p(f"v_cmp_gt_u32 vcc, 2, v{F_RHO}")
    p(f"v_add3_u32 v26, v{F_RHO}, v24, 7")
    p(f"v_cndmask_b32 v26, v{F_Z}, v26, vcc")
    p(f"s_add_u32 s41, s{S_M0W}, {SCR + 3*SCR_W}")
    p(f"v_lshl_add_u32 v{F_VB}, v25, 1, s41")
    p(f"v_lshl_add_u32 v{F_VB+1}, v26, 1, s41")
    p("v_and_b32 v20, 0x13, v19")
    p("v_and_b32 v21, 4, v19")
    p("v_lshl_or_b32 v20, v21, 1, v20")
    p("v_and_b32 v21, 8, v19")
    p("v_lshrrev_b32 v21, 1, v21")
    p("v_or_b32 v20, v20, v21")
    p("v_mul_u32_u24 v20, 36, v20")
    p(f"v_add_u32 v{V_A}, s40, v20")
    p(f"v_lshl_add_u32 v{V_Bq}, v17, 4, v{V_A}")
    p("v_mul_u32_u24 v27, 288, v17")
    p(f"v_add_u32 v{F_VA}, v{F_VB}, v27")
    p(f"v_add_u32 v{F_VA+1}, v{F_VB+1}, v27")
    p(f"v_subrev_u32 v25, 2, v{F_RHO}")
    p("v_add_u32 v26, v25, v24")
    p("v_cmp_gt_u32 vcc, 9, v25")
    p("v_mov_b32 v31, 255")
    p("v_cndmask_b32 v26, v31, v26, vcc")
    p("v_lshlrev_b32 v27, 3, v17")
    p(f"v_sub_u32 v{F_DV}, v26, v27")
    for i in range(3):
        for r in (1, 2, 3): p(f"v_accvgpr_write_b32 a{FA+12+4*i+r}, 0")
    p.add(st5(3))
    p.add(g0[cut:])
    X = 96; M = STG; V = 118; R = SR_
    for i in range(9):
        p(f"v_lshlrev_b32 v{X+2*i}, 16, v{R+i}")
        p(f"v_and_b32 v{X+2*i+1}, 0xffff0000, v{R+i}")
    p("v_cmp_eq_u32 vcc, v14, v13")
    p("v_mov_b32 v12, 0x3f803f80")
    for r in range(4): p(f"v_cndmask_b32 v{SEL+r}, v{F_Z}, v12, vcc")
    for r in (CSA+1, MB+1, MB+3): p(f"v_mov_b32 v{r}, 0")
    p(f"v_add_f32 v{M}, v{X}, v{X+2}")
    p(f"v_add_f32 v{M+1}, v{X+1}, v{X+3}")
    for i in range(2, 9):
        p(f"v_add_f32 v{M}, v{M}, v{X+2*i}")
        p(f"v_add_f32 v{M+1}, v{M+1}, v{X+2*i+1}")
    p(f"v_add_f32 v{M}, v{M}, v{M+1}")
    half_allreduce(p, M, M+1)
    p(f"v_mul_f32 v{M}, 0x{np_f32(1/576):08x}, v{M}")
    for i in range(18): p(f"v_sub_f32 v{X+i}, v{X+i}, v{M}")
    p(f"v_mul_f32 v{V}, v{X}, v{X}")
    p(f"v_mul_f32 v{V+1}, v{X+1}, v{X+1}")
    for i in range(1, 9):
        p(f"v_fmac_f32 v{V}, v{X+2*i}, v{X+2*i}")
        p(f"v_fmac_f32 v{V+1}, v{X+2*i+1}, v{X+2*i+1}")
    p(f"v_add_f32 v{V}, v{V}, v{V+1}")
    half_allreduce(p, V, V+1)
    p(f"v_mul_f32 v{V}, 0x{np_f32(1/576):08x}, v{V}")
    bf16_round(p, M)
    bf16_round(p, V)
    p(f"v_add_f32 v{V}, 0x{np_f32(1e-5):08x}, v{V}")
    bf16_round(p, V)
    p(f"v_sqrt_f32 v{V}, v{V}")
    bf16_round(p, V)
    p(f"v_rcp_f32 v{M+1}, v{V}")
    p.add(st5(4))
    p(f"s_cmp_ge_u32 s{S_BT}, 18")
    p("s_cbranch_scc1 LP_nofl")
    p(f"s_add_u32 m0, s{S_M0W}, {SCR + 3*SCR_W}")
    p(f"s_mul_i32 s{S_SO}, s{S_J}, 648")
    p.l.append(Raw(f"    buffer_load_dwordx4 v{V_B0}, s[28:31], s{S_SO} offen lds"))
    p(f"v_mul_u32_u24 v20, 7282, v{L}")
    p("v_lshrrev_b32 v20, 16, v20")
    p("v_mul_u32_u24 v21, 9, v20")
    p(f"v_sub_u32 v21, v{L}, v21")
    p("v_mul_u32_u24 v20, 3456, v20")
    p("v_lshl_add_u32 v20, v21, 2, v20")
    p(f"s_mul_i32 s{S_SO}, s{S_BT}, {32*3456}")
    p(f"s_mul_i32 s41, s{S_J}, 36")
    p(f"s_add_u32 s{S_SO}, s{S_SO}, s41")
    for mat in range(3):
        for i in range(5):
            p(f"s_add_u32 m0, s40, {mat*1152 + i*252}")
            p(f"s_add_u32 s41, s{S_SO}, {mat*1152 + i*7*3456}")
            p.l.append(Raw(f"    buffer_load_dword v20, s[24:27], s41 offen lds"))
    p("LP_nofl:")
    p.add(st5(5))
    p(f"v_mov_b32 v{GA+1}, s{S_W0}")
    srd(p, S_KV, P_WS, KV_OFF, KV_SZ)
    srd(p, S_OF, P_WS, OF_OFF, OF_SZ)
    if OPTS.get("g1pre", 1): p.add(ring_group(1))
    p.add(st5(6))
    p.add(stamp(4, (1,)))

def fold_stream():
    q = Prog()
    B0, B1, D, O = XT, XT + 8, XT + 16, EP
    q.wait(vm=["W1"])
    for mat in range(3):
        q(f"v_add_u32 v{D}, {mat*1152}, v{V_Bq}")
        q(f"ds_read2_b32 {ar(FA+4*mat,2)}, v{D} offset0:0 offset1:1")
        q(f"ds_read2_b32 {ar(FA+4*mat+2,2)}, v{D} offset0:2 offset1:3")
        q(f"ds_read_b32 a{FA+12+4*mat}, v{V_A} offset:{mat*1152+32}")
    q(f"s_lshl_b32 s41, s{S_BT}, 11")
    q(f"s_add_u32 s41, s{S_WFB}, s41")
    q(f"s_sub_u32 s41, s41, s{S_M0W}")
    q(f"s_lshl_b32 s43, s{S_BT}, 8")
    q(f"s_add_u32 s43, s43, s{S_KVB}")
    q.b(f"s_cmp_lt_u32 s{S_BT}, 18", f"s_cselect_b32 s41, s41, {OOB}", f"s_cselect_b32 s43, s43, {OOB}")
    q("s_add_u32 s42, s41, 36864")
    for b in (B0, B1):
        for r in (5, 6, 7): q(f"v_mov_b32 v{b+r}, 0")
    for t in range(2):
        for e in range(8): q(f"ds_read_u16 v{D+e}, v{F_VA+t} offset:{e*36}")
        q(f"ds_read_u16 v{D+8}, v{F_VB+t} offset:{16*36}")
        q(f"ds_read_u16 v{D+9}, v{F_VB+t} offset:{17*36}")
        if t == 1:
            q(f"v_mov_b32 v{D+10}, 0x3f80")
            for r, sub in enumerate((0, 2, 4, 6, 16)):
                q(f"v_subrev_u32 v{D+11}, {sub}, v{F_DV}")
                q(f"v_lshlrev_b32 v{D+12}, 4, v{D+11}")
                q(f"v_cmp_gt_u32 vcc, 2, v{D+11}")
                q(f"v_lshlrev_b32 v{D+12}, v{D+12}, v{D+10}")
                q(f"v_cndmask_b32 v{B1+r}, v{F_Z}, v{D+12}, vcc")
        q(f"v_cmp_eq_u32 vcc, 0, v{F_HF}")
        for r in range(5): q(f"v_lshl_or_b32 v{D+r}, v{D+2*r+1}, 16, v{D+2*r}")
        q(f"v_cndmask_b32 v{D+4}, v{F_Z}, v{D+4}, vcc")
        q(f"v_cmp_gt_u32 vcc, {9 if t == 0 else 2}, v{F_RHO}")
        q("s_nop 0")
        for r in range(5): q(f"v_cndmask_b32 v{B0+r}, v{F_Z}, v{D+r}, vcc")
        if t == 0:
            for r in range(5): q(f"v_cndmask_b32 v{B1+r}, v{D+r}, v{F_Z}, vcc")
        a0 = FA + 4*t
        q(f"{MF} {vr(D,16)}, {ar(a0,4)}, {vr(B0,4)}, 0")
        q(f"{MF} {vr(D,16)}, {ar(a0+12,4)}, {vr(B0+4,4)}, {vr(D,16)}")
        q(f"{MF} {vr(D,16)}, {ar(a0+4,4)}, {vr(B1,4)}, {vr(D,16)}")
        q(f"{MF} {vr(D,16)}, {ar(a0+16,4)}, {vr(B1+4,4)}, {vr(D,16)}")
        for r in range(8): q(f"v_cvt_pk_bf16_f32 v{O+r}, v{D+2*r}, v{D+2*r+1}")
        for jj in range(2):
            q(f"buffer_store_dwordx4 {vr(O+4*jj,4)}, v{V_B0}, {sr(S_WF)}, s{41+t} offen offset:{1024*jj} sc1", tag="fold")
    q(f"v_cmp_gt_u32 vcc, 16, v{V_LANE}")
    q(f"v_mov_b32 v{D}, {OOB}")
    q(f"v_mov_b32 v{B0+4}, 0")
    q(f"v_cndmask_b32 v{D}, v{D}, v{V_B0}, vcc")
    q(f"buffer_store_dwordx4 {vr(B0+4,4)}, v{D}, {sr(S_KV)}, s43 offen sc1", tag="fold")
    return q

def code_touch(q):
    L = V_LANE
    q("s_getpc_b64 s[46:47]")
    q("LT_pc:")
    q("s_lshr_b32 s48, s2, 3")
    q("s_lshl_b32 s48, s48, 2")
    q(f"s_add_u32 s48, s48, s{S_W}")
    q("s_cmp_gt_u32 s48, 7")
    q("s_cbranch_scc1 LT_nocode")
    q("s_lshl_b32 s48, s48, 13")
    q(f"v_lshlrev_b32 v21, 7, v{L}")
    q(f"v_add_u32 v21, s48, v21")
    q(f"v_min_u32 v21, LK_end-LT_pc-4, v21")
    q.l.append(Raw(f"    global_load_dword v{EP+7}, v21, s[46:47]"))
    q("LT_nocode:")

def late_touch():
    q = Prog()
    L = V_LANE
    q(f"v_mul_u32_u24 v{T3}, 21846, v{L}")
    q(f"v_lshrrev_b32 v{T3}, 16, v{T3}")
    q(f"v_mul_u32_u24 v{T4}, 3, v{T3}")
    q(f"v_sub_u32 v{T4}, v{L}, v{T4}")
    q(f"v_mul_u32_u24 v{T3}, 9216, v{T3}")
    q(f"v_lshl_add_u32 v{T3}, v{T4}, 7, v{T3}")
    q(f"s_mul_i32 s41, s{S_J}, 288")
    q("s_and_b32 s41, s41, 0xffffff80")
    q(f"s_mul_i32 s42, s{S_BT}, {18*9216}")
    q("s_add_u32 s41, s41, s42")
    q(f"buffer_load_dword v{V_A}, v{T3}, {sr(S_WG)}, s41 offen")
    q(f"buffer_load_dword v{V_Bq}, v{T3}, {sr(S_WU)}, s41 offen")
    return q

def token_issue():
    q = Prog(); q(TOKLD); return q
def token_share():
    q = Prog()
    q(f"s_lshl_b32 s40, s{S_W}, 3")
    q(f"s_add_u32 s40, s40, {TOKA}")
    q(f"v_mov_b32 v{T1}, s40")
    q.b(f"v_readfirstlane_b32 s40, v{TKR}", f"s_or_b32 s40, s40, s{S_W}", "s_cbranch_scc0 LT_slow", "LT_ok:")
    s = Prog()
    s("LT_slow:"); s(f"s_mov_b32 s{S_SPIN}, 0"); s("LT_spin:"); s("s_sleep 2"); s(TOKLD); s("s_waitcnt vmcnt(0)")
    s(f"v_readfirstlane_b32 s40, v{TKR}"); s(f"s_add_u32 s{S_SPIN}, s{S_SPIN}, 1"); s("s_cmp_lg_u32 s40, 0"); s("s_cbranch_scc1 LT_ok")
    s(f"s_cmp_lt_u32 s{S_SPIN}, {SPIN}"); s("s_cbranch_scc1 LT_spin"); s("s_branch LT_ok")
    SLOW.append(s)
    q(f"ds_write_b64 v{T1}, {vr(TKR,2)}")
    return q
def token_and_stats():
    q = Prog()
    q(f"v_mov_b32 v{T1}, {TOKA}")
    q(f"ds_read_b64 {vr(TKR,2)}, v{T1}")
    q(f"v_readfirstlane_b32 s{S_TOK}, v{TKR}")
    q(f"v_readfirstlane_b32 s{S_TOK+1}, v{TKR+1}")
    q(f"v_mov_b32 v{STG+2}, v{TKR}")
    q(f"v_mov_b32 v{STG+3}, v{TKR+1}")
    q(f"buffer_store_dwordx4 {vr(STG,4)}, v{GA}, {sr(S_FL)}, 0 offen sc1")
    q.b(f"s_add_u32 s{S_HF}, s{P_WS}, {HF_OFF}", f"s_addc_u32 s{S_HF+1}, s{P_WS+1}, 0")
    q(f"s_mov_b32 s{S_HF+2}, {HF_SZ}")
    return q

def fold_flag():
    q = Prog()
    q(f"s_lshl_b32 s40, s{S_J}, 5")
    q(f"s_add_u32 s40, s40, s{S_BT}")
    q("s_lshl_b32 s40, s40, 3")
    q.wait(vm=["fold"])
    flag_store(q, 40, T1)
    return q

def st_loads():
    return [f"buffer_load_dwordx4 {vr(STG+4*tt,4)}, v{T3}, {sr(S_FL)}, 0 offen offset:{512*tt} sc1" for tt in range(2)]
def fw_load(): return f"buffer_load_dwordx2 {vr(T1,2)}, v{T4}, {sr(S_FL)}, 0 offen sc1"
def handoff_issue():
    q = Prog()
    q(f"s_lshl_b32 s40, s{S_MT}, 2")
    q(f"s_add_u32 s40, s40, s{S_W}")
    q("s_lshl_b32 s40, s40, 10")
    q(f"s_add_u32 s40, s40, {STO}")
    q(f"v_and_b32 v{T3}, 31, v{V_LANE}")
    q(f"v_lshl_add_u32 v{T3}, v{T3}, 4, s40")
    q(f"s_lshl_b32 s40, s{S_J}, 8")
    q(f"v_min_u32 v{T4}, 17, v{V_LANE}")
    q(f"v_lshl_add_u32 v{T4}, v{T4}, 3, s40")
    q(fw_load())
    for l in st_loads(): q(l)
    return q
def fw_check():
    q = Prog(); check_tokens(q, "W", [fw_load()], [T1]); return q
def st_check():
    q = Prog()
    check_tokens(q, "S", st_loads(), [STG+2, STG+6])
    q(f"v_cmp_gt_u32 vcc, 32, v{V_LANE}")
    for tt in range(2):
        q(f"v_cvt_pk_bf16_f32 v{STG+4*tt}, -v{STG+4*tt}, -v{STG+4*tt}")
        q(f"v_mul_f32 v{RL+tt}, s{S_NL2E}, v{STG+4*tt+1}")
    for tt in range(2): q(f"v_cndmask_b32 v{MB+2*tt}, v{CSA+1}, v{STG+4*tt}, vcc")
    return q

def cs_write(reg, area, dist=False):
    q = Prog()
    a = V_CW
    if dist:
        q(f"s_mul_i32 s40, s{S_W}, {SCR_W - 128}")
        q(f"v_add_u32 v{V_Bq}, s40, v{V_CW}")
        a = V_Bq
    if OPTS.get("nofix"): q("s_nop 0")
    else: q.b("s_mov_b64 exec, 0xffff", f"ds_write_b64 v{a}, {vr(reg,2)} offset:{area}", "s_mov_b64 exec, -1", tag="csw")
    return q

def mean_fix(q, st, area, stride=128):
    if OPTS.get("nofix"):
        q("s_nop 0"); return
    t = EP
    for w in range(4): q(f"ds_read_b32 v{t+w}, v{V_CR} offset:{area + w*stride}")
    q(f"v_add_f32 v{t}, v{t}, v{t+1}")
    q(f"v_add_f32 v{t+2}, v{t+2}, v{t+3}")
    q(f"v_add_f32 v{t}, v{t}, v{t+2}")
    q(f"v_cvt_pk_bf16_f32 v{t+1}, v{t}, v{t}")
    q(f"v_lshlrev_b32 v{t+1}, 16, v{t+1}")
    q(f"v_sub_f32 v{t+1}, v{t}, v{t+1}")
    q(f"v_cvt_pk_bf16_f32 v{CSA}, v{t}, v{t+1}")
    for tt in range(2):
        q(f"{MF8} {vr(acc(st,tt),16)}, {vr(CSA,2)}, {vr(MB+2*tt,2)}, {vr(acc(st,tt),16)}")

def ffn_epi(st, c, q=None):
    q = q or Prog()
    u, xy = c // 2, c & 1
    for tt in range(2):
        a = acc(st, tt)
        for r in range(8): q(f"v_mul_f32 v{EP+r}, {'s55' if OPTS.get('sgp') else 'v%d' % (RL+tt)}, v{a+r}")
        for r in range(8): q(f"v_exp_f32 v{EP+r}, v{EP+r}")
        for r in range(8): q(f"v_mul_f32 v{a+r}, v{a+r}, v{a+8+r}")
        for r in range(8): q(f"v_add_f32 v{EP+r}, 1.0, v{EP+r}")
        for r in range(8): q(f"v_rcp_f32 v{EP+r}, v{EP+r}")
        q(f"s_add_u32 s{S_SO2}, s{S_CG+u}, {xy*512 + tt*294912}")
        for r in range(8): q(f"v_mul_f32 v{a+r}, v{a+r}, v{EP+r}")
        for r in range(4): q(f"v_cvt_pk_bf16_f32 v{a+8+r}, v{a+2*r}, v{a+2*r+1}")
        if OPTS.get("nost"): q("s_nop 0")
        else: q(f"buffer_store_dwordx4 {vr(a+8,4)}, v{V_H}, {sr(S_HF)}, s{S_SO2} offen {OPTS.get('hst', 'sc1')}", tag=f"h{c}")
    return q

def softmax2(q, src, outs, rl):
    m, n, t, c1, c2, t2 = SM, SM+1, SM+2, SM+3, SM+4, SM+5
    q(f"v_max3_f32 v{m}, v{src[0]}, v{src[1]}, v{src[2]}")
    q(f"v_max3_f32 v{n}, -v{src[0]}, -v{src[1]}, -v{src[2]}")
    q(f"v_max3_f32 v{c1}, v{src[3]}, v{src[4]}, v{src[5]}")
    q(f"v_max3_f32 v{c2}, -v{src[3]}, -v{src[4]}, -v{src[5]}")
    q(f"v_max3_f32 v{t}, v{src[6]}, v{src[7]}, v{src[8]}")
    q(f"v_max3_f32 v{t2}, -v{src[6]}, -v{src[7]}, -v{src[8]}")
    q(f"v_max3_f32 v{m}, v{m}, v{c1}, v{t}")
    q(f"v_max3_f32 v{n}, v{n}, v{c2}, v{t2}")
    q(f"v_permlane32_swap_b32 v{m}, v{n}")
    q(f"v_max_f32 v{m}, v{m}, v{n}")
    q(f"v_mul_f32 v{m}, v{rl}, v{m}")
    q(f"v_mov_b32 v{n}, v{m}")
    q(f"v_permlane32_swap_b32 v{m}, v{n}")
    for i in range(9): q(f"v_fma_f32 v{E+i}, v{src[i]}, v{rl}, v{n}")
    for i in range(9): q(f"v_fma_f32 v{src[i]}, -v{src[i]}, v{rl}, v{m}")
    for i in range(9): q(f"v_exp_f32 v{E+i}, v{E+i}")
    for i in range(9): q(f"v_exp_f32 v{src[i]}, v{src[i]}")
    q(f"v_add_f32 v{n}, v{E}, v{E+1}")
    q(f"v_add_f32 v{c2}, v{E+2}, v{E+3}")
    q(f"v_add_f32 v{m}, v{src[0]}, v{src[1]}")
    q(f"v_add_f32 v{c1}, v{src[2]}, v{src[3]}")
    for i in (4, 6):
        q(f"v_add_f32 v{n}, v{n}, v{E+i}")
        q(f"v_add_f32 v{c2}, v{c2}, v{E+i+1}")
        q(f"v_add_f32 v{m}, v{m}, v{src[i]}")
        q(f"v_add_f32 v{c1}, v{c1}, v{src[i+1]}")
    q(f"v_add_f32 v{n}, v{n}, v{E+8}")
    q(f"v_add_f32 v{m}, v{m}, v{src[8]}")
    q(f"v_add_f32 v{n}, v{n}, v{c2}")
    q(f"v_add_f32 v{m}, v{m}, v{c1}")
    q(f"v_permlane32_swap_b32 v{m}, v{n}")
    q(f"v_add_f32 v{m}, v{m}, v{n}")
    q(f"v_rcp_f32 v{m}, v{m}")
    q(f"v_mov_b32 v{n}, v{m}")
    q(f"v_permlane32_swap_b32 v{m}, v{n}")
    for i in range(9): q(f"v_mul_f32 v{src[i]}, v{src[i]}, v{m}")
    for i in range(9): q(f"v_mul_f32 v{E+i}, v{E+i}, v{n}")
    allv = list(src) + [E + i for i in range(9)]
    for i in range(9): q(f"v_cvt_pk_bf16_f32 v{outs[i]}, v{allv[2*i]}, v{allv[2*i+1]}")

def moves_a2(q):
    for tt in range(2): q(f"v_mul_f32 v{SM+tt}, 0x{np_f32(-1/L2E):08x}, v{RL+tt}")
    for tt in range(2):
        a = acc(0, tt); m = MV + 8*tt
        q(f"v_mov_b32 v{m+6}, v{a}")
        q(f"v_mov_b32 v{m+7}, v{a+1}")
        for r in range(9): q(f"v_mul_f32 v{a+2+r}, v{a+2+r}, v{SM+tt}")
        for r in range(4): q(f"v_cvt_pk_bf16_f32 v{m+r}, v{a+2+2*r}, v{a+3+2*r}")
        q(f"v_cvt_pk_bf16_f32 v{m+4}, v{a+10}, 1.0")

PA = KA + 24
def k_part(q):
    KF = E
    for tt in range(2):
        a = acc(4, tt); m = MV + 8*tt
        src = [a+9+i for i in range(7)] + [m+6, m+7]
        outs = [a+10, a+11, a+12, a+13, a+14, a+15, E, E+1, m+5]
        softmax2(q, src, outs, RL+tt)
        for off, r in ((0, a+10), (16, a+12), (32, a+14), (48, E), (64, m), (80, m+2), (96, m+4)):
            q(f"ds_write_b64 v{V_SW}, {vr(r,2)} offset:{off}")
        for f, cb in enumerate((0, 16, 32, 48)):
            for sec in range(2):
                q(f"ds_read_b64_tr_b16 {vr(KF+4*f+2*sec,2)}, v{V_SR} offset:{sec*4*SROW + cb*2}")
        part_addr(q, tt)
        for rt, fa in enumerate((0, 1, 3)):
            for ct, fb in enumerate((2, 3)):
                d = KA + 4*(2*rt + ct)
                q(f"{MF16} {vr(d,4)}, {vr(KF+4*fa,4)}, {vr(KF+4*fb,4)}, {vr(d,4) if tt else '0'}")
    A1, A2, A4, A5 = PA, PA+1, PA+2, PA+3
    q(f"ds_write_b128 v{A1}, {vr(KA,4)}")
    q(f"ds_write_b128 v{A1}, {vr(KA+8,4)} offset:1024")
    q.b("s_mov_b32 exec_lo, 0xff00ff", "s_mov_b32 exec_hi, 0xff00ff", f"ds_write_b128 v{A2}, {vr(KA+4,4)} offset:2048",
        f"ds_write_b128 v{A2}, {vr(KA+12,4)} offset:2560", "s_mov_b32 exec_hi, 0", f"ds_write_b64 v{A5}, {vr(KA+22,2)} offset:3328",
        "s_mov_b32 exec_lo, -1", f"ds_write_b64 v{A4}, {vr(KA+18,2)} offset:3072", "s_mov_b32 exec_hi, -1")

def part_addr(q, half):
    L = V_LANE; A1, A2, A4, A5 = PA, PA+1, PA+2, PA+3
    if half == 0:
        q(f"s_mul_i32 s40, s{S_W}, {SCR_W}")
        q(f"s_add_u32 s40, s40, {SCR}")
        q(f"v_lshl_add_u32 v{A1}, v{L}, 4, s40")
        q(f"v_lshrrev_b32 v{V_A}, 4, v{L}")
        q(f"v_and_b32 v{V_Bq}, 15, v{L}")
        q(f"v_lshl_add_u32 v{V_A}, v{V_A}, 3, v{V_Bq}")
        q(f"v_lshl_add_u32 v{A2}, v{V_A}, 4, s40")
        q(f"v_lshl_add_u32 v{A4}, v{L}, 3, s40")
        q(f"v_lshl_add_u32 v{A5}, v{V_A}, 3, s40")

def kv_reduce():
    q = Prog()
    L = V_LANE; A1, A2, G1_, G2_ = T1, T2, T3, T4
    T = MV
    q(f"s_and_b32 s40, s{S_W}, 1")
    q(f"s_lshr_b32 s41, s{S_W}, 1")
    q.b("s_cmp_eq_u32 s41, 0", "s_cselect_b64 vcc, -1, 0")
    q(f"v_cndmask_b32 v{A1}, v{V_A}, v{L}, vcc")
    q("s_lshl_b32 s42, s40, 10")
    q("s_lshl_b32 s43, s40, 9")
    q("s_add_u32 s43, s43, 2048")
    q.b("s_cmp_eq_u32 s41, 0", "s_cselect_b32 s42, s42, s43")
    q(f"s_add_u32 s42, s42, {SCR}")
    q(f"v_lshl_add_u32 v{A1}, v{A1}, 4, s42")
    for w in range(4): q(f"ds_read_b128 {vr(T+4*w,4)}, v{A1} offset:{w*SCR_W}")
    q.b("s_cmp_eq_u32 s40, 0", "s_cselect_b64 vcc, -1, 0")
    q(f"v_cndmask_b32 v{A2}, v{V_A}, v{L}, vcc")
    q("s_lshl_b32 s42, s40, 8")
    q(f"s_add_u32 s42, s42, {SCR+3072}")
    q(f"v_lshl_add_u32 v{A2}, v{A2}, 3, s42")
    U = (RA+12, RA+14, RA+28, RA+30)
    for w in range(4): q(f"ds_read_b64 {vr(U[w],2)}, v{A2} offset:{w*SCR_W}")
    q(f"v_lshrrev_b32 v{G1_}, 5, v{L}")
    q(f"v_lshlrev_b32 v{G1_}, 10, v{G1_}")
    q(f"v_bfe_u32 v{G2_}, v{L}, 4, 1")
    q(f"v_lshlrev_b32 v{G2_}, 7, v{G2_}")
    q(f"v_lshl_add_u32 v{G2_}, v{V_Bq}, 2, v{G2_}")
    q("s_lshl_b32 s42, s40, 11")
    q("s_lshl_b32 s43, s41, 6")
    q("s_add_u32 s42, s42, s43")
    q(f"v_add3_u32 v{G1_}, v{G1_}, v{G2_}, s42")
    q("s_lshl_b32 s43, s41, 3")
    q("s_sub_u32 s43, 16, s43")
    q(f"v_cmp_gt_u32 vcc, s43, v{V_Bq}")
    q(f"v_mov_b32 v{A1}, {OOB}")
    q(f"v_cndmask_b32 v{G1_}, v{A1}, v{G1_}, vcc")
    q("s_lshl_b32 s42, s40, 6")
    q("s_add_u32 s42, s42, 4096")
    q(f"v_add_u32 v{G2_}, s42, v{G2_}")
    q("s_lshl_b32 s43, s40, 3")
    q("s_sub_u32 s43, 16, s43")
    q.b("s_cmp_eq_u32 s41, 0", "s_cselect_b32 s43, s43, 0")
    q(f"v_cmp_gt_u32 vcc, s43, v{V_Bq}")
    q(f"v_cmp_gt_u32 s[42:43], 32, v{L}")
    q("s_and_b64 vcc, vcc, s[42:43]")
    q(f"v_cndmask_b32 v{G2_}, v{A1}, v{G2_}, vcc")
    for i in range(4):
        q(f"v_add_f32 v{T+i}, v{T+i}, v{T+4+i}")
        q(f"v_add_f32 v{T+8+i}, v{T+8+i}, v{T+12+i}")
    for i in range(2):
        q(f"v_add_f32 v{U[0]+i}, v{U[0]+i}, v{U[1]+i}")
        q(f"v_add_f32 v{U[2]+i}, v{U[2]+i}, v{U[3]+i}")
    for i in range(4): q(f"v_add_f32 v{T+i}, v{T+i}, v{T+8+i}")
    for i in range(2): q(f"v_add_f32 v{U[0]+i}, v{U[0]+i}, v{U[2]+i}")
    for i in range(4):
        q(f"buffer_atomic_add_f32 v{T+i}, v{G1_}, {sr(S_KV)}, s{S_KVB} offen offset:{i*256}", tag="atom")
    for i in range(2):
        q(f"buffer_atomic_add_f32 v{U[0]+i}, v{G2_}, {sr(S_KV)}, s{S_KVB} offen offset:{i*256}", tag="atom")
    return q

def fk_publish():
    q = Prog()
    q(f"s_lshl_b32 s40, s{S_J}, 5")
    q(f"s_add_u32 s40, s40, s{S_BT}")
    q("s_lshl_b32 s40, s40, 3")
    q(f"s_add_u32 s40, s40, {FL_K}")
    q.wait(vm=["atom"])
    flag_store(q, 40, T1)
    q(f"s_lshl_b32 s40, s{S_J}, 8")
    q(f"s_add_u32 s40, s40, {FL_K}")
    q(f"v_and_b32 v{T3}, 31, v{V_LANE}")
    q(f"v_lshl_add_u32 v{T3}, v{T3}, 3, s40")
    q(f"v_lshlrev_b32 v{T4}, 2, v{V_LANE}")
    return q
def fk_load(): return f"buffer_load_dwordx2 {vr(T1,2)}, v{T3}, {sr(S_FL)}, 0 offen sc1"
KVL = MV; KVF = 100
def fk_check_and_load():
    q = Prog()
    check_tokens(q, "K", [fk_load()], [T1])
    q(f"s_add_u32 s40, s{S_KVB}, 4096")
    for s in range(18):
        so = f"s{S_KVB}" if s < 16 else "s40"
        q(f"buffer_load_dword v{KVL+s}, v{T4}, {sr(S_KV)}, {so} offen offset:{(s&15)*256} sc1")
    return q

def q_part():
    q = Prog()
    for tt in range(2):
        a = acc(4, tt)
        softmax2(q, [a+i for i in range(9)], [a+i for i in range(9)], RL+tt)
        for r in (9, 10, 11): q(f"v_mov_b32 v{a+r}, 0")
    return q

def o_finish():
    q = Prog()
    for i in range(9): q(f"v_cvt_pk_bf16_f32 v{KVF+i}, v{KVL+2*i}, v{KVL+2*i+1}")
    for r in (9, 10, 11): q(f"v_mov_b32 v{KVF+r}, 0")
    D_ = (acc(0, 0), acc(0, 1))
    q(f"s_lshl_b32 s40, s{S_MT}, 3")
    q(f"s_lshl_b32 s41, s{S_W}, 1")
    q("s_add_u32 s40, s40, s41")
    q("s_mul_i32 s40, s40, 40960")
    q(f"s_mul_i32 s41, s{S_J}, 1280")
    q("s_add_u32 s40, s40, s41")
    q("s_add_u32 s41, s40, 40960")
    for f in range(3):
        for tt in range(2):
            q(f"{MF} {vr(D_[tt],16)}, {vr(KVF+4*f,4)}, {vr(acc(4,tt)+4*f,4)}, {vr(D_[tt],16) if f else '0'}")
    for tt in range(2):
        d = D_[tt]
        q(f"v_add_f32 v{d+12}, 0x{np_f32(1e-6):08x}, v{d+9}")
        q(f"v_rcp_f32 v{d+12}, v{d+12}")
    for tt in range(2):
        d = D_[tt]
        for r in range(9): q(f"v_mul_f32 v{d+r}, v{d+r}, v{d+12}")
        for r in range(4): q(f"v_cvt_pk_bf16_f32 v{d+r}, v{d+2*r}, v{d+2*r+1}")
        q(f"v_cvt_pk_bf16_f32 v{d+4}, v{d+8}, 0")
        for r in range(5): q(f"buffer_store_dword v{d+r}, v{T4}, {sr(S_OF)}, s{40+tt} offen offset:{r*256} sc1")
    return q

def wd_prefetch(half):
    q = Prog()
    if half:
        q(f"v_add_u32 v{V_B0}, 4096, v{V_B0}")
        q(f"buffer_load_dword v{T2}, v{V_B0}, {sr(S_X)}, s{S_WFB} offen")
        return q
    q("s_lshl_b32 s40, s2, 2")
    q(f"s_add_u32 s40, s40, s{S_W}")
    q.b("s_cmp_lt_u32 s40, 648", f"s_cselect_b32 s{S_X}, s{P_WD}, s{P_WO}", f"s_cselect_b32 s{S_X+1}, s{P_WD+1}, s{P_WO+1}",
        f"s_cselect_b32 s41, 0, 648")
    q.b("s_cmp_lt_u32 s40, 648", f"s_mov_b32 s42, {WOIN_SZ}", f"s_cselect_b32 s{S_X+2}, {WG_SZ}, s42")
    q("s_sub_u32 s40, s40, s41")
    q(f"s_lshl_b32 s{S_WFB}, s40, 13")
    q(f"v_and_b32 v{V_B0}, 31, v{V_LANE}")
    q(f"v_lshlrev_b32 v{V_B0}, 7, v{V_B0}")
    q(f"buffer_load_dword v{T1}, v{V_B0}, {sr(S_X)}, s{S_WFB} offen")
    return q

def wg_flag(arr, tmp):
    q = Prog()
    q(f"s_add_u32 s40, s{S_FI}, s{S_W0}")
    q(f"s_add_u32 s40, s40, {arr}")
    flag_store(q, 40, tmp)
    return q

BFA = V_A
def b_decode():
    q = Prog()
    q("s_and_b32 s40, s2, 7")
    q("s_lshr_b32 s41, s2, 3")
    q("s_mul_i32 s42, s40, 29")
    q("s_min_u32 s43, s40, 2")
    q("s_add_u32 s42, s42, s43")
    q(f"s_add_u32 s{S_BT}, s42, s41")
    q.b("s_cmp_lt_u32 s40, 2", "s_cselect_b32 s43, 30, 29")
    q.b("s_cmp_lt_u32 s41, s43", f"s_cselect_b32 s{S_BT}, s{S_BT}, 255")
    q(f"s_mul_i32 s40, s{S_BT}, 7282")
    q("s_lshr_b32 s40, s40, 16")
    q("s_mul_i32 s40, s40, 80")
    q("s_add_u32 s41, s40, 79")
    q("s_min_u32 s40, s40, 2047")
    q("s_min_u32 s41, s41, 2047")
    q("s_and_b32 s40, s40, 0xf00")
    q("s_and_b32 s41, s41, 0xf00")
    q("s_sub_u32 s41, s41, 256")
    q(f"v_mov_b32 v{BFA}, s40")
    q(f"v_mov_b32 v{V_Bq}, s41")
    q(f"v_cmp_gt_u32 vcc, 32, v{V_LANE}")
    q(f"v_cndmask_b32 v{BFA}, v{V_Bq}, v{BFA}, vcc")
    q(f"v_lshl_add_u32 v{BFA}, v{V_LANE}, 3, v{BFA}")
    q(f"v_add_u32 v{BFA}, {FL_1}, v{BFA}")
    q(f"buffer_load_dwordx2 {vr(T1,2)}, v{BFA}, {sr(S_FL)}, 0 offen sc1")
    q.b("s_getpc_b64 s[42:43]", "LB_pc:")
    q(f"s_mul_i32 s40, s{S_W}, 36")
    q.l.append(Sized("s_add_u32 s40, s40, LK_tab-LB_pc", 8))
    q(f"v_min_u32 v{V_Bq}, 35, v{V_LANE}")
    q(f"v_add_u32 v{V_Bq}, s40, v{V_Bq}")
    q(f"global_load_ubyte v{V_Bq}, v{V_Bq}, s[42:43]")
    return q

def stage_a(p):
    frags = []
    def tr(p_, off): return [("ds_read_b64_tr_b16", 0, 2, TR + p_, off), ("ds_read_b64_tr_b16", 2, 2, TR + p_, off + 256)]
    for g in range(9):
        for p_ in range(4):
            for c in range(4):
                upd = []
                if g and c == 0: upd = [f"v_add_u32 v{TR+p_}, {SLOT if g % 3 else (-2*SLOT) & 0xffffffff}, v{TR+p_}"]
                frags.append((tr(p_, (c >> 1)*512 + (c & 1)*32), c, 4*g + p_, CS4 + 4*c if p_ == 0 else None, upd))
    chains = ["A1", "A2", 4, 5, 6, 7, 8]
    cset = {"A1": 4, "A2": 0, 4: 2, 5: 3, 6: 0, 7: 2, 8: 3}
    cs = {}
    for k, c in enumerate(chains):
        cs[c] = len(frags)
        for s in range(36):
            g, p_ = s >> 2, s & 3
            upd = []
            if c in ("A1", "A2"):
                if s < 4: upd = [f"s_add_u32 s{S_SPIN}, s{S_WX+p_}, {0 if c == 'A1' else BUP}", f"v_add_u32 v{TR+p_}, s{S_SPIN}, v{V_B0}"]
                rd = [("ds_read_b128", 0, 4, TR + p_, g*4096)]
            else:
                if s < 4 and not (c & 1): upd = [f"s_add_u32 s{S_SPIN}, s{S_WX+p_}, {BUF[(c//2 + 1) & 1]}", f"v_add_u32 v{TR+p_}, s{S_SPIN}, v{V_TRL}"]
                rd = tr(p_, g*4096 + (c & 1)*32)
            frags.append((rd, cset[c], s, CSACC + 4*(k & 1) if p_ == 0 else None, upd))
    NF = len(frags)
    bars = {16*g: [f"W{g}"] for g in range(9)}
    bars[cs["A1"]] = ["T0"]
    bars[cs["A2"]] = ["T1"]
    bars[cs[4]] = ["U2"]
    bars[cs[6]] = ["U3"] + [f"h{c}" for c in range(4)]
    bars[cs[8]] = ["U4", "h4", "h5"]
    def reads(n):
        slot = RING + 4*(n & 3)
        return [I(t) for t in frags[n][4]] + [I(f"{op} {vr(slot+o,cnt)}, v{va} offset:{off}", tag=f"fr{n}") for (op, o, cnt, va, off) in frags[n][0]]
    def barrier(tags): return [WaitTag(vm=tags), I("s_waitcnt lgkmcnt(0)"), I("s_barrier")]
    p.add(x_copy(0))
    p.add(barrier(bars[0]))
    p.add(stamp(1))
    p.add(st5(7))
    for n in range(4): p.add(reads(n))
    main = []; G = {}
    for n in range(NF):
        _, st, s, csa, _ = frags[n]
        G[n] = len(main)
        slot = RING + 4*(n & 3)
        mf = [I(f"{MF} {vr(acc(st,tt),16)}, {vr(slot,4)}, {xreg(tt,s)}, {vr(acc(st,tt),16) if s else '0'}") for tt in range(2)]
        f0 = barrier(bars[n + 3]) + reads(n + 3) if (n + 3 < NF and (n + 3) in bars and n + 3 >= 4) else []
        f1 = []
        if n + 1 < NF: f1.append(WaitTag(lg=[f"fr{n+1}"]))
        if n + 4 < NF and (n + 4) not in bars: f1 += reads(n + 4)
        if csa is not None and not OPTS.get("nocs"):
            main.append((I(f"{MF16} {vr(csa,4)}, {vr(SEL,4)}, {vr(slot,4)}, {vr(csa,4) if s else '0'}"), []))
        main.append((mf[0], f0)); main.append((mf[1], f1))
    G[NF] = len(main)
    C = {c: G[cs[c]] for c in cs}; C[9] = G[NF]
    def bar_gap(n): return G[n - 3] + (1 if (frags[n-3][3] is not None and not OPTS.get("nocs")) else 0)
    S = []
    def add(a, b, q, after=None, paced=False):
        S.append((a, b, q, after, paced)); return len(S) - 1
    for g in range(9):
        a, b = G[16*g], bar_gap(16*(g+1))
        q = Prog()
        if g == 0 and not OPTS.get("g1pre", 1): q.add(ring_group(1))
        if g + 2 < 9: q.add(ring_group(g + 2)); add(a, b + 5 - OPTS.get("rend", 0), q, None, OPTS.get("rpace", 1) == 1)
        if g + 1 < 9: add(b - 10, b, x_copy(g + 1))
    add(OPTS.get("f0", 12), G[42], fold_stream())
    add(G[20], G[21], token_issue())
    add(G[42], bar_gap(48), token_share())
    add(G[48], G[53], token_and_stats())
    add(G[72], G[75], fold_flag())
    add(G[16*6] + 8, G[16*6] + 16, handoff_issue())
    k = add(G[16*7], G[16*7] + 2, fw_check())
    add(G[16*7] + 2, bar_gap(16*8) - 10, dma_wf(0), None, True)
    add(G[16*8] + 14, G[16*8] + 22, st_check())
    q = Prog()
    for c in range(4): q.add(cs_write(CS4 + 4*c, 512*c))
    add(G[16*8 + 5], bar_gap(cs["A1"]), q)
    add(G[16*8], G[16*8] + 26, dma_wf(1), None, True)
    q = Prog()
    for g in range(9): q.add(dma_unit_group(2, g))
    add(C["A1"] - 4, C["A2"] + OPTS.get("dend", 10), q, None, True)
    for u, c in ((3, 4), (4, 6)):
        q = Prog()
        for g in range(9): q.add(dma_unit_group(u, g))
        add(C[c] - 4, C[c+1] + OPTS.get("dend", 10), q, None, True)
    area = {"A1": 2048, "A2": CSX, 4: CSX + 512, 5: CSX + 1024, 6: CSX, 7: CSX + 512, 8: CSX + 1024}
    nxt = {"A1": "A2", "A2": 4, 4: 5, 5: 6, 6: 7, 7: 8}
    MB_ = 12
    for k_, c in enumerate(chains[:-1]):
        add(C[nxt[c]] - 3, C[nxt[c]] + 6, cs_write(CSACC + 4*(k_ & 1), area[c]))
        if c != 4:
            g = C[nxt[c]] + MB_ - 1
            main[g] = (main[g][0], [WaitTag(lg=["csw"]), I("s_barrier")] + main[g][1])
    prev = None
    q = Prog()
    mean_fix(q, 0, 0); mean_fix(q, 1, 512); ffn_epi(0, 0, q); mean_fix(q, 2, 1024)
    prev = add(C["A1"] - 3, C["A2"] - 30, q)
    q = Prog(); ffn_epi(1, 1, q); mean_fix(q, 3, 1536)
    prev = add(C["A1"], C["A2"] + 5, q, prev)
    prev = add(C["A2"], C[4] - 40, ffn_epi(2, 2), prev)
    q = Prog(); mean_fix(q, 4, area["A1"]); ffn_epi(3, 3, q)
    prev = add(C["A2"] + MB_, C[4] + 6, q, prev)
    q = Prog(); mean_fix(q, 0, area["A2"])
    fixa2 = prev = add(C[4] + MB_, C[4] + MB_ + 10, q, prev)
    for c, st, a, dl in ((4, 2, C[6], C[7] - 1), (5, 3, C[6] + MB_, bar_gap(cs[8]) - 30), (6, 0, C[7] + MB_, C[8] + 10), (7, 2, C[8] + MB_, C[9])):
        q = Prog(); mean_fix(q, st, area[c]); ffn_epi(st, c, q)
        prev = add(a, dl, q, prev)
    q = Prog(); moves_a2(q); k_part(q)
    kp = add(C[4] + MB_, C[5] + 50, q, fixa2)
    add(C["A2"] + 10, C["A2"] + 20, wd_prefetch(0))
    add(C[5] + 12, C[5] + 14, wd_prefetch(1))
    red = add(C[6] - 2, C[6] + 30, kv_reduce())
    add(C[6] + 30, C[6] + 34, wg_flag(FL_1, T1))
    add(C[5], C[7] + 30, q_part(), kp)
    add(C[8] - 2, C[8] + 2, wg_flag(FL_M, V_A))
    add(C[6] + 62, C[7], fk_publish())
    q = Prog(); q(fk_load()); add(C[7] + 40, C[7] + 42, q)
    add(C[8] + 2, C[8] + 40, fk_check_and_load(), None, True)
    add(C[8] + 40, C[9] - 18, o_finish())
    add(C[9] - 18, C[9] - 4, b_decode())
    if OPTS.get("time") == 2:
        for i, g in enumerate([C["A1"], C["A2"], C[4], C[5], C[6], C[7], C[8]]):
            main[g-1] = (main[g-1][0], main[g-1][1] + [I(f"s_memtime {sr(STAMPS[i+1],2)}")])
        p(f"s_memtime {sr(STAMPS[0],2)}")
    if OPTS.get("time") == 4:
        for i in range(1, 8):
            g = G[16*(i + 1)] if i > 1 else G[16]
            main[g-1] = (main[g-1][0], main[g-1][1] + [I(f"s_memtime {sr(STAMPS[i],2)}")])
        p(f"s_memtime {sr(STAMPS[0],2)}")
    import asmgen
    asmgen.BYTES32 = OPTS.get("b32", 48); asmgen.CARRY = OPTS.get("carry", 8); asmgen.VMEM_COST = OPTS.get("vmc", 2)
    woven, loads = weave(main, S, OPTS.get('cap', 6))
    if OPTS.get("verbose"):
        print("done at", weave.done_at, C, file=sys.stderr)
        pts = [0, 72, 144, 216] + [C[c] for c in chains] + [C[9]]
        for a, b in zip(pts[:-1], pts[1:]):
            print("gaps", a, b, "slack", -sum(loads[a:b]), "over", sum(max(0, x) for x in loads[a:b]), file=sys.stderr)
    p.add(woven)
    AREA8[0] = area[8]
    a_tail_and_b(p, area[8])
NSLOT = 6
B_WD, B_WO, B_X, B_OUT = 4, 8, 12, 16
B_M, B_N, B_HB, B_WDB, B_HO, B_WDO, B_LB, B_IT, B_IX = 37, 38, 45, 46, 47, 48, 49, 50, 51
BV_H, BV_D, BV_T, BV_O, BV_XO, BV_R, BV_FD, BT0, BT1 = 16, 21, 25, 26, 31, 34, 36, 38, 39
BV_TAB, BV_FA = V_Bq, V_A
ACC1, ACC2, AF, XR, BV_RS = 48, 128, 208, 2, 40
TMP = 232
RED1 = 4 * NSLOT * 4096; RB = 0
def hreg(slot, tt): return ar(20*slot + 4*tt, 4)
def accr(base, tt, nt): return base + 16*tt + 4*nt

def issue_down(p, slot):
    p(f"v_readlane_b32 s40, v{BV_TAB}, s{B_IX}")
    p(f"s_add_u32 s{B_IX}, s{B_IX}, 1")
    p(f"s_lshl_b32 s41, s40, 10")
    p(f"s_add_u32 s{B_HO}, s{B_HB}, s41")
    p(f"s_mul_i32 s41, s40, {32*1152}")
    p(f"s_add_u32 s{B_WDO}, s{B_WDB}, s41")
    for i in range(4):
        p(f"s_add_u32 m0, s{B_LB}, {slot*4096 + i*1024}")
        p(f"buffer_load_dwordx4 {hreg(slot,i)}, v{BV_H+i}, {sr(S_HF)}, s{B_HO} offen sc1")
        p(f"buffer_load_dwordx4 v{BV_D+i}, {sr(B_WD)}, s{B_WDO} offen lds", tag=f"D{slot}")
    p(f"buffer_load_dwordx4 {hreg(slot,4)}, v{BV_H+4}, {sr(S_HF)}, s{B_HO} offen sc1")

def issue_s(p, slot, i):
    p(f"s_lshl_b32 s40, s{S_W}, 4")
    p(f"s_add_u32 s40, s40, {64*i}")
    p("s_lshl_b32 s41, s40, 7")
    for i4 in range(4):
        a = TMP + 4*i4
        p(f"v_add3_u32 v{a}, v{TMP+16}, s40, {4*i4}")
        p(f"v_mul_u32_u24 v{a+1}, 6554, v{a}")
        p(f"v_lshrrev_b32 v{a+1}, 16, v{a+1}")
        p(f"v_mul_u32_u24 v{a+2}, 10, v{a+1}")
        p(f"v_sub_u32 v{a+2}, v{a}, v{a+2}")
        p(f"v_lshl_add_u32 v{a}, v{a+1}, 3, v{a}")
        p(f"v_mul_u32_u24 v{a}, 1152, v{a}")
        p(f"v_add_u32 v{a}, v{a}, v{TMP+17}")
        p(f"v_cmp_gt_u32 vcc, 9, v{a+2}")
        p(f"v_cndmask_b32 v{a}, v{TMP+18}, v{a}, vcc")
        p(f"s_add_u32 m0, s{B_LB}, {slot*4096 + i4*1024}")
        p("s_nop 0")
        p(f"buffer_load_dwordx4 v{a}, {sr(B_WO)}, 0 offen lds", tag=f"D{slot}")
    for tt in range(5):
        for k in range(4):
            p(f"buffer_load_dword a{20*slot+4*tt+k}, v{BV_O+tt}, {sr(S_OF)}, s41 offen offset:{256*k} sc1")

def compute(p, slot, accb, manual, first=False):
    af = AF + (0 if accb == ACC2 else 0)
    if not manual: p.wait(vm=[f"D{slot}"])
    for nt in range(4):
        for sec in range(2):
            p(f"ds_read_b64_tr_b16 {vr(af+4*nt+2*sec,2)}, v{BV_T} offset:{slot*4096 + nt*8 + sec*1024}")
    for nt in range(4):
        if manual: p(f"s_waitcnt lgkmcnt({6-2*nt})")
        for tt in range(5):
            d = accr(accb, tt, nt)
            p(f"{MF16} {vr(d,4)}, {vr(af+4*nt,4)}, {hreg(slot,tt)}, {'0' if first else vr(d,4)}")

PADN = []
def time_out(p):
    if not OPTS.get("time"): return
    p("s_waitcnt vmcnt(0)")
    p.add(stamp(8))
    if OPTS.get("pad"):
        lab = f"LPAD{len(PADN)}"; PADN.append(1)
        p(f"{lab}:")
        p("s_memrealtime s[46:47]")
        p("s_waitcnt lgkmcnt(0)")
        p(f"s_sub_u32 s46, s46, s{S_TOK if OPTS.get('padtok') else STAMPS[0]}")
        if OPTS.get("padone"):
            p(f"s_cmp_eq_u32 s2, {OPTS['padone']}")
            p(f"s_cselect_b32 s46, s46, -1")
        p(f"s_cmp_lt_u32 s46, {OPTS['pad']}")
        p(f"s_cbranch_scc1 {lab}")
        return
    if OPTS.get("dbg"):
        p("s_load_dwordx2 s[46:47], s[0:1], 72")
        p("s_waitcnt lgkmcnt(0)")
        srd(p, 40, 46, 0, 256)
        p("s_and_b32 s44, s2, 63")
        p(f"s_or_b32 s44, s44, s{S_W}")
        p(f"s_cmp_eq_u32 s44, 0")
        p(f"s_cselect_b32 s44, 0, {OOB}")
        p("s_lshr_b32 s45, s2, 6")
        p("s_mul_i32 s45, s45, 12")
        p("s_add_u32 s44, s44, s45")
        p("s_add_u32 s44, s44, 16")
        for k, i in enumerate((1, 2, 8)):
            p(f"s_sub_u32 s45, s{STAMPS[i]}, s{STAMPS[0]}")
            p(f"v_mov_b32 v{28+k}, s45")
        p(f"buffer_store_dwordx3 v[28:30], v{V_FL}, s[40:43], s44 offen")
        return
    srd(p, 40, P_WS, WS_USED, 131072)
    p("s_waitcnt lgkmcnt(0)")
    for i in range(9): p(f"v_mov_b32 v{28+i}, s{STAMPS[i]}")
    p("s_lshl_b32 s44, s2, 2")
    p(f"s_add_u32 s44, s44, s{S_W}")
    p("s_lshl_b32 s44, s44, 6")
    p("v_mov_b32 v26, s44")
    p("buffer_store_dwordx4 v[28:31], v26, s[40:43], 0 offen")
    p("buffer_store_dwordx4 v[32:35], v26, s[40:43], 0 offen offset:16")
    p("buffer_store_dword v36, v26, s[40:43], 0 offen offset:32")

def zipweave(a, b):
    a = flat(a); b = flat(b)
    out = []; ia = ib = 0
    while ia < len(a) or ib < len(b):
        if ib >= len(b) or (ia < len(a) and ia * len(b) <= ib * len(a)):
            out.append(a[ia]); ia += 1
        else:
            out.append(b[ib]); ib += 1
    return out

def red_write(p, accb, w, base):
    for u in range(10):
        o = u % 4
        if o == w: continue
        tt, np_ = u >> 1, u & 1
        off = base + (u*3 + (w - o - 1) % 4) * 2048
        for h_ in range(2):
            p(f"ds_write_b128 v{BV_R + (off >> 16)}, {vr(accr(accb,tt,2*np_+h_),4)} offset:{(off & 0xffff) + h_*1024}")
def red_read(p, accb, u, base, t):
    tt, np_ = u >> 1, u & 1
    a = accr(accb, tt, 2*np_)
    for sl in range(3):
        off = base + (u*3 + sl) * 2048
        for h_ in range(2):
            p(f"ds_read_b128 {vr(t+8*sl+4*h_,4)}, v{BV_R + (off >> 16)} offset:{(off & 0xffff) + h_*1024}")
def red_add(p, accb, u, t):
    tt, np_ = u >> 1, u & 1
    a = accr(accb, tt, 2*np_)
    for sl in range(3):
        for r in range(8): p(f"v_add_f32 v{a+r}, v{a+r}, v{t+8*sl+r}")

def a_tail_and_b(p, area8):
    L = V_LANE
    p.add(cs_write(CSACC, area8))
    p(f"s_add_u32 s{S_WFB}, s{S_FI}, s{S_W0}")
    p(f"s_add_u32 s{S_WFB}, s{S_WFB}, {FL_2}")
    p(f"s_mul_i32 s43, s{S_BT}, 7282")
    p(f"s_lshr_b32 s{B_M}, s43, 16")
    p(f"s_mul_i32 s43, s{B_M}, 9")
    p(f"s_sub_u32 s{B_N}, s{S_BT}, s43")
    srd(p, B_WD, P_WD, 0, WG_SZ)
    p(f"v_lshlrev_b32 v{BV_H}, 4, v{L}")
    for tt in range(1, 5): p(f"v_add_u32 v{BV_H+tt}, {tt*147456}, v{BV_H}")
    p(f"v_lshrrev_b32 v{BT0}, 3, v{L}")
    p(f"v_mul_u32_u24 v{BT0}, 1152, v{BT0}")
    p(f"v_and_b32 v{BT1}, 7, v{L}")
    p(f"v_lshl_add_u32 v{BV_D}, v{BT1}, 4, v{BT0}")
    for i in range(1, 4): p(f"v_add_u32 v{BV_D+i}, {i*9216}, v{BV_D}")
    p(f"s_mul_i32 s{B_HB}, s{B_M}, {5*147456}")
    p(f"s_lshl_b32 s{B_WDB}, s{B_N}, 7")
    p(f"s_mul_i32 s{B_LB}, s{S_W}, {NSLOT*4096}")
    p(f"s_mov_b32 s{B_IX}, 0")
    check_tokens(p, "F1", [f"buffer_load_dwordx2 {vr(T1,2)}, v{BV_FA}, {sr(S_FL)}, 0 offen sc1"], [T1])
    p(f"v_mov_b32 v{BV_TAB}, v{BV_TAB}")
    p("s_waitcnt lgkmcnt(0)")
    p("s_barrier")
    p.add(stamp(2))
    p(f"s_cmp_eq_u32 s{S_BT}, 255")
    p("s_cbranch_scc1 LB_spare")
    epi = Prog(); mean_fix(epi, 3, area8); ffn_epi(3, 8, epi)
    for r in range(80): epi(f"v_mov_b32 v{ACC1+r}, 0")
    iss = Prog()
    for s in range(NSLOT - 1): issue_down(iss, s)
    z = zipweave(epi.l, iss.l)
    vms = [i for i in z if i.kind in VMK]
    assert max(k for k, i in enumerate(vms) if i.kind == "vst") < len(vms) - 9
    p.add(z)
    srd(p, B_WO, P_WO, 0, WOIN_SZ)
    srd(p, B_X, P_X, 0, X_SZ)
    srd(p, B_OUT, P_OUT, 0, X_SZ)
    p(f"v_add_u32 v{BV_FA}, {FL_M - FL_1}, v{BV_FA}")
    a, b = BT0, BT1
    p(f"v_lshrrev_b32 v{a}, 5, v{L}")
    p(f"v_lshlrev_b32 v{a}, 11, v{a}")
    p(f"v_bfe_u32 v{b}, v{L}, 4, 1")
    p(f"v_lshl_add_u32 v{a}, v{b}, 9, v{a}")
    p(f"v_bfe_u32 v{b}, v{L}, 2, 2")
    p(f"v_lshl_add_u32 v{a}, v{b}, 7, v{a}")
    p(f"v_and_b32 v{b}, 3, v{L}")
    p(f"v_lshl_add_u32 v{a}, v{b}, 5, v{a}")
    p(f"v_add_u32 v{BV_T}, s{B_LB}, v{a}")
    p(f"v_lshrrev_b32 v{a}, 5, v{L}")
    p(f"v_lshlrev_b32 v{a}, 10, v{a}")
    p(f"v_bfe_u32 v{b}, v{L}, 4, 1")
    p(f"v_lshl_add_u32 v{a}, v{b}, 7, v{a}")
    p(f"v_and_b32 v{b}, 15, v{L}")
    p(f"v_lshl_add_u32 v{a}, v{b}, 2, v{a}")
    p(f"s_mul_i32 s40, s{B_M}, 5")
    for tt in range(5):
        p(f"s_add_u32 s41, s40, {tt}")
        p("s_lshr_b32 s42, s41, 1")
        p("s_mul_i32 s42, s42, 40960")
        p("s_and_b32 s41, s41, 1")
        p("s_lshl_b32 s41, s41, 6")
        p("s_add_u32 s41, s41, s42")
        p(f"v_add_u32 v{BV_O+tt}, s41, v{a}")
    p(f"v_add_u32 v{BV_R}, {RED1}, v{BV_H}")
    p(f"s_mul_i32 s40, s{B_M}, 80")
    p(f"s_lshr_b32 s41, s{S_W}, 1")
    p("s_lshl_b32 s41, s41, 4")
    p("s_add_u32 s40, s40, s41")
    p(f"v_add_u32 v{a}, s40, v{b}")
    p(f"v_lshlrev_b32 v{BV_RS+3}, 4, v{a}")
    p(f"v_add_u32 v{BV_RS+3}, {STO+4}, v{BV_RS+3}")
    p(f"v_mul_u32_u24 v{a}, 1152, v{a}")
    p(f"v_lshrrev_b32 v{b}, 4, v{L}")
    p(f"v_lshl_add_u32 v{a}, v{b}, 5, v{a}")
    p(f"s_and_b32 s41, s{S_W}, 1")
    p("s_lshl_b32 s41, s41, 4")
    p(f"s_add_u32 s40, s{B_WDB}, s41")
    p(f"v_add_u32 v{BV_XO}, s40, v{a}")
    p(f"v_add_u32 v{BV_XO+1}, {32*1152}, v{BV_XO}")
    p(f"v_add_u32 v{BV_XO+2}, {64*1152}, v{BV_XO}")
    p(f"v_bfe_u32 v{TMP+16}, v{L}, 3, 2")
    p(f"v_lshrrev_b32 v{a}, 5, v{L}")
    p(f"v_mul_u32_u24 v{a}, {9*1152}, v{a}")
    p(f"v_and_b32 v{b}, 7, v{L}")
    p(f"v_lshl_add_u32 v{a}, v{b}, 4, v{a}")
    p(f"v_add_u32 v{TMP+17}, s{B_WDB}, v{a}")
    p(f"v_mov_b32 v{TMP+18}, {OOB}")
    p.add(st3(5))
    p(f"s_mov_b32 s{B_IT}, 0")

def stage_b():
    out = ""
    p = Prog()
    fl = f"buffer_load_dwordx2 {vr(BV_FD,2)}, v{BV_FA}, {sr(S_FL)}, 0 offen sc1"
    p("LB_loop:")
    for s in range(NSLOT):
        p(f"s_waitcnt vmcnt({36 if s == 0 else 37})")
        if s == 0:
            p(f"s_and_b32 s40, s{B_IT}, 1")
            p("s_cbranch_scc0 LF2_ok")
            check_tokens(p, "F2", [fl], [BV_FD])
            p(f"s_cmp_eq_u32 s{B_IT}, 1")
            p(f"s_cselect_b32 s40, {FL_2 - FL_M}, 0")
            p(f"v_add_u32 v{BV_FA}, s40, v{BV_FA}")
        if s == 3:
            p(f"s_cmp_eq_u32 s{B_IT}, 0")
            p("s_cbranch_scc0 LB_pub")
            p("s_barrier")
            flag_store(p, S_WFB, BT0)
            p("LB_pub:")
        issue_down(p, (s + NSLOT - 1) % NSLOT)
        if s == 0: p(fl)
        compute(p, s, ACC1, True)
    p(f"s_add_u32 s{B_IT}, s{B_IT}, 1")
    p(f"s_cmp_lt_u32 s{B_IT}, 5")
    p("s_cbranch_scc1 LB_loop")
    out += render(pad_hazards(flat(p.l)))
    seed = Prog()
    for s in range(NSLOT - 1): issue_down(seed, s)
    vm0 = [(set(i.wr), i.tag, i.kind) for i in seed.l if i.kind in VMK]
    p = Prog()
    p.add(st3(6))
    issue_down(p, 5); compute(p, 0, ACC1, False)
    issue_s(p, 0, 0); compute(p, 1, ACC1, False)
    compute(p, 2, ACC1, False)
    issue_s(p, 1, 1); compute(p, 3, ACC1, False)
    compute(p, 4, ACC1, False)
    issue_s(p, 2, 2)
    for u in range(3):
        p(f"buffer_load_dwordx4 {vr(XR+4*u,4)}, v{BV_XO+u}, {sr(B_X)}, 0 offen")
        p(f"buffer_load_dword v{BV_RS+u}, v{BV_RS+3}, {sr(S_FL)}, 0 offen offset:{512*u} sc1")
    compute(p, 5, ACC1, False)
    p.add(st3(7))
    issue_s(p, 3, 3)
    for w in range(1, 4):
        p(f"s_cmp_eq_u32 s{S_W}, {w}")
        p(f"s_cbranch_scc1 LB_w{w}")
    pre = insert_waits(flat(p.l), vm0=vm0)
    vm1 = list(insert_waits.vm)
    out += render(pad_hazards(pre))
    for w in range(4):
        p = Prog()
        if w: p(f"LB_w{w}:")
        p("s_nop 4")
        own = [u for u in range(10) if u % 4 == w]
        def comp(slot, first=False):
            c = Prog(); compute(c, slot, ACC2, False, first); return c.l
        x = Prog(); red_write(x, ACC1, w, RB)
        c = comp(0, True)
        p.add(c[:9]); p.add(zipweave(x.l, c[9:]))
        issue_s(p, 4, 4)
        p("s_waitcnt lgkmcnt(0)")
        p("s_barrier")
        for ui in range(len(own)): p(f"v_mul_f32 v{BV_RS+ui}, v{BV_RS+ui}, v{BV_RS+ui}")
        for ui, u in enumerate(own + [None] * (3 - len(own))):
            x = Prog()
            if u is not None:
                red_read(p, ACC1, u, RB, TMP)
                red_add(x, ACC1, u, TMP)
                f = accr(ACC1, u >> 1, 2*(u & 1))
                for r in range(8): x(f"v_mul_f32 v{f+r}, v{BV_RS+ui}, v{f+r}")
                for r in range(8): x(f"v_mul_f32 v{TMP+r}, s{S_NL2E}, v{f+r}")
                for r in range(8): x(f"v_exp_f32 v{TMP+r}, v{TMP+r}")
                for r in range(8): x(f"v_add_f32 v{TMP+r}, 1.0, v{TMP+r}")
                for r in range(8): x(f"v_rcp_f32 v{TMP+r}, v{TMP+r}")
                for r in range(8): x(f"v_mul_f32 v{f+r}, v{f+r}, v{TMP+r}")
            c = comp(1 + ui)
            p.add(c[:9]); p.add(zipweave(x.l, c[9:]))
        p("s_barrier")
        p.add(comp(4))
        if OPTS.get("time") in (1, 3): p.add(stamp(3))
        red_write(p, ACC2, w, RB)
        p("s_waitcnt lgkmcnt(0)")
        p("s_barrier")
        bufs = []
        for ui, u in enumerate(own):
            free = [x for x in range(10) if x % 4 != w]
            t = [accr(ACC2, x >> 1, 2*(x & 1)) for x in free]
            bufs.append(t[2*ui:2*ui+2] + [TMP + 8*ui] if ui < 3 else None)
            tt, np_ = u >> 1, u & 1
            for sl in range(3):
                off = RB + (u*3 + sl) * 2048
                for h_ in range(2):
                    p(f"ds_read_b128 {vr(bufs[ui][sl]+4*h_,4)}, v{BV_R + (off >> 16)} offset:{(off & 0xffff) + h_*1024}")
        for ui, u in enumerate(own):
            f = accr(ACC1, u >> 1, 2*(u & 1)); s_ = accr(ACC2, u >> 1, 2*(u & 1)); x = XR + 4*ui
            X8 = AF
            for r in range(4):
                p(f"v_lshlrev_b32 v{X8+2*r}, 16, v{x+r}")
                p(f"v_and_b32 v{X8+2*r+1}, 0xffff0000, v{x+r}")
            for sl in range(3):
                for r in range(8): p(f"v_add_f32 v{s_+r}, v{s_+r}, v{bufs[ui][sl]+r}")
            for r in range(8): p(f"v_fma_f32 v{f+r}, v{f+r}, v{s_+r}, v{X8+r}")
            for r in range(4): p(f"v_cvt_pk_bf16_f32 v{x+r}, v{f+2*r}, v{f+2*r+1}")
            p(f"buffer_store_dwordx4 {vr(x,4)}, v{BV_XO+ui}, {sr(B_OUT)}, 0 offen")
        time_out(p)
        p("s_endpgm")
        out += render(pad_hazards(insert_waits(flat(p.l), vm0=vm1)))
    p = Prog()
    p("LB_spare:")
    mean_fix(p, 3, AREA8[0]); ffn_epi(3, 8, p)
    p("s_waitcnt vmcnt(0)")
    p("s_barrier")
    flag_store(p, S_WFB, BT0)
    p("s_endpgm")
    out += finalize(p.l)
    return out
AREA8 = [0]

def ktable():
    lv = [[], [], []]
    for j in range(32):
        order = (0, 1, 2, 3) if j % 4 in (0, 3) else (1, 2, 0, 3)
        ks = lambda u: 9*(j >> 1) + (5 if j & 1 else 0) + u
        lv[0] += [ks(order[0]), ks(order[1])]; lv[1].append(ks(order[2])); lv[2].append(ks(3))
        if not j & 1: lv[2].append(9*(j >> 1) + 4)
    allk = sorted(lv[0]) + sorted(lv[1]) + sorted(lv[2])
    assert sorted(allk) == list(range(144))
    out = "LK_tab:\n"
    for w in range(4): out += ".byte " + ", ".join(str(allk[4*i + w]) for i in range(36)) + "\n"
    return out + ".p2align 2\n"

def gen(name, opts):
    OPTS.clear(); OPTS.update(opts); SLOW.clear()
    out = entry(name)
    p = Prog()
    prologue(p)
    stage_a(p)
    out += finalize(p.l)
    out += stage_b()
    for s in SLOW: out += finalize(s.l)
    out += "LK_end:\n    s_endpgm\n"
    out += ktable()
    out += kd(name, 512, 102, 256)
    return out

if __name__ == "__main__":
    NAME = "recurrent_scan__linear_kernel_hedgehog__swiglu_ffn__prompt"
    HDR = open(f"cdna_kernels/{NAME}.s.ref").read().split("; Override launch geometry")[0]
    opts = {}
    for a in sys.argv[2:]:
        k, v = a.split("=")
        opts[k] = int(v) if v.lstrip("-").isdigit() else v
    txt = HDR + f"; @launch grid=(256,1,1) block=(256,1,1) lds={LDS_BYTES}\n" + '.amdgcn_target "amdgcn-amd-amdhsa--gfx950"\n.text\n' + gen(NAME + "_kernel", opts)
    open(sys.argv[1], "w").write(txt)
```

```python
S, D, H, DH, F = 2048, 576, 32, 18, 4608
XF_OFF = 0x000000;  XF_SZ = 64*36*1024
WF_OFF = 0x240000;  WF_SZ = 32*2*36*1024
KV_OFF = 0x480000;  KV_SZ = 32*18*256
FL_OFF = 0x4A8000;  FL_SZ = 32768
FL_W, FL_K, FL_1, FL_M, FL_2, FL_X = 0, 8192, 16384, 18432, 20480, 22528
ST_OFF = 0x4B0000;  ST_SZ = 2048*16
OF_OFF = 0x4C0000;  OM_SZ = 128*16*1024
OF_SZ = OM_SZ + 64*32*128
HF_OFF = 0x740000;  HF_SZ = 128*144*1024
PX_OFF = HF_OFF + HF_SZ; PX_SZ = 26*3*3*2*20480
WS_USED = PX_OFF + PX_SZ
X_SZ = S*D*2
WQKV_SZ = D*3*D*2
WPHI_SZ = H*DH*DH*2
WOIN_SZ = D*D*2
WG_SZ = D*F*2
```

```python
import struct, sys
from asmgen import *
from layout import *

def np_f32(x): return struct.unpack("<I", struct.pack("<f", x))[0]
def vr(b, n): return f"v[{b}:{b+n-1}]"
def ar(b, n): return f"a[{b}:{b+n-1}]"
def sr(b, n=4): return f"s[{b}:{b+n-1}]"
def srd(p, d, base, off, size):
    if off:
        p(f"s_add_u32 s{d}, s{base}, {off}")
        p(f"s_addc_u32 s{d+1}, s{base+1}, 0")
    else:
        p(f"s_mov_b32 s{d}, s{base}")
        p(f"s_mov_b32 s{d+1}, s{base+1}")
    p(f"s_mov_b32 s{d+2}, {size}")
    p(f"s_mov_b32 s{d+3}, 0x20000")

MF = "v_mfma_f32_32x32x16_bf16"
MF8 = "v_mfma_f32_32x32x8_bf16"
MF16 = "v_mfma_f32_16x16x32_bf16"
L2E = 1.4426950408889634
OOB = 0x7ff00000
SPIN = 100000
STO = 32768
SLOT = 49184; PUP = 8224; XP = 16416
BUF = (0, 73760); BUP = 36896
SCR = 3 * SLOT; SCR_W = 3600; SROW = 112
CSX = 4 * SCR_W
TOKA = SCR + CSX + 1536
LDS_BYTES = TOKA + 64
P_X, P_WQKV, P_WPHI, P_WO, P_WG, P_WU, P_WD, P_OUT, P_DBG, P_WS = 64, 66, 68, 70, 72, 74, 76, 78, 80, 82
S_X, S_WF, S_WG, S_WU, S_HF, S_KV, S_OF, S_FL = 4, 8, 12, 16, 20, 24, 28, 32
S_W, S_MT, S_J, S_FI = 36, 37, 38, 39
S_M0X, S_M0W, S_FB, S_CG, S_NL2E, S_M0P, S_SPIN, S_TOK, S_SO, S_SO2, S_KVB, S_BT = 3, 44, 45, 50, 55, 56, 57, 58, 60, 61, 62, 63
S_WX = 66
S_WFB = 80
S_KT = 101
S_RG = 100
S_W0 = 81
STAMPS = list(range(84, 102, 2))
V_FL, V_LANE, V_W, V_H, V_SW, V_SR, V_B0, V_TRL, TR = 0, 1, 2, 3, 4, 5, 6, 7, 8
T1, T2, T3, T4 = 12, 13, 14, 15
XT, ACC, RING, RA = 16, 48, 176, 192
MV, E, SM = 80, 96, 106
KA = 48
CSA, MB, RL, SEL, CSACC, CT, EP = 224, 226, 230, 232, 236, 244, 248
V_CW, V_CR, V_A, V_Bq = 244, 245, 246, 247
CS4, XA, XD, WD, STG = 192, 208, 212, 214, 216
OPTS = {}
def stamp(i, modes=(1, 3)):
    return [I(f"s_memrealtime {sr(STAMPS[i],2)}")] if OPTS.get("time", 0) in modes else []
def st5(i):
    return [I(f"s_memtime {sr(STAMPS[i],2)}"), I("s_waitcnt lgkmcnt(0)")] if OPTS.get("time", 0) == 5 else []
def st6(i):
    return [I(f"s_memrealtime {sr(STAMPS[i],2)}"), I("s_waitcnt lgkmcnt(0)")] if OPTS.get("time", 0) == 6 else []
def st3(i):
    return [I(f"s_memrealtime {sr(STAMPS[i],2)}"), I("s_waitcnt lgkmcnt(0)")] if OPTS.get("time", 0) == 3 else []
def xreg(tt, s):
    if tt == 0: return ar(4*s, 4)
    if s < 28: return ar(144 + 4*s, 4)
    return vr(XT + 4*(s - 28), 4)
def acc(st, tt): return (RA if st == 4 else ACC + 32*st) + 16*tt

SLOW = []
def check_tokens(q, name, loads, pairs, tmp="s[42:43]"):
    def test(lst):
        for k, v in enumerate(pairs):
            if k == 0: lst.append(f"v_cmp_eq_u64 vcc, {sr(S_TOK,2)}, {vr(v,2)}")
            else:
                lst.append(f"v_cmp_eq_u64 {tmp}, {sr(S_TOK,2)}, {vr(v,2)}")
                lst.append("s_nop 0"); lst.append(f"s_and_b64 vcc, vcc, {tmp}")
        lst.append("s_nop 1"); lst.append("s_cmp_eq_u64 vcc, -1")
    items = []; test(items)
    q.b(*(items + [f"s_cbranch_scc0 L{name}_slow", f"L{name}_ok:"]))
    s = Prog()
    s(f"L{name}_slow:")
    s(f"s_mov_b32 s{S_SPIN}, 0")
    s(f"L{name}_spin:")
    s("s_sleep 2")
    for l in loads: s(l)
    s("s_waitcnt vmcnt(0)")
    s(f"s_add_u32 s{S_SPIN}, s{S_SPIN}, 1")
    items = []; test(items)
    for t in items: s(t)
    s(f"s_cbranch_scc1 L{name}_ok")
    s(f"s_cmp_lt_u32 s{S_SPIN}, {SPIN}")
    s(f"s_cbranch_scc1 L{name}_spin")
    s(f"s_branch L{name}_ok")
    SLOW.append(s)

def flag_store(q, sidx, tmpv):
    q(f"v_mov_b32 v{tmpv}, s{S_TOK}")
    q(f"v_mov_b32 v{tmpv+1}, s{S_TOK+1}")
    q(f"buffer_store_dwordx2 {vr(tmpv,2)}, v{V_FL}, {sr(S_FL)}, s{sidx} offen sc1")

def row16_allreduce(p, v):
    for r in (8, 4, 2, 1):
        p(f"v_add_f32_dpp v{v}, v{v}, v{v} row_ror:{r} row_mask:0xf bank_mask:0xf")
def half_allreduce(p, v, t):
    row16_allreduce(p, v)
    p(f"v_mov_b32 v{t}, v{v}")
    p(f"v_permlane16_swap_b32 v{v}, v{t}")
    p(f"v_add_f32 v{v}, v{v}, v{t}")
def bf16_round(p, v):
    p(f"v_cvt_pk_bf16_f32 v{v}, v{v}, v{v}")
    p(f"v_and_b32 v{v}, 0xffff0000, v{v}")

def rg_next(q):
    q.b(f"s_add_u32 s{S_RG}, s{S_RG}, 1", f"s_cmp_eq_u32 s{S_RG}, 9", f"s_cselect_b32 s{S_RG}, 0, s{S_RG}")
def ring_group(g):
    b = (g % 3) * SLOT
    q = Prog()
    q(f"s_mul_i32 s{S_SO}, s{S_RG}, 589824")
    q(f"s_add_u32 s{S_SO}, s{S_SO}, s{S_FB}")
    for h8 in range(2):
        q(f"s_add_u32 m0, s{S_M0P}, {b + h8*1024}")
        if h8: q(f"s_add_u32 s{S_SO}, s{S_SO}, 73728")
        else: q("s_nop 0")
        q(f"buffer_load_dwordx4 v{WD}, {sr(S_WG)}, s{S_SO} offen lds", tag=f"W{g}")
        q(f"s_add_u32 m0, s{S_M0P}, {b + PUP + h8*1024}")
        q(f"s_nop 0")
        q(f"buffer_load_dwordx4 v{WD}, {sr(S_WU)}, s{S_SO} offen lds", tag=f"W{g}")
    for i in range(8):
        q(f"s_add_u32 m0, s{S_M0X}, {b + XP + i*1024}")
        q(f"s_add_u32 s{S_SO}, s{S_SO}, 9216" if i else f"s_lshl_b32 s{S_SO}, s{S_RG}, 7")
        q(f"buffer_load_dwordx4 v{XD + (i & 1)}, {sr(S_X)}, s{S_SO} offen lds", tag=f"X{g}")
    rg_next(q)
    return q

def x_copy(g):
    q = Prog()
    q.wait(vm=[f"X{g}"])
    for p_ in range(4):
        if g: q(f"v_add_u32 v{XA+p_}, {SLOT if g % 3 else (-2*SLOT) & 0xffffffff}, v{XA+p_}")
        for tt in range(2):
            q(f"ds_read_b128 {xreg(tt, 4*g+p_)}, v{XA+p_} offset:{tt*4096}")
    return q

def dma_unit_group(u, g):
    b = BUF[(u + 1) & 1]
    q = Prog()
    q(f"s_mul_i32 s{S_SO}, s{S_RG}, 589824")
    q(f"s_add_u32 m0, s{S_M0W}, {b + g*4096}")
    q(f"s_add_u32 s{S_SO}, s{S_SO}, s{S_FB+u}")
    q(f"buffer_load_dwordx4 v{V_W}, {sr(S_WG)}, s{S_SO} offen lds", tag=f"U{u}")
    q(f"s_add_u32 m0, s{S_M0W}, {b + BUP + g*4096}")
    rg_next(q)
    q(f"buffer_load_dwordx4 v{V_W}, {sr(S_WU)}, s{S_SO} offen lds", tag=f"U{u}")
    return q

def dma_wf(t):
    q = Prog()
    for g in range(9):
        q(f"s_lshl_b32 s{S_SO}, s{S_RG}, 12")
        q(f"s_add_u32 m0, s{S_M0W}, {t*BUP + g*4096}")
        q(f"s_add_u32 s{S_SO}, s{S_SO}, s{S_WFB}")
        q(f"buffer_load_dwordx4 v{V_B0}, {sr(S_WF)}, s{S_SO} offen sc1 lds", tag=f"T{t}")
        rg_next(q)
    if t == 0: q(f"s_add_u32 s{S_WFB}, s{S_WFB}, 36864")
    return q

TKR = STG + 6
GA = STG + 4
TOKLD = f"buffer_load_dwordx2 {vr(TKR,2)}, v{GA+1}, s[20:23], 0 offen sc1"
FA = 112
SR_ = 224
F_VA, F_VB, F_RHO, F_HF, F_DV, F_Z = 236, 238, 240, 241, 242, 243
def prologue(p):
    L = V_LANE
    p("s_cmp_ge_u32 s2, 256")
    p("s_cbranch_scc1 LK_end")
    p.add(st5(0))
    p("s_load_dwordx8 s[64:71], s[0:1], 0")
    p("s_load_dwordx8 s[72:79], s[0:1], 40")
    p("s_load_dwordx4 s[80:83], s[0:1], 72")
    p.add(stamp(0))
    p("v_lshrrev_b32 v14, 6, v0")
    p(f"v_and_b32 v{L}, 63, v0")
    p(f"v_readfirstlane_b32 s{S_W}, v14")
    p("s_and_b32 s40, s2, 7")
    p("s_lshr_b32 s41, s2, 3")
    p("s_and_b32 s42, s40, 1")
    p("s_lshl_b32 s42, s42, 2")
    p("s_and_b32 s43, s41, 3")
    p(f"s_add_u32 s{S_MT}, s42, s43")
    p("s_lshr_b32 s42, s40, 1")
    p("s_lshl_b32 s42, s42, 3")
    p("s_lshr_b32 s43, s41, 2")
    p(f"s_add_u32 s{S_J}, s42, s43")
    p(f"s_lshl_b32 s{S_M0W}, s{S_W}, 10")
    p(f"s_lshl_b32 s{S_M0P}, s{S_W}, 11")
    p(f"s_lshl_b32 s{S_M0X}, s{S_W}, 13")
    p(f"s_lshl_b32 s{S_BT}, s{S_W}, 3")
    p(f"s_add_u32 s{S_BT}, s{S_BT}, s{S_MT}")
    p(f"s_mul_i32 s40, s{S_J}, 144")
    p(f"s_and_b32 s41, s{S_J}, 1")
    p("s_lshl_b32 s42, s41, 4")
    p("s_add_u32 s42, s42, s40")
    p("s_cmp_eq_u32 s41, 0")
    p("s_cselect_b32 s43, 128, 0")
    p("s_add_u32 s43, s43, s40")
    p(f"s_add_u32 s40, s{S_J}, 1")
    p("s_and_b32 s40, s40, 2")
    p("s_lshl_b32 s40, s40, 4")
    p(f"s_add_u32 s{S_FB}, s42, s40")
    p(f"s_lshl_b32 s{S_FB}, s{S_FB}, 1")
    p(f"v_lshrrev_b32 v17, 5, v{L}")
    p(f"v_and_b32 v19, 31, v{L}")
    p(f"s_lshl_b32 s{S_FI}, s{S_MT}, 5")
    p(f"s_add_u32 s{S_FI}, s{S_FI}, s{S_J}")
    p(f"s_lshl_b32 s{S_FI}, s{S_FI}, 3")
    p(f"s_lshl_b32 s{S_SO2}, s{S_W}, 1")
    p(f"s_add_u32 s{S_SO2}, s{S_SO2}, s{S_FI}")
    p(f"v_add_u32 v16, s{S_SO2}, v17")
    p("v_mul_u32_u24 v15, 1152, v16")
    p("v_lshl_add_u32 v15, v19, 2, v15")
    p(f"s_add_u32 s{S_RG}, s{S_MT}, s{S_J}")
    p(f"s_mul_i32 s{S_KVB}, s{S_RG}, 7282")
    p(f"s_lshr_b32 s{S_KVB}, s{S_KVB}, 16")
    p(f"s_mul_i32 s{S_KVB}, s{S_KVB}, 9")
    p(f"s_sub_u32 s{S_RG}, s{S_RG}, s{S_KVB}")
    if OPTS.get("norot"): p(f"s_mov_b32 s{S_RG}, 0")
    p(f"v_lshrrev_b32 v12, 3, v{L}")
    p(f"s_lshl_b32 s{S_SO2}, s{S_MT}, 2")
    p(f"s_add_u32 s{S_SO2}, s{S_SO2}, s{S_W}")
    p(f"s_lshl_b32 s{S_SO2}, s{S_SO2}, 6")
    p(f"v_add_u32 v13, s{S_SO2}, v12")
    p("v_mul_u32_u24 v13, 1152, v13")
    p("v_lshrrev_b32 v12, 1, v12")
    p(f"v_and_b32 v14, 7, v{L}")
    p("v_xor_b32 v12, v12, v14")
    p(f"v_lshl_add_u32 v{XD}, v12, 4, v13")
    p(f"v_xor_b32 v{XD+1}, 64, v{XD}")
    p(f"v_bfe_u32 v12, v{L}, 2, 3")
    p(f"s_lshl_b32 s{S_SO2}, s{S_W}, 4")
    p(f"v_add_u32 v12, s{S_SO2}, v12")
    p("v_mul_u32_u24 v12, 9216, v12")
    p("v_lshl_add_u32 v12, v17, 6, v12")
    p(f"v_and_b32 v13, 3, v{L}")
    p(f"v_lshl_add_u32 v{WD}, v13, 4, v12")
    p(f"v_cmp_eq_u32 vcc, 0, v{L}")
    p(f"v_mov_b32 v18, {OOB}")
    p(f"v_cndmask_b32 v{V_FL}, v18, v{L}, vcc")
    p(f"v_lshlrev_b32 v{V_B0}, 4, v{L}")
    p("s_waitcnt lgkmcnt(0)")
    p.add(st5(1))
    srd(p, S_X, P_X, 0, X_SZ)
    code_touch(p)
    for i in range(9): p(f"buffer_load_dword v{SR_+i}, v15, {sr(S_X)}, 0 offen offset:{128*i}")
    srd(p, S_WG, P_WG, 0, WG_SZ)
    srd(p, S_WU, P_WU, 0, WG_SZ)
    srd(p, 24, P_WQKV, 0, WQKV_SZ)
    p(f"v_min_u32 v20, 15, v{L}")
    p("v_lshlrev_b32 v20, 7, v20")
    p("s_lshl_b32 s46, s2, 2")
    p(f"s_add_u32 s46, s46, s{S_W}")
    p("s_lshl_b32 s46, s46, 11")
    p(f"buffer_load_dword v{EP}, v20, s[24:27], s46 offen")
    g0 = ring_group(0).l
    cut = [k for k, i in enumerate(g0) if i.kind == "dma"][OPTS.get("cut", 5)] - 2
    p.add(g0[:cut])
    srd(p, 20, P_DBG, 0, 256)
    p(f"s_or_b32 s46, s2, s{S_W}")
    p(f"s_cmp_lg_u32 s46, 0")
    p("s_cbranch_scc1 LT_skip")
    p("s_memrealtime s[46:47]")
    p("v_mov_b32 v34, 0")
    p("v_mov_b32 v35, 0")
    p("s_waitcnt lgkmcnt(0)")
    p("s_or_b32 s46, s46, 1")
    p("v_mov_b32 v32, s46")
    p("v_mov_b32 v33, s47")
    p.l.append(Raw(f"    buffer_atomic_cmpswap_x2 v[32:35], v{V_FL}, s[20:23], 0 offen sc1"))
    p("LT_skip:")
    p.add(st5(2))
    p(f"s_add_u32 s{S_FB+1}, s{S_FB}, 64")
    p("s_lshl_b32 s40, s40, 1")
    p("s_sub_u32 s40, 64, s40")
    p("s_add_u32 s40, s40, s42")
    p(f"s_lshl_b32 s{S_FB+2}, s40, 1")
    p(f"s_add_u32 s42, s42, 96")
    p(f"s_lshl_b32 s{S_FB+3}, s42, 1")
    p(f"s_lshl_b32 s{S_FB+4}, s43, 1")
    for u in range(5): p(f"s_lshl_b32 s{S_CG+u}, s{S_FB+u}, 4")
    p(f"s_mul_i32 s{S_KVB}, s{S_J}, 4608")
    srd(p, S_WF, P_WS, WF_OFF, WF_SZ)
    srd(p, 28, P_WPHI, 0, WPHI_SZ)
    srd(p, S_FL, P_WS, FL_OFF, FL_SZ + ST_SZ)
    for i in range(4):
        p(f"s_xor_b32 s{S_WX+i}, s{S_W}, {i}")
        p(f"s_lshl_b32 s{S_WX+i}, s{S_WX+i}, 10")
    p(f"s_mul_i32 s{S_WFB}, s{S_J}, 73728")
    p(f"s_add_u32 s{S_WFB}, s{S_WFB}, s{S_M0W}")
    p(f"s_cmp_eq_u32 s{S_W}, 0")
    p(f"s_cselect_b32 s{S_W0}, 0, {OOB}")
    p(f"v_bfe_u32 v12, v{L}, 2, 2")
    p(f"v_and_b32 v13, 3, v{L}")
    p("v_lshlrev_b32 v13, 3, v13")
    p("v_lshl_add_u32 v12, v12, 6, v13")
    p(f"v_bfe_u32 v13, v{L}, 4, 1")
    p(f"v_mul_u32_u24 v14, {BUP}, v13")
    p("v_add_u32 v14, v14, v12")
    p(f"v_lshl_add_u32 v{V_TRL}, v17, 9, v14")
    p(f"v_mul_u32_u24 v14, {PUP}, v13")
    p("v_add_u32 v14, v14, v12")
    p("v_lshl_add_u32 v14, v17, 10, v14")
    for i in range(4):
        p(f"s_lshl_b32 s40, s{S_WX+i}, 1")
        p(f"v_add_u32 v{TR+i}, s40, v14")
    p(f"v_bfe_u32 v12, v{L}, 1, 3")
    p("v_xor_b32 v12, v12, v17")
    p(f"s_add_u32 s41, s{S_M0X}, {XP}")
    p("v_lshl_add_u32 v14, v19, 7, s41")
    for i in range(4):
        p(f"s_lshr_b32 s40, s{S_WX+i}, 9")
        p("v_xor_b32 v15, s40, v12")
        p(f"v_lshl_add_u32 v{XA+i}, v15, 4, v14")
    p(f"v_lshrrev_b32 v12, 2, v{L}")
    p(f"s_lshl_b32 s40, s{S_W}, 4")
    p("v_add_u32 v12, s40, v12")
    p("v_mul_u32_u24 v12, 9216, v12")
    p(f"v_and_b32 v14, 3, v{L}")
    p(f"v_lshl_add_u32 v{V_W}, v14, 4, v12")
    p(f"s_lshl_b32 s40, s{S_MT}, 4")
    p(f"s_lshl_b32 s41, s{S_W}, 2")
    p("s_add_u32 s40, s40, s41")
    p("v_add_u32 v12, s40, v13")
    p("v_mul_u32_u24 v12, 147456, v12")
    p(f"v_and_b32 v14, 15, v{L}")
    p("v_lshl_add_u32 v12, v14, 4, v12")
    p(f"v_lshl_add_u32 v{V_H}, v17, 8, v12")
    p(f"s_mul_i32 s40, s{S_W}, {SCR_W}")
    p(f"s_add_u32 s40, s40, {SCR}")
    p(f"v_mul_u32_u24 v12, {SROW}, v19")
    p("v_lshl_add_u32 v12, v17, 3, v12")
    p(f"v_add_u32 v{V_SW}, s40, v12")
    p(f"v_lshrrev_b32 v12, 4, v{L}")
    p(f"v_bfe_u32 v15, v{L}, 2, 2")
    p("v_lshl_add_u32 v12, v12, 3, v15")
    p(f"v_mul_u32_u24 v12, {SROW}, v12")
    p(f"v_and_b32 v15, 3, v{L}")
    p("v_lshl_add_u32 v12, v15, 3, v12")
    p(f"v_add_u32 v{V_SR}, s40, v12")
    p(f"s_lshl_b32 s41, s{S_W}, 7")
    p(f"s_add_u32 s41, s41, {SCR}")
    p(f"v_lshl_add_u32 v{V_CW}, v{L}, 3, s41")
    p("v_lshlrev_b32 v12, 3, v14")
    p("v_lshl_add_u32 v12, v13, 2, v12")
    p(f"v_add_u32 v{V_CR}, {SCR}, v12")
    p(f"s_mov_b32 s{S_NL2E}, 0x{np_f32(-L2E):08x}")
    p(f"v_lshlrev_b32 v16, 4, v16")
    p(f"v_add_u32 v16, {STO}, v16")
    p(f"v_cmp_eq_u32 vcc, 0, v19")
    p(f"v_cndmask_b32 v{GA}, v18, v16, vcc")
    p(f"v_mov_b32 v{F_Z}, 0")
    p(f"v_mov_b32 v{F_HF}, v17")
    p("v_bfe_u32 v22, v19, 2, 1")
    p("v_lshrrev_b32 v23, 3, v19")
    p("v_and_b32 v24, 3, v19")
    p(f"v_lshl_or_b32 v{F_RHO}, v23, 2, v24")
    p("v_mul_u32_u24 v24, 9, v22")
    p(f"v_cmp_gt_u32 vcc, 9, v{F_RHO}")
    p(f"v_subrev_u32 v25, 9, v{F_RHO}")
    p(f"v_cndmask_b32 v25, v25, v{F_RHO}, vcc")
    p("v_add_u32 v25, v25, v24")
    p(f"v_cmp_gt_u32 vcc, 2, v{F_RHO}")
    p(f"v_add3_u32 v26, v{F_RHO}, v24, 7")
    p(f"v_cndmask_b32 v26, v{F_Z}, v26, vcc")
    p(f"s_add_u32 s41, s{S_M0W}, {SCR + 3*SCR_W}")
    p(f"v_lshl_add_u32 v{F_VB}, v25, 1, s41")
    p(f"v_lshl_add_u32 v{F_VB+1}, v26, 1, s41")
    p("v_and_b32 v20, 0x13, v19")
    p("v_and_b32 v21, 4, v19")
    p("v_lshl_or_b32 v20, v21, 1, v20")
    p("v_and_b32 v21, 8, v19")
    p("v_lshrrev_b32 v21, 1, v21")
    p("v_or_b32 v20, v20, v21")
    p("v_mul_u32_u24 v20, 36, v20")
    p(f"v_add_u32 v{V_A}, s40, v20")
    p(f"v_lshl_add_u32 v{V_Bq}, v17, 4, v{V_A}")
    p("v_mul_u32_u24 v27, 288, v17")
    p(f"v_add_u32 v{F_VA}, v{F_VB}, v27")
    p(f"v_add_u32 v{F_VA+1}, v{F_VB+1}, v27")
    p(f"v_subrev_u32 v25, 2, v{F_RHO}")
    p("v_lshl_add_u32 v26, v22, 3, v25")
    p("v_cmp_gt_u32 vcc, 8, v25")
    p("v_add_u32 v31, 8, v25")
    p("v_lshl_add_u32 v31, v22, 6, v31")
    p("v_cndmask_b32 v26, v31, v26, vcc")
    p("v_cmp_gt_u32 vcc, 10, v25")
    p("v_mov_b32 v31, 255")
    p("v_cndmask_b32 v26, v31, v26, vcc")
    p("v_lshlrev_b32 v27, 3, v17")
    p(f"v_sub_u32 v{F_DV}, v26, v27")
    for i in range(3):
        for r in (1, 2, 3): p(f"v_accvgpr_write_b32 a{FA+12+4*i+r}, 0")
    p.add(st5(3))
    p.add(g0[cut:])
    X = 96; M = STG; V = 118; R = SR_
    for i in range(9):
        p(f"v_lshlrev_b32 v{X+2*i}, 16, v{R+i}")
        p(f"v_and_b32 v{X+2*i+1}, 0xffff0000, v{R+i}")
    p("v_cmp_eq_u32 vcc, v14, v13")
    p("v_mov_b32 v12, 0x3f803f80")
    for r in range(4): p(f"v_cndmask_b32 v{SEL+r}, v{F_Z}, v12, vcc")
    for r in (CSA+1, MB+1, MB+3): p(f"v_mov_b32 v{r}, 0")
    p(f"v_add_f32 v{M}, v{X}, v{X+2}")
    p(f"v_add_f32 v{M+1}, v{X+1}, v{X+3}")
    for i in range(2, 9):
        p(f"v_add_f32 v{M}, v{M}, v{X+2*i}")
        p(f"v_add_f32 v{M+1}, v{M+1}, v{X+2*i+1}")
    p(f"v_add_f32 v{M}, v{M}, v{M+1}")
    half_allreduce(p, M, M+1)
    p(f"v_mul_f32 v{M}, 0x{np_f32(1/576):08x}, v{M}")
    for i in range(18): p(f"v_sub_f32 v{X+i}, v{X+i}, v{M}")
    p(f"v_mul_f32 v{V}, v{X}, v{X}")
    p(f"v_mul_f32 v{V+1}, v{X+1}, v{X+1}")
    for i in range(1, 9):
        p(f"v_fmac_f32 v{V}, v{X+2*i}, v{X+2*i}")
        p(f"v_fmac_f32 v{V+1}, v{X+2*i+1}, v{X+2*i+1}")
    p(f"v_add_f32 v{V}, v{V}, v{V+1}")
    half_allreduce(p, V, V+1)
    p(f"v_mul_f32 v{V}, 0x{np_f32(1/576):08x}, v{V}")
    bf16_round(p, M)
    bf16_round(p, V)
    p(f"v_add_f32 v{V}, 0x{np_f32(1e-5):08x}, v{V}")
    bf16_round(p, V)
    p(f"v_sqrt_f32 v{V}, v{V}")
    bf16_round(p, V)
    p(f"v_rcp_f32 v{M+1}, v{V}")
    p.add(st5(4))
    p(f"s_cmp_ge_u32 s{S_BT}, 18")
    p("s_cbranch_scc1 LP_nofl")
    p(f"s_add_u32 m0, s{S_M0W}, {SCR + 3*SCR_W}")
    p(f"s_mul_i32 s{S_SO}, s{S_J}, 648")
    p.l.append(Raw(f"    buffer_load_dwordx4 v{V_B0}, s[28:31], s{S_SO} offen lds"))
    p(f"v_mul_u32_u24 v20, 7282, v{L}")
    p("v_lshrrev_b32 v20, 16, v20")
    p("v_mul_u32_u24 v21, 9, v20")
    p(f"v_sub_u32 v21, v{L}, v21")
    p("v_mul_u32_u24 v20, 3456, v20")
    p("v_lshl_add_u32 v20, v21, 2, v20")
    p(f"s_mul_i32 s{S_SO}, s{S_BT}, {32*3456}")
    p(f"s_mul_i32 s41, s{S_J}, 36")
    p(f"s_add_u32 s{S_SO}, s{S_SO}, s41")
    for mat in range(3):
        for i in range(5):
            p(f"s_add_u32 m0, s40, {mat*1152 + i*252}")
            p(f"s_add_u32 s41, s{S_SO}, {mat*1152 + i*7*3456}")
            p.l.append(Raw(f"    buffer_load_dword v20, s[24:27], s41 offen lds"))
    p("LP_nofl:")
    p.add(st5(5))
    p(f"v_mov_b32 v{GA+1}, s{S_W0}")
    srd(p, S_KV, P_WS, KV_OFF, KV_SZ)
    srd(p, S_OF, P_WS, OF_OFF, OF_SZ)
    if OPTS.get("g1pre", 1): p.add(ring_group(1))
    p.add(st5(6))
    p.add(stamp(4, (1,)))

def fold_stream():
    q = Prog()
    B0, B1, D, O = XT, XT + 8, XT + 16, EP
    q.wait(vm=["W1"])
    for mat in range(3):
        q(f"v_add_u32 v{D}, {mat*1152}, v{V_Bq}")
        q(f"ds_read2_b32 {ar(FA+4*mat,2)}, v{D} offset0:0 offset1:1")
        q(f"ds_read2_b32 {ar(FA+4*mat+2,2)}, v{D} offset0:2 offset1:3")
        q(f"ds_read_b32 a{FA+12+4*mat}, v{V_A} offset:{mat*1152+32}")
    q(f"s_lshl_b32 s41, s{S_BT}, 11")
    q(f"s_add_u32 s41, s{S_WFB}, s41")
    q(f"s_sub_u32 s41, s41, s{S_M0W}")
    q(f"s_lshl_b32 s43, s{S_BT}, 8")
    q(f"s_add_u32 s43, s43, s{S_KVB}")
    q.b(f"s_cmp_lt_u32 s{S_BT}, 18", f"s_cselect_b32 s41, s41, {OOB}", f"s_cselect_b32 s43, s43, {OOB}")
    q("s_add_u32 s42, s41, 36864")
    for b in (B0, B1):
        for r in (5, 6, 7): q(f"v_mov_b32 v{b+r}, 0")
    for t in range(2):
        for e in range(8): q(f"ds_read_u16 v{D+e}, v{F_VA+t} offset:{e*36}")
        q(f"ds_read_u16 v{D+8}, v{F_VB+t} offset:{16*36}")
        q(f"ds_read_u16 v{D+9}, v{F_VB+t} offset:{17*36}")
        if t == 1:
            q(f"v_mov_b32 v{D+10}, 0x3f80")
            for r, sub in enumerate((0, 2, 4, 6, 16)):
                q(f"v_subrev_u32 v{D+11}, {sub}, v{F_DV}")
                q(f"v_lshlrev_b32 v{D+12}, 4, v{D+11}")
                q(f"v_cmp_gt_u32 vcc, 2, v{D+11}")
                q(f"v_lshlrev_b32 v{D+12}, v{D+12}, v{D+10}")
                q(f"v_cndmask_b32 v{B1+r}, v{F_Z}, v{D+12}, vcc")
        q(f"v_cmp_eq_u32 vcc, 0, v{F_HF}")
        for r in range(5): q(f"v_lshl_or_b32 v{D+r}, v{D+2*r+1}, 16, v{D+2*r}")
        q(f"v_cndmask_b32 v{D+4}, v{F_Z}, v{D+4}, vcc")
        q(f"v_cmp_gt_u32 vcc, {9 if t == 0 else 2}, v{F_RHO}")
        q("s_nop 0")
        for r in range(5): q(f"v_cndmask_b32 v{B0+r}, v{F_Z}, v{D+r}, vcc")
        if t == 0:
            for r in range(5): q(f"v_cndmask_b32 v{B1+r}, v{D+r}, v{F_Z}, vcc")
        a0 = FA + 4*t
        q(f"{MF} {vr(D,16)}, {ar(a0,4)}, {vr(B0,4)}, 0")
        q(f"{MF} {vr(D,16)}, {ar(a0+12,4)}, {vr(B0+4,4)}, {vr(D,16)}")
        q(f"{MF} {vr(D,16)}, {ar(a0+4,4)}, {vr(B1,4)}, {vr(D,16)}")
        q(f"{MF} {vr(D,16)}, {ar(a0+16,4)}, {vr(B1+4,4)}, {vr(D,16)}")
        for r in range(8): q(f"v_cvt_pk_bf16_f32 v{O+r}, v{D+2*r}, v{D+2*r+1}")
        for jj in range(2):
            q(f"buffer_store_dwordx4 {vr(O+4*jj,4)}, v{V_B0}, {sr(S_WF)}, s{41+t} offen offset:{1024*jj} sc1", tag="fold")
    q(f"v_cmp_gt_u32 vcc, 16, v{V_LANE}")
    q(f"v_mov_b32 v{D}, {OOB}")
    q(f"v_mov_b32 v{B0+4}, 0")
    q(f"v_cndmask_b32 v{D}, v{D}, v{V_B0}, vcc")
    q(f"buffer_store_dwordx4 {vr(B0+4,4)}, v{D}, {sr(S_KV)}, s43 offen sc1", tag="fold")
    return q

def code_touch(q):
    L = V_LANE
    q("s_getpc_b64 s[46:47]")
    q("LT_pc:")
    q("s_lshr_b32 s48, s2, 3")
    q("s_lshl_b32 s48, s48, 2")
    q(f"s_add_u32 s48, s48, s{S_W}")
    q("s_cmp_gt_u32 s48, 7")
    q("s_cbranch_scc1 LT_nocode")
    q("s_lshl_b32 s48, s48, 13")
    q(f"v_lshlrev_b32 v21, 7, v{L}")
    q(f"v_add_u32 v21, s48, v21")
    q(f"v_min_u32 v21, LK_end-LT_pc-4, v21")
    q.l.append(Raw(f"    global_load_dword v{EP+7}, v21, s[46:47]"))
    q("LT_nocode:")

def late_touch():
    q = Prog()
    L = V_LANE
    q(f"v_mul_u32_u24 v{T3}, 21846, v{L}")
    q(f"v_lshrrev_b32 v{T3}, 16, v{T3}")
    q(f"v_mul_u32_u24 v{T4}, 3, v{T3}")
    q(f"v_sub_u32 v{T4}, v{L}, v{T4}")
    q(f"v_mul_u32_u24 v{T3}, 9216, v{T3}")
    q(f"v_lshl_add_u32 v{T3}, v{T4}, 7, v{T3}")
    q(f"s_mul_i32 s41, s{S_J}, 288")
    q("s_and_b32 s41, s41, 0xffffff80")
    q(f"s_mul_i32 s42, s{S_BT}, {18*9216}")
    q("s_add_u32 s41, s41, s42")
    q(f"buffer_load_dword v{V_A}, v{T3}, {sr(S_WG)}, s41 offen")
    q(f"buffer_load_dword v{V_Bq}, v{T3}, {sr(S_WU)}, s41 offen")
    return q

def token_issue():
    q = Prog(); q(TOKLD); return q
def token_share():
    q = Prog()
    q(f"s_lshl_b32 s40, s{S_W}, 3")
    q(f"s_add_u32 s40, s40, {TOKA}")
    q(f"v_mov_b32 v{T1}, s40")
    q.b(f"v_readfirstlane_b32 s40, v{TKR}", f"s_or_b32 s40, s40, s{S_W}", "s_cbranch_scc0 LT_slow", "LT_ok:")
    s = Prog()
    s("LT_slow:"); s(f"s_mov_b32 s{S_SPIN}, 0"); s("LT_spin:"); s("s_sleep 2"); s(TOKLD); s("s_waitcnt vmcnt(0)")
    s(f"v_readfirstlane_b32 s40, v{TKR}"); s(f"s_add_u32 s{S_SPIN}, s{S_SPIN}, 1"); s("s_cmp_lg_u32 s40, 0"); s("s_cbranch_scc1 LT_ok")
    s(f"s_cmp_lt_u32 s{S_SPIN}, {SPIN}"); s("s_cbranch_scc1 LT_spin"); s("s_branch LT_ok")
    SLOW.append(s)
    q(f"ds_write_b64 v{T1}, {vr(TKR,2)}")
    return q
def token_and_stats():
    q = Prog()
    q(f"v_mov_b32 v{T1}, {TOKA}")
    q(f"ds_read_b64 {vr(TKR,2)}, v{T1}")
    q(f"v_readfirstlane_b32 s{S_TOK}, v{TKR}")
    q(f"v_readfirstlane_b32 s{S_TOK+1}, v{TKR+1}")
    q(f"v_mov_b32 v{STG+2}, v{TKR}")
    q(f"v_mov_b32 v{STG+3}, v{TKR+1}")
    q(f"buffer_store_dwordx4 {vr(STG,4)}, v{GA}, {sr(S_FL)}, 0 offen sc1")
    q.b(f"s_add_u32 s{S_HF}, s{P_WS}, {HF_OFF}", f"s_addc_u32 s{S_HF+1}, s{P_WS+1}, 0")
    q(f"s_mov_b32 s{S_HF+2}, {HF_SZ}")
    return q

def fold_flag():
    q = Prog()
    q(f"s_lshl_b32 s40, s{S_J}, 5")
    q(f"s_add_u32 s40, s40, s{S_BT}")
    q("s_lshl_b32 s40, s40, 3")
    q.wait(vm=["fold"])
    flag_store(q, 40, T1)
    return q

def st_loads():
    return [f"buffer_load_dwordx4 {vr(STG+4*tt,4)}, v{T3}, {sr(S_FL)}, 0 offen offset:{512*tt} sc1" for tt in range(2)]
def fw_load(): return f"buffer_load_dwordx2 {vr(T1,2)}, v{T4}, {sr(S_FL)}, 0 offen sc1"
def handoff_issue():
    q = Prog()
    q(f"s_lshl_b32 s40, s{S_MT}, 2")
    q(f"s_add_u32 s40, s40, s{S_W}")
    q("s_lshl_b32 s40, s40, 10")
    q(f"s_add_u32 s40, s40, {STO}")
    q(f"v_and_b32 v{T3}, 31, v{V_LANE}")
    q(f"v_lshl_add_u32 v{T3}, v{T3}, 4, s40")
    q(f"s_lshl_b32 s40, s{S_J}, 8")
    q(f"v_min_u32 v{T4}, 17, v{V_LANE}")
    q(f"v_lshl_add_u32 v{T4}, v{T4}, 3, s40")
    q(fw_load())
    for l in st_loads(): q(l)
    return q
def fw_check():
    q = Prog(); check_tokens(q, "W", [fw_load()], [T1]); return q
def st_check():
    q = Prog()
    check_tokens(q, "S", st_loads(), [STG+2, STG+6])
    q(f"v_cmp_gt_u32 vcc, 32, v{V_LANE}")
    for tt in range(2):
        q(f"v_cvt_pk_bf16_f32 v{STG+4*tt}, -v{STG+4*tt}, -v{STG+4*tt}")
        q(f"v_mul_f32 v{RL+tt}, s{S_NL2E}, v{STG+4*tt+1}")
    for tt in range(2): q(f"v_cndmask_b32 v{MB+2*tt}, v{CSA+1}, v{STG+4*tt}, vcc")
    return q

def cs_write(reg, area, dist=False):
    q = Prog()
    a = V_CW
    if dist:
        q(f"s_mul_i32 s40, s{S_W}, {SCR_W - 128}")
        q(f"v_add_u32 v{V_Bq}, s40, v{V_CW}")
        a = V_Bq
    if OPTS.get("nofix"): q("s_nop 0")
    else: q.b("s_mov_b64 exec, 0xffff", f"ds_write_b64 v{a}, {vr(reg,2)} offset:{area}", "s_mov_b64 exec, -1", tag="csw")
    return q

def mean_fix(q, st, area, stride=128):
    if OPTS.get("nofix"):
        q("s_nop 0"); return
    t = EP
    for w in range(4): q(f"ds_read_b32 v{t+w}, v{V_CR} offset:{area + w*stride}")
    q(f"v_add_f32 v{t}, v{t}, v{t+1}")
    q(f"v_add_f32 v{t+2}, v{t+2}, v{t+3}")
    q(f"v_add_f32 v{t}, v{t}, v{t+2}")
    q(f"v_cvt_pk_bf16_f32 v{t+1}, v{t}, v{t}")
    q(f"v_lshlrev_b32 v{t+1}, 16, v{t+1}")
    q(f"v_sub_f32 v{t+1}, v{t}, v{t+1}")
    q(f"v_cvt_pk_bf16_f32 v{CSA}, v{t}, v{t+1}")
    for tt in range(2):
        q(f"{MF8} {vr(acc(st,tt),16)}, {vr(CSA,2)}, {vr(MB+2*tt,2)}, {vr(acc(st,tt),16)}")

def ffn_epi(st, c, q=None):
    q = q or Prog()
    u, xy = c // 2, c & 1
    for tt in range(2):
        a = acc(st, tt)
        for r in range(8): q(f"v_mul_f32 v{EP+r}, {'s55' if OPTS.get('sgp') else 'v%d' % (RL+tt)}, v{a+r}")
        for r in range(8): q(f"v_exp_f32 v{EP+r}, v{EP+r}")
        for r in range(8): q(f"v_mul_f32 v{a+r}, v{a+r}, v{a+8+r}")
        for r in range(8): q(f"v_add_f32 v{EP+r}, 1.0, v{EP+r}")
        for r in range(8): q(f"v_rcp_f32 v{EP+r}, v{EP+r}")
        q(f"s_add_u32 s{S_SO2}, s{S_CG+u}, {xy*512 + tt*294912}")
        for r in range(8): q(f"v_mul_f32 v{a+r}, v{a+r}, v{EP+r}")
        for r in range(4): q(f"v_cvt_pk_bf16_f32 v{a+8+r}, v{a+2*r}, v{a+2*r+1}")
        if OPTS.get("nost"): q("s_nop 0")
        else: q(f"buffer_store_dwordx4 {vr(a+8,4)}, v{V_H}, {sr(S_HF)}, s{S_SO2} offen {OPTS.get('hst', 'sc1')}", tag=f"h{c}")
    return q

def softmax2(q, src, outs, rl):
    m, n, t, c1, c2, t2 = SM, SM+1, SM+2, SM+3, SM+4, SM+5
    q(f"v_max3_f32 v{m}, v{src[0]}, v{src[1]}, v{src[2]}")
    q(f"v_max3_f32 v{n}, -v{src[0]}, -v{src[1]}, -v{src[2]}")
    q(f"v_max3_f32 v{c1}, v{src[3]}, v{src[4]}, v{src[5]}")
    q(f"v_max3_f32 v{c2}, -v{src[3]}, -v{src[4]}, -v{src[5]}")
    q(f"v_max3_f32 v{t}, v{src[6]}, v{src[7]}, v{src[8]}")
    q(f"v_max3_f32 v{t2}, -v{src[6]}, -v{src[7]}, -v{src[8]}")
    q(f"v_max3_f32 v{m}, v{m}, v{c1}, v{t}")
    q(f"v_max3_f32 v{n}, v{n}, v{c2}, v{t2}")
    q(f"v_permlane32_swap_b32 v{m}, v{n}")
    q(f"v_max_f32 v{m}, v{m}, v{n}")
    q(f"v_mul_f32 v{m}, v{rl}, v{m}")
    q(f"v_mov_b32 v{n}, v{m}")
    q(f"v_permlane32_swap_b32 v{m}, v{n}")
    for i in range(9): q(f"v_fma_f32 v{E+i}, v{src[i]}, v{rl}, v{n}")
    for i in range(9): q(f"v_fma_f32 v{src[i]}, -v{src[i]}, v{rl}, v{m}")
    for i in range(9): q(f"v_exp_f32 v{E+i}, v{E+i}")
    for i in range(9): q(f"v_exp_f32 v{src[i]}, v{src[i]}")
    q(f"v_add_f32 v{n}, v{E}, v{E+1}")
    q(f"v_add_f32 v{c2}, v{E+2}, v{E+3}")
    q(f"v_add_f32 v{m}, v{src[0]}, v{src[1]}")
    q(f"v_add_f32 v{c1}, v{src[2]}, v{src[3]}")
    for i in (4, 6):
        q(f"v_add_f32 v{n}, v{n}, v{E+i}")
        q(f"v_add_f32 v{c2}, v{c2}, v{E+i+1}")
        q(f"v_add_f32 v{m}, v{m}, v{src[i]}")
        q(f"v_add_f32 v{c1}, v{c1}, v{src[i+1]}")
    q(f"v_add_f32 v{n}, v{n}, v{E+8}")
    q(f"v_add_f32 v{m}, v{m}, v{src[8]}")
    q(f"v_add_f32 v{n}, v{n}, v{c2}")
    q(f"v_add_f32 v{m}, v{m}, v{c1}")
    q(f"v_permlane32_swap_b32 v{m}, v{n}")
    q(f"v_add_f32 v{m}, v{m}, v{n}")
    q(f"v_rcp_f32 v{m}, v{m}")
    q(f"v_mov_b32 v{n}, v{m}")
    q(f"v_permlane32_swap_b32 v{m}, v{n}")
    for i in range(9): q(f"v_mul_f32 v{src[i]}, v{src[i]}, v{m}")
    for i in range(9): q(f"v_mul_f32 v{E+i}, v{E+i}, v{n}")
    allv = list(src) + [E + i for i in range(9)]
    for i in range(9): q(f"v_cvt_pk_bf16_f32 v{outs[i]}, v{allv[2*i]}, v{allv[2*i+1]}")

def moves_a2(q):
    for tt in range(2): q(f"v_mul_f32 v{SM+tt}, 0x{np_f32(-1/L2E):08x}, v{RL+tt}")
    q(f"v_lshrrev_b32 v{SM+2}, 5, v{V_LANE}")
    q(f"v_cvt_f32_u32 v{SM+2}, v{SM+2}")
    for tt in range(2):
        a = acc(0, tt); m = MV + 8*tt
        q(f"v_mov_b32 v{m+6}, v{a}")
        q(f"v_mov_b32 v{m+7}, v{a+1}")
        for r in range(10):
            if r == 8: q(f"v_fma_f32 v{a+10}, v{a+10}, v{SM+tt}, v{SM+2}")
            else: q(f"v_mul_f32 v{a+2+r}, v{a+2+r}, v{SM+tt}")
        for r in range(5): q(f"v_cvt_pk_bf16_f32 v{m+r}, v{a+2+2*r}, v{a+3+2*r}")

PA = KA + 24
def k_part(q):
    KF = E
    for tt in range(2):
        a = acc(4, tt); m = MV + 8*tt
        src = [a+9+i for i in range(7)] + [m+6, m+7]
        outs = [a+10, a+11, a+12, a+13, a+14, a+15, E, E+1, m+5]
        softmax2(q, src, outs, RL+tt)
        for off, r in ((0, a+10), (16, a+12), (32, a+14), (48, E), (64, m), (80, m+2), (96, m+4)):
            q(f"ds_write_b64 v{V_SW}, {vr(r,2)} offset:{off}")
        for f, cb in enumerate((0, 16, 32, 48)):
            for sec in range(2):
                q(f"ds_read_b64_tr_b16 {vr(KF+4*f+2*sec,2)}, v{V_SR} offset:{sec*4*SROW + cb*2}")
        part_addr(q, tt)
        for rt, fa in enumerate((0, 1, 3)):
            for ct, fb in enumerate((2, 3)):
                d = KA + 4*(2*rt + ct)
                q(f"{MF16} {vr(d,4)}, {vr(KF+4*fa,4)}, {vr(KF+4*fb,4)}, {vr(d,4) if tt else '0'}")
    A1, A2, A4, A5 = PA, PA+1, PA+2, PA+3
    q(f"ds_write_b128 v{A1}, {vr(KA,4)}")
    q(f"ds_write_b128 v{A1}, {vr(KA+8,4)} offset:1024")
    q.b("s_mov_b32 exec_lo, 0xff00ff", "s_mov_b32 exec_hi, 0xff00ff", f"ds_write_b128 v{A2}, {vr(KA+4,4)} offset:2048",
        f"ds_write_b128 v{A2}, {vr(KA+12,4)} offset:2560", "s_mov_b32 exec_hi, 0", f"ds_write_b64 v{A5}, {vr(KA+22,2)} offset:3328",
        "s_mov_b32 exec_lo, -1", f"ds_write_b64 v{A4}, {vr(KA+18,2)} offset:3072", "s_mov_b32 exec_hi, -1")

def part_addr(q, half):
    L = V_LANE; A1, A2, A4, A5 = PA, PA+1, PA+2, PA+3
    if half == 0:
        q(f"s_mul_i32 s40, s{S_W}, {SCR_W}")
        q(f"s_add_u32 s40, s40, {SCR}")
        q(f"v_lshl_add_u32 v{A1}, v{L}, 4, s40")
        q(f"v_lshrrev_b32 v{V_A}, 4, v{L}")
        q(f"v_and_b32 v{V_Bq}, 15, v{L}")
        q(f"v_lshl_add_u32 v{V_A}, v{V_A}, 3, v{V_Bq}")
        q(f"v_lshl_add_u32 v{A2}, v{V_A}, 4, s40")
        q(f"v_lshl_add_u32 v{A4}, v{L}, 3, s40")
        q(f"v_lshl_add_u32 v{A5}, v{V_A}, 3, s40")

def kv_reduce():
    q = Prog()
    L = V_LANE; A1, A2, G1_, G2_ = T1, T2, T3, T4
    T = MV
    q(f"s_and_b32 s40, s{S_W}, 1")
    q(f"s_lshr_b32 s41, s{S_W}, 1")
    q.b("s_cmp_eq_u32 s41, 0", "s_cselect_b64 vcc, -1, 0")
    q(f"v_cndmask_b32 v{A1}, v{V_A}, v{L}, vcc")
    q("s_lshl_b32 s42, s40, 10")
    q("s_lshl_b32 s43, s40, 9")
    q("s_add_u32 s43, s43, 2048")
    q.b("s_cmp_eq_u32 s41, 0", "s_cselect_b32 s42, s42, s43")
    q(f"s_add_u32 s42, s42, {SCR}")
    q(f"v_lshl_add_u32 v{A1}, v{A1}, 4, s42")
    for w in range(4): q(f"ds_read_b128 {vr(T+4*w,4)}, v{A1} offset:{w*SCR_W}")
    q.b("s_cmp_eq_u32 s40, 0", "s_cselect_b64 vcc, -1, 0")
    q(f"v_cndmask_b32 v{A2}, v{V_A}, v{L}, vcc")
    q("s_lshl_b32 s42, s40, 8")
    q(f"s_add_u32 s42, s42, {SCR+3072}")
    q(f"v_lshl_add_u32 v{A2}, v{A2}, 3, s42")
    U = (RA+12, RA+14, RA+28, RA+30)
    for w in range(4): q(f"ds_read_b64 {vr(U[w],2)}, v{A2} offset:{w*SCR_W}")
    q(f"v_lshrrev_b32 v{G1_}, 5, v{L}")
    q(f"v_lshlrev_b32 v{G1_}, 10, v{G1_}")
    q(f"v_bfe_u32 v{G2_}, v{L}, 4, 1")
    q(f"v_lshlrev_b32 v{G2_}, 7, v{G2_}")
    q(f"v_lshl_add_u32 v{G2_}, v{V_Bq}, 2, v{G2_}")
    q("s_lshl_b32 s42, s40, 11")
    q("s_lshl_b32 s43, s41, 6")
    q("s_add_u32 s42, s42, s43")
    q(f"v_add3_u32 v{G1_}, v{G1_}, v{G2_}, s42")
    q("s_lshl_b32 s43, s41, 3")
    q("s_sub_u32 s43, 16, s43")
    q(f"v_cmp_gt_u32 vcc, s43, v{V_Bq}")
    q(f"v_mov_b32 v{A1}, {OOB}")
    q(f"v_cndmask_b32 v{G1_}, v{A1}, v{G1_}, vcc")
    q("s_lshl_b32 s42, s40, 6")
    q("s_add_u32 s42, s42, 4096")
    q(f"v_add_u32 v{G2_}, s42, v{G2_}")
    q("s_lshl_b32 s43, s40, 3")
    q("s_sub_u32 s43, 16, s43")
    q.b("s_cmp_eq_u32 s41, 0", "s_cselect_b32 s43, s43, 0")
    q(f"v_cmp_gt_u32 vcc, s43, v{V_Bq}")
    q(f"v_cmp_gt_u32 s[42:43], 32, v{L}")
    q("s_and_b64 vcc, vcc, s[42:43]")
    q(f"v_cndmask_b32 v{G2_}, v{A1}, v{G2_}, vcc")
    for i in range(4):
        q(f"v_add_f32 v{T+i}, v{T+i}, v{T+4+i}")
        q(f"v_add_f32 v{T+8+i}, v{T+8+i}, v{T+12+i}")
    for i in range(2):
        q(f"v_add_f32 v{U[0]+i}, v{U[0]+i}, v{U[1]+i}")
        q(f"v_add_f32 v{U[2]+i}, v{U[2]+i}, v{U[3]+i}")
    for i in range(4): q(f"v_add_f32 v{T+i}, v{T+i}, v{T+8+i}")
    for i in range(2): q(f"v_add_f32 v{U[0]+i}, v{U[0]+i}, v{U[2]+i}")
    for i in range(4):
        q(f"buffer_atomic_add_f32 v{T+i}, v{G1_}, {sr(S_KV)}, s{S_KVB} offen offset:{i*256}", tag="atom")
    for i in range(2):
        q(f"buffer_atomic_add_f32 v{U[0]+i}, v{G2_}, {sr(S_KV)}, s{S_KVB} offen offset:{i*256}", tag="atom")
    return q

def fk_publish():
    q = Prog()
    q(f"s_lshl_b32 s40, s{S_J}, 5")
    q(f"s_add_u32 s40, s40, s{S_BT}")
    q("s_lshl_b32 s40, s40, 3")
    q(f"s_add_u32 s40, s40, {FL_K}")
    q.wait(vm=["atom"])
    flag_store(q, 40, T1)
    q(f"s_lshl_b32 s40, s{S_J}, 8")
    q(f"s_add_u32 s40, s40, {FL_K}")
    q(f"v_and_b32 v{T3}, 31, v{V_LANE}")
    q(f"v_lshl_add_u32 v{T3}, v{T3}, 3, s40")
    q(f"v_lshlrev_b32 v{T4}, 2, v{V_LANE}")
    return q
def fk_load(): return f"buffer_load_dwordx2 {vr(T1,2)}, v{T3}, {sr(S_FL)}, 0 offen sc1"
KVL = MV; KVF = 100
def fk_check_and_load():
    q = Prog()
    check_tokens(q, "K", [fk_load()], [T1])
    q(f"s_add_u32 s40, s{S_KVB}, 4096")
    for s in range(18):
        so = f"s{S_KVB}" if s < 16 else "s40"
        q(f"buffer_load_dword v{KVL+s}, v{T4}, {sr(S_KV)}, {so} offen offset:{(s&15)*256} sc1")
    return q

def q_part():
    q = Prog()
    for tt in range(2):
        a = acc(4, tt)
        softmax2(q, [a+i for i in range(9)], [a+i for i in range(9)], RL+tt)
        for r in (9, 10, 11): q(f"v_mov_b32 v{a+r}, 0")
    return q

def o_finish():
    q = Prog()
    for i in range(9): q(f"v_cvt_pk_bf16_f32 v{KVF+i}, v{KVL+2*i}, v{KVL+2*i+1}")
    for r in (9, 10, 11): q(f"v_mov_b32 v{KVF+r}, 0")
    D_ = (acc(0, 0), acc(0, 1))
    L = V_LANE
    q(f"v_bfe_u32 v{T1}, v{L}, 4, 1")
    q(f"v_lshlrev_b32 v{T1}, 14, v{T1}")
    q(f"v_and_b32 v{T2}, 15, v{L}")
    q(f"v_lshl_add_u32 v{T1}, v{T2}, 4, v{T1}")
    q(f"v_lshrrev_b32 v{T2}, 5, v{L}")
    q(f"v_lshl_add_u32 v{T1}, v{T2}, 8, v{T1}")
    q(f"v_mul_u32_u24 v{T2}, 0x7ff000, v{T2}")
    q(f"v_lshlrev_b32 v{T2}, 8, v{T2}")
    q(f"v_lshl_add_u32 v{T2}, v{L}, 7, v{T2}")
    q(f"s_lshl_b32 s40, s{S_MT}, 3")
    q(f"s_lshl_b32 s41, s{S_W}, 1")
    q("s_add_u32 s40, s40, s41")
    q("s_lshl_b32 s42, s40, 12")
    q(f"s_lshl_b32 s41, s{S_J}, 2")
    q("s_add_u32 s42, s42, s41")
    q(f"s_add_u32 s42, s42, {OM_SZ}")
    q("s_lshl_b32 s40, s40, 15")
    q(f"s_lshl_b32 s41, s{S_J}, 9")
    q("s_add_u32 s40, s40, s41")
    q("s_add_u32 s41, s40, 32768")
    q("s_add_u32 s43, s42, 4096")
    for f in range(3):
        for tt in range(2):
            q(f"{MF} {vr(D_[tt],16)}, {vr(KVF+4*f,4)}, {vr(acc(4,tt)+4*f,4)}, {vr(D_[tt],16) if f else '0'}")
    for tt in range(2):
        d = D_[tt]
        q(f"v_mov_b32 v{d+12}, v{d+8}")
        q(f"v_mov_b32 v{d+13}, v{d+8}")
    for tt in range(2): q(f"v_permlane32_swap_b32 v{D_[tt]+12}, v{D_[tt]+13}")
    for tt in range(2):
        d = D_[tt]
        q(f"v_add_f32 v{d+13}, 0x{np_f32(1e-6):08x}, v{d+13}")
        q(f"v_rcp_f32 v{d+13}, v{d+13}")
    for tt in range(2):
        d = D_[tt]
        for r in range(10): q(f"v_mul_f32 v{d+r}, v{d+r}, v{d+13}")
        for r in range(5): q(f"v_cvt_pk_bf16_f32 v{d+r}, v{d+2*r}, v{d+2*r+1}")
        q(f"buffer_store_dwordx4 {vr(d,4)}, v{T1}, {sr(S_OF)}, s{40+tt} offen sc1")
        q(f"buffer_store_dword v{d+4}, v{T2}, {sr(S_OF)}, s{42+tt} offen sc1")
    return q

def wd_prefetch(half):
    q = Prog()
    if half:
        q(f"v_add_u32 v{V_B0}, 4096, v{V_B0}")
        q(f"buffer_load_dword v{T2}, v{V_B0}, {sr(S_X)}, s{S_WFB} offen")
        return q
    q("s_lshl_b32 s40, s2, 2")
    q(f"s_add_u32 s40, s40, s{S_W}")
    q.b("s_cmp_lt_u32 s40, 648", f"s_cselect_b32 s{S_X}, s{P_WD}, s{P_WO}", f"s_cselect_b32 s{S_X+1}, s{P_WD+1}, s{P_WO+1}",
        f"s_cselect_b32 s41, 0, 648")
    q.b("s_cmp_lt_u32 s40, 648", f"s_mov_b32 s42, {WOIN_SZ}", f"s_cselect_b32 s{S_X+2}, {WG_SZ}, s42")
    q("s_sub_u32 s40, s40, s41")
    q(f"s_lshl_b32 s{S_WFB}, s40, 13")
    q(f"v_and_b32 v{V_B0}, 31, v{V_LANE}")
    q(f"v_lshlrev_b32 v{V_B0}, 7, v{V_B0}")
    q(f"buffer_load_dword v{T1}, v{V_B0}, {sr(S_X)}, s{S_WFB} offen")
    return q

def wg_flag(arr, tmp):
    q = Prog()
    q(f"s_add_u32 s40, s{S_FI}, s{S_W0}")
    q(f"s_add_u32 s40, s40, {arr}")
    flag_store(q, 40, tmp)
    return q

BFA = V_A
def b_decode():
    q = Prog()
    q("s_and_b32 s40, s2, 7")
    q("s_lshr_b32 s41, s2, 3")
    q("s_mul_i32 s42, s40, 29")
    q("s_min_u32 s43, s40, 2")
    q("s_add_u32 s42, s42, s43")
    q(f"s_add_u32 s{S_BT}, s42, s41")
    q.b("s_cmp_lt_u32 s40, 2", "s_cselect_b32 s43, 30, 29")
    q.b("s_cmp_lt_u32 s41, s43", f"s_cselect_b32 s{S_BT}, s{S_BT}, 255")
    q(f"s_mul_i32 s40, s{S_BT}, 21846")
    q("s_lshr_b32 s40, s40, 16")
    q("s_mul_i32 s41, s40, 2521")
    q(f"s_lshr_b32 s{S_KT}, s41, 16")
    q(f"s_mul_i32 s41, s{S_KT}, 26")
    q("s_sub_u32 s40, s40, s41")
    q("s_mul_i32 s41, s40, 6554")
    q("s_lshr_b32 s41, s41, 16")
    q(f"s_sub_u32 s41, s{S_KT}, s41")
    q("s_mul_i32 s41, s41, 10")
    q("s_add_u32 s41, s41, s40")
    q("s_mul_i32 s41, s41, 3")
    q(f"s_mul_i32 s42, s{S_KT}, 26")
    q("s_add_u32 s42, s42, s40")
    q("s_mul_i32 s42, s42, 3")
    q(f"s_sub_u32 s42, s{S_BT}, s42")
    q("s_add_u32 s41, s41, s42")
    q(f"s_min_u32 s{S_RG}, s41, 89")
    q("s_mul_i32 s40, s40, 80")
    q("s_add_u32 s41, s40, 79")
    q("s_min_u32 s40, s40, 2047")
    q("s_min_u32 s41, s41, 2047")
    q("s_and_b32 s40, s40, 0xf00")
    q("s_and_b32 s41, s41, 0xf00")
    q("s_sub_u32 s41, s41, 256")
    q(f"v_mov_b32 v{BFA}, s40")
    q(f"v_mov_b32 v{V_Bq}, s41")
    q(f"v_cmp_gt_u32 vcc, 32, v{V_LANE}")
    q(f"v_cndmask_b32 v{BFA}, v{V_Bq}, v{BFA}, vcc")
    q(f"v_lshl_add_u32 v{BFA}, v{V_LANE}, 3, v{BFA}")
    q(f"v_add_u32 v{BFA}, {FL_1}, v{BFA}")
    q(f"buffer_load_dwordx2 {vr(T1,2)}, v{BFA}, {sr(S_FL)}, 0 offen sc1")
    q.b("s_getpc_b64 s[42:43]", "LB_pc:")
    q(f"s_mul_i32 s40, s{S_RG}, 48")
    q.l.append(Sized("s_add_u32 s40, s40, LK_tab-LB_pc", 8))
    q(f"v_min_u32 v{V_Bq}, 47, v{V_LANE}")
    q(f"v_add_u32 v{V_Bq}, s40, v{V_Bq}")
    q(f"global_load_ubyte v{V_Bq}, v{V_Bq}, s[42:43]")
    return q

def stage_a(p):
    frags = []
    def tr(p_, off): return [("ds_read_b64_tr_b16", 0, 2, TR + p_, off), ("ds_read_b64_tr_b16", 2, 2, TR + p_, off + 256)]
    for g in range(9):
        for p_ in range(4):
            for c in range(4):
                upd = []
                if g and c == 0: upd = [f"v_add_u32 v{TR+p_}, {SLOT if g % 3 else (-2*SLOT) & 0xffffffff}, v{TR+p_}"]
                frags.append((tr(p_, (c >> 1)*512 + (c & 1)*32), c, 4*g + p_, CS4 + 4*c if p_ == 0 else None, upd))
    chains = ["A1", "A2", 4, 5, 6, 7, 8]
    cset = {"A1": 4, "A2": 0, 4: 2, 5: 3, 6: 0, 7: 2, 8: 3}
    cs = {}
    for k, c in enumerate(chains):
        cs[c] = len(frags)
        for s in range(36):
            g, p_ = s >> 2, s & 3
            upd = []
            if c in ("A1", "A2"):
                if s < 4: upd = [f"s_add_u32 s{S_SPIN}, s{S_WX+p_}, {0 if c == 'A1' else BUP}", f"v_add_u32 v{TR+p_}, s{S_SPIN}, v{V_B0}"]
                rd = [("ds_read_b128", 0, 4, TR + p_, g*4096)]
            else:
                if s < 4 and not (c & 1): upd = [f"s_add_u32 s{S_SPIN}, s{S_WX+p_}, {BUF[(c//2 + 1) & 1]}", f"v_add_u32 v{TR+p_}, s{S_SPIN}, v{V_TRL}"]
                rd = tr(p_, g*4096 + (c & 1)*32)
            frags.append((rd, cset[c], s, CSACC + 4*(k & 1) if p_ == 0 else None, upd))
    NF = len(frags)
    bars = {16*g: [f"W{g}"] for g in range(9)}
    bars[cs["A1"]] = ["T0"]
    bars[cs["A2"]] = ["T1"]
    bars[cs[4]] = ["U2"]
    bars[cs[6]] = ["U3"] + [f"h{c}" for c in range(4)]
    bars[cs[8]] = ["U4", "h4", "h5"]
    def reads(n):
        slot = RING + 4*(n & 3)
        return [I(t) for t in frags[n][4]] + [I(f"{op} {vr(slot+o,cnt)}, v{va} offset:{off}", tag=f"fr{n}") for (op, o, cnt, va, off) in frags[n][0]]
    def barrier(tags): return [WaitTag(vm=tags), I("s_waitcnt lgkmcnt(0)"), I("s_barrier")]
    p.add(x_copy(0))
    p.add(barrier(bars[0]))
    p.add(stamp(1))
    p.add(st5(7))
    for n in range(4): p.add(reads(n))
    main = []; G = {}
    for n in range(NF):
        _, st, s, csa, _ = frags[n]
        G[n] = len(main)
        slot = RING + 4*(n & 3)
        mf = [I(f"{MF} {vr(acc(st,tt),16)}, {vr(slot,4)}, {xreg(tt,s)}, {vr(acc(st,tt),16) if s else '0'}") for tt in range(2)]
        f0 = barrier(bars[n + 3]) + reads(n + 3) if (n + 3 < NF and (n + 3) in bars and n + 3 >= 4) else []
        f1 = []
        if n + 1 < NF: f1.append(WaitTag(lg=[f"fr{n+1}"]))
        if n + 4 < NF and (n + 4) not in bars: f1 += reads(n + 4)
        if csa is not None and not OPTS.get("nocs"):
            main.append((I(f"{MF16} {vr(csa,4)}, {vr(SEL,4)}, {vr(slot,4)}, {vr(csa,4) if s else '0'}"), []))
        main.append((mf[0], f0)); main.append((mf[1], f1))
    G[NF] = len(main)
    C = {c: G[cs[c]] for c in cs}; C[9] = G[NF]
    def bar_gap(n): return G[n - 3] + (1 if (frags[n-3][3] is not None and not OPTS.get("nocs")) else 0)
    S = []
    def add(a, b, q, after=None, paced=False):
        S.append((a, b, q, after, paced)); return len(S) - 1
    for g in range(9):
        a, b = G[16*g], bar_gap(16*(g+1))
        q = Prog()
        if g == 0 and not OPTS.get("g1pre", 1): q.add(ring_group(1))
        if g + 2 < 9: q.add(ring_group(g + 2)); add(a, b + 5 - OPTS.get("rend", 0), q, None, OPTS.get("rpace", 1) == 1)
        if g + 1 < 9: add(b - 10, b, x_copy(g + 1))
    add(OPTS.get("f0", 12), G[42], fold_stream())
    add(G[20], G[21], token_issue())
    add(G[42], bar_gap(48), token_share())
    add(G[48], G[53], token_and_stats())
    add(G[72], G[75], fold_flag())
    add(G[16*6] + 8, G[16*6] + 16, handoff_issue())
    k = add(G[16*7], G[16*7] + 2, fw_check())
    add(G[16*7] + 2, bar_gap(16*8) - 10, dma_wf(0), None, True)
    add(G[16*8] + 14, G[16*8] + 22, st_check())
    q = Prog()
    for c in range(4): q.add(cs_write(CS4 + 4*c, 512*c))
    add(G[16*8 + 5], bar_gap(cs["A1"]), q)
    add(G[16*8], G[16*8] + 26, dma_wf(1), None, True)
    q = Prog()
    for g in range(9): q.add(dma_unit_group(2, g))
    add(C["A1"] - 4, C["A2"] + OPTS.get("dend", 10), q, None, True)
    for u, c in ((3, 4), (4, 6)):
        q = Prog()
        for g in range(9): q.add(dma_unit_group(u, g))
        add(C[c] - 4, C[c+1] + OPTS.get("dend", 10), q, None, True)
    area = {"A1": 2048, "A2": CSX, 4: CSX + 512, 5: CSX + 1024, 6: CSX, 7: CSX + 512, 8: CSX + 1024}
    nxt = {"A1": "A2", "A2": 4, 4: 5, 5: 6, 6: 7, 7: 8}
    MB_ = 12
    for k_, c in enumerate(chains[:-1]):
        add(C[nxt[c]] - 3, C[nxt[c]] + 6, cs_write(CSACC + 4*(k_ & 1), area[c]))
        if c != 4:
            g = C[nxt[c]] + MB_ - 1
            main[g] = (main[g][0], [WaitTag(lg=["csw"]), I("s_barrier")] + main[g][1])
    prev = None
    q = Prog()
    mean_fix(q, 0, 0); mean_fix(q, 1, 512); ffn_epi(0, 0, q); mean_fix(q, 2, 1024)
    prev = add(C["A1"] - 3, C["A2"] - 30, q)
    q = Prog(); ffn_epi(1, 1, q); mean_fix(q, 3, 1536)
    prev = add(C["A1"], C["A2"] + 5, q, prev)
    prev = add(C["A2"], C[4] - 40, ffn_epi(2, 2), prev)
    q = Prog(); mean_fix(q, 4, area["A1"]); ffn_epi(3, 3, q)
    prev = add(C["A2"] + MB_, C[4] + 6, q, prev)
    q = Prog(); mean_fix(q, 0, area["A2"])
    fixa2 = prev = add(C[4] + MB_, C[4] + MB_ + 10, q, prev)
    for c, st, a, dl in ((4, 2, C[6], C[7] - 1), (5, 3, C[6] + MB_, bar_gap(cs[8]) - 30), (6, 0, C[7] + MB_, C[8] + 10), (7, 2, C[8] + MB_, C[9])):
        q = Prog(); mean_fix(q, st, area[c]); ffn_epi(st, c, q)
        prev = add(a, dl, q, prev)
    q = Prog(); moves_a2(q); k_part(q)
    kp = add(C[4] + MB_, C[5] + 50, q, fixa2)
    add(C["A2"] + 10, C["A2"] + 20, wd_prefetch(0))
    add(C[5] + 12, C[5] + 14, wd_prefetch(1))
    red = add(C[6] - 2, C[6] + 30, kv_reduce())
    add(C[6] + 30, C[6] + 34, wg_flag(FL_1, T1))
    add(C[5], C[7] + 30, q_part(), kp)
    add(C[8] - 2, C[8] + 2, wg_flag(FL_M, V_A))
    add(C[6] + 62, C[7], fk_publish())
    q = Prog(); q(fk_load()); add(C[7] + 40, C[7] + 42, q)
    add(C[8] + 2, C[8] + 40, fk_check_and_load(), None, True)
    add(C[8] + 40, C[9] - 18, o_finish())
    add(C[9] - 18, C[9] - 4, b_decode())
    if OPTS.get("time") == 2:
        for i, g in enumerate([C["A1"], C["A2"], C[4], C[5], C[6], C[7], C[8]]):
            main[g-1] = (main[g-1][0], main[g-1][1] + [I(f"s_memtime {sr(STAMPS[i+1],2)}")])
        p(f"s_memtime {sr(STAMPS[0],2)}")
    if OPTS.get("time") == 4:
        for i in range(1, 8):
            g = G[16*(i + 1)] if i > 1 else G[16]
            main[g-1] = (main[g-1][0], main[g-1][1] + [I(f"s_memtime {sr(STAMPS[i],2)}")])
        p(f"s_memtime {sr(STAMPS[0],2)}")
    import asmgen
    asmgen.BYTES32 = OPTS.get("b32", 48); asmgen.CARRY = OPTS.get("carry", 8); asmgen.VMEM_COST = OPTS.get("vmc", 2); asmgen.CAP16 = OPTS.get("cap16", 2); asmgen.LAT_DS = OPTS.get("lat", 4)
    woven, loads = weave(main, S, OPTS.get('cap', 6))
    if OPTS.get("verbose"):
        print("done at", weave.done_at, C, file=sys.stderr)
        pts = [0, 72, 144, 216] + [C[c] for c in chains] + [C[9]]
        for a, b in zip(pts[:-1], pts[1:]):
            print("gaps", a, b, "slack", -sum(loads[a:b]), "over", sum(max(0, x) for x in loads[a:b]), file=sys.stderr)
    p.add(woven)
    AREA8[0] = area[8]
    a_tail_and_b(p, area[8])
BSLOT = 36864; BWD = 12288
SWO = 20480
B_WD, B_WO, B_X, B_OUT, B_PX = 4, 8, 12, 16, 24
B_M, B_N3, B_HB, B_WDB, B_HO, B_WDO, B_MH, B_IT, B_IH, B_IW, B_MW = 37, 38, 45, 46, 47, 48, 49, 50, 51, 52, 53
BV_H, BV_D, BV_TR, BV_HR, BV_T, BV_O, BV_FD, BT0, BT1, BV_RS, BV_XO = 16, 19, 25, 28, 29, 30, 32, 34, 35, 36, 9
BV_TAB, BV_FA = V_Bq, V_A
ACC1, WFR, ACC2, XR, PIN = 48, 108, 160, 240, 180
SD, SXO, SRS = 4, 9, 14
Q_MH, Q_HO, Q_MW, Q_WDO, Q_RO, Q_RM, Q_RW, Q_PX = 66, 67, 68, 69, 3, 39, 44, 56
def hfr(st, tt, k): return ar(40*st + 8*tt + 4*k, 4)
def wfr(st, i, k): return WFR + 24*st + 8*i + 4*k
def ofr(st, tt, k): return ar(80 + 80*st + 16*tt + 4*k, 4)
def acc1(i, tt): return ACC1 + 20*i + 4*tt

def b_issue(p, slot, tag):
    p(f"v_readlane_b32 s40, v{BV_TAB}, s{B_IH}")
    p(f"v_readlane_b32 s41, v{BV_TAB}, s{B_IW}")
    p(f"s_add_u32 m0, s{B_MH}, {slot*BSLOT}")
    p(f"s_lshl_b32 s40, s40, 10")
    p(f"s_add_u32 s{B_HO}, s{B_HB}, s40")
    p(f"s_mul_i32 s{B_WDO}, s41, {32*1152}")
    for i in range(3):
        p(f"buffer_load_dwordx4 v{BV_H+i}, {sr(S_HF)}, s{B_HO} offen sc1 lds", tag=tag)
        p("s_addk_i32 m0, 4096" if i < 2 else f"s_add_u32 m0, s{B_MW}, {slot*BSLOT}")
    p(f"s_add_u32 s{B_IH}, s{B_IH}, 2")
    for i in range(6):
        p(f"buffer_load_dwordx4 v{BV_D+i}, {sr(B_WD)}, s{B_WDO} offen lds", tag=tag)
        if i < 5: p(f"s_addk_i32 m0, {3072 if i & 1 else 1024}")
    p(f"s_add_u32 s{B_IW}, s{B_IW}, 2")

def step(slot): return BSLOT if slot != 3 else (-3*BSLOT) & 0xffffffff
def b_reads(p, slot, st):
    for i in range(3):
        for k in range(2):
            for sec in range(2):
                p(f"ds_read_b64_tr_b16 {vr(wfr(st,i,k)+2*sec,2)}, v{BV_TR+i} offset:{k*BWD + sec*1024}")
        for tt in ((0, 1), (2, 3), (4,))[i]:
            for k in range(2): p(f"ds_read_b128 {hfr(st,tt,k)}, v{BV_HR} offset:{(2*tt+k)*1024}")
    for r in (BV_TR, BV_TR+1, BV_TR+2, BV_HR): p(f"v_add_u32 v{r}, {step(slot)}, v{r}")
def b_mfma(st):
    return [I(f"{MF16} {vr(acc1(i,tt),4)}, {vr(wfr(st,i,k),4)}, {hfr(st,tt,k)}, {vr(acc1(i,tt),4)}")
            for i in range(3) for tt in range(5) for k in range(2)]

def s_issue(p, i):
    b = (i % 4) * BSLOT
    if i < 4:
        p(f"s_add_u32 m0, s{Q_MH}, {b}")
        p(f"s_add_u32 s40, s{Q_HO}, {i*4096}")
        for tt in range(5):
            p(f"buffer_load_dwordx4 v{BV_O}, {sr(S_OF)}, s40 offen sc1 lds", tag=f"S{i}")
            p("s_addk_i32 m0, 4096" if tt < 4 else f"s_add_u32 m0, s{Q_MW}, {b}")
            p("s_addk_i32 s40, 16384" if tt < 4 else f"s_add_u32 s40, s{Q_WDO}, {i*144*1152}")
        for i4 in range(4):
            p(f"buffer_load_dwordx4 v{SD}, {sr(B_WO)}, s40 offen lds", tag=f"S{i}")
            if i4 < 3:
                p("s_addk_i32 m0, 1024")
                p(f"s_addk_i32 s40, {(14 if i4 & 1 else 4)*1152}")
    else:
        p(f"s_add_u32 m0, s{Q_MH}, {b}")
        for k in range(3):
            p(f"s_add_u32 s40, s{Q_RO}, {k*4096}")
            p(f"buffer_load_dwordx4 v{SD+2}, {sr(S_OF)}, s40 offen sc1 lds", tag=f"S{i}")
            if k < 2: p("s_addk_i32 m0, 4096")
        for blk in range(2):
            p(f"s_add_u32 m0, s{Q_RM}, {b + blk*1024}")
            p(f"s_add_u32 s40, s{Q_RW}, {blk*36*1152}")
            p(f"buffer_load_dwordx4 v{SD+1}, {sr(B_WO)}, s40 offen lds", tag=f"S{i}")
def s_reads(p, i):
    nk = 4 if i < 4 else 2
    for k in range(nk):
        for sec in range(2):
            p(f"ds_read_b64_tr_b16 {vr(WFR+24*(i&1)+4*k+2*sec,2)}, v{BV_T} offset:{SWO + k*4096 + sec*1024}")
        for tt in range(5):
            if i < 4: p(f"ds_read_b128 {ofr(i&1,tt,k)}, v{BV_HR} offset:{tt*4096 + k*1024}")
            else: p(f"ds_read_b128 {ofr(i&1,tt,k)}, v{SD+3+k} offset:{tt*2048}")
    for r in (BV_T, BV_HR): p(f"v_add_u32 v{r}, {step(i % 4)}, v{r}")
def s_mfma(i):
    nk = 4 if i < 4 else 2
    return [I(f"{MF16} {vr(ACC2+4*tt,4)}, {vr(WFR+24*(i&1)+4*k,4)}, {ofr(i&1,tt,k)}, {vr(ACC2+4*tt,4) if (i or k) else '0'}")
            for tt in range(5) for k in range(nk)]

def b_stage(mf, reads, other, rd_end=0.75, late=()):
    import asmgen
    asmgen.CAP16 = 2; asmgen.BYTES32 = 48; asmgen.CARRY = 12; asmgen.VMEM_COST = 1
    n = len(mf)
    sides = []
    if reads: sides.append((0, max(1, int(n*rd_end)), reads))
    prev = None
    for o in other:
        if o: sides.append((0, n, o, prev, True)); prev = None
    for (g0, l) in late: sides.append((g0, n, l))
    w, _ = weave([(m, []) for m in mf], sides)
    return w

PADN = []
def time_out(p):
    if not OPTS.get("time"): return
    p("s_waitcnt vmcnt(0)")
    p.add(stamp(8))
    if OPTS.get("pad"):
        lab = f"LPAD{len(PADN)}"; PADN.append(1)
        p(f"{lab}:")
        p("s_memrealtime s[46:47]")
        p("s_waitcnt lgkmcnt(0)")
        p(f"s_sub_u32 s46, s46, s{S_TOK if OPTS.get('padtok') else STAMPS[0]}")
        if OPTS.get("padone"):
            p(f"s_cmp_eq_u32 s2, {OPTS['padone']}")
            p(f"s_cselect_b32 s46, s46, -1")
        p(f"s_cmp_lt_u32 s46, {OPTS['pad']}")
        p(f"s_cbranch_scc1 {lab}")
        return
    if OPTS.get("dbg"):
        p("s_load_dwordx2 s[46:47], s[0:1], 72")
        p("s_waitcnt lgkmcnt(0)")
        srd(p, 40, 46, 0, 256)
        p("s_and_b32 s44, s2, 63")
        p(f"s_or_b32 s44, s44, s{S_W}")
        p(f"s_cmp_eq_u32 s44, 0")
        p(f"s_cselect_b32 s44, 0, {OOB}")
        p("s_lshr_b32 s45, s2, 6")
        p("s_mul_i32 s45, s45, 12")
        p("s_add_u32 s44, s44, s45")
        p("s_add_u32 s44, s44, 16")
        for k, i in enumerate((1, 2, 8)):
            p(f"s_sub_u32 s45, s{STAMPS[i]}, s{STAMPS[0]}")
            p(f"v_mov_b32 v{28+k}, s45")
        p(f"buffer_store_dwordx3 v[28:30], v{V_FL}, s[40:43], s44 offen")
        return
    srd(p, 40, P_WS, WS_USED, 131072)
    p("s_waitcnt lgkmcnt(0)")
    for i in range(9): p(f"v_mov_b32 v{28+i}, s{STAMPS[i]}")
    p("s_lshl_b32 s44, s2, 2")
    p(f"s_add_u32 s44, s44, s{S_W}")
    p("s_lshl_b32 s44, s44, 6")
    p("v_mov_b32 v26, s44")
    p("buffer_store_dwordx4 v[28:31], v26, s[40:43], 0 offen")
    p("buffer_store_dwordx4 v[32:35], v26, s[40:43], 0 offen offset:16")
    p("buffer_store_dword v36, v26, s[40:43], 0 offen offset:32")

def zipweave(a, b):
    a = flat(a); b = flat(b)
    out = []; ia = ib = 0
    while ia < len(a) or ib < len(b):
        if ib >= len(b) or (ia < len(a) and ia * len(b) <= ib * len(a)):
            out.append(a[ia]); ia += 1
        else:
            out.append(b[ib]); ib += 1
    return out

def s_setup(c):
    L = V_LANE; a, b = 40, 41
    c(f"s_lshl_b32 s{Q_MH}, s{S_W}, 10")
    c(f"s_mul_i32 s{Q_HO}, s{B_M}, {5*16384}")
    c(f"s_add_u32 s{Q_HO}, s{Q_HO}, s{Q_MH}")
    c(f"s_lshl_b32 s{Q_MW}, s{S_W}, 12")
    c(f"s_add_u32 s{Q_MW}, s{Q_MW}, {SWO}")
    c(f"s_lshl_b32 s42, s{S_KT}, 7")
    c(f"s_add_u32 s{B_WDB}, s{B_WDB}, s42")
    c(f"s_mul_i32 s{Q_WDO}, s{S_W}, {36*1152}")
    c(f"s_add_u32 s{Q_WDO}, s{Q_WDO}, s{B_WDB}")
    c(f"v_bfe_u32 v{a}, v{L}, 4, 2")
    c(f"v_lshlrev_b32 v{a}, 1, v{a}")
    c(f"v_and_b32 v{b}, 7, v{L}")
    c(f"v_xor_b32 v{a}, v{a}, v{b}")
    c(f"v_lshlrev_b32 v{a}, 4, v{a}")
    c(f"v_bfe_u32 v{b}, v{L}, 3, 2")
    c(f"v_lshrrev_b32 v{SD+1}, 5, v{L}")
    c(f"v_lshl_add_u32 v{b}, v{SD+1}, 3, v{b}")
    c(f"v_mul_u32_u24 v{b}, 1152, v{b}")
    c(f"v_add_u32 v{SD}, v{a}, v{b}")
    c(f"v_mul_u32_u24 v{SD+1}, 72, v{SD+1}")
    c(f"v_bfe_u32 v{b}, v{L}, 4, 1")
    c(f"v_mul_u32_u24 v{b}, 18, v{b}")
    c(f"v_add_u32 v{SD+1}, v{SD+1}, v{b}")
    c(f"v_bfe_u32 v{b}, v{L}, 3, 1")
    c(f"v_add_u32 v{SD+1}, v{SD+1}, v{b}")
    c(f"v_mul_u32_u24 v{SD+1}, 1152, v{SD+1}")
    c(f"v_add_u32 v{SD+1}, v{SD+1}, v{a}")
    c(f"s_and_b32 s42, s{S_W}, 1")
    c("s_lshl_b32 s42, s42, 2")
    c(f"v_lshrrev_b32 v{a}, 4, v{L}")
    c(f"v_add_u32 v{a}, s42, v{a}")
    c(f"v_and_b32 v{b}, 7, v{L}")
    c(f"v_xor_b32 v{a}, v{a}, v{b}")
    c(f"v_and_b32 v{b}, 56, v{L}")
    c(f"v_lshlrev_b32 v{b}, 4, v{b}")
    c(f"v_lshl_add_u32 v{SD+2}, v{a}, 4, v{b}")
    c(f"v_bfe_u32 v{a}, v{L}, 1, 3")
    c(f"v_lshrrev_b32 v{b}, 4, v{L}")
    c(f"v_xor_b32 v{a}, v{a}, v{b}")
    c(f"v_and_b32 v{b}, 15, v{L}")
    c(f"v_lshlrev_b32 v{SD+3}, 7, v{b}")
    c(f"v_lshl_add_u32 v{SD+3}, v{a}, 4, v{SD+3}")
    c(f"v_xor_b32 v{SD+4}, 64, v{SD+3}")
    c(f"s_mul_i32 s42, s{B_M}, 80")
    c(f"v_add_u32 v{a}, s42, v{b}")
    c(f"v_lshlrev_b32 v{a}, 4, v{a}")
    c(f"v_add_u32 v{SRS}, {STO+4}, v{a}")
    c(f"s_lshl_b32 s43, s{S_W}, 3")
    c("s_add_u32 s42, s42, s43")
    c(f"v_lshrrev_b32 v{a}, 3, v{L}")
    c(f"v_add_u32 v{a}, s42, v{a}")
    c(f"v_mul_u32_u24 v{a}, 1152, v{a}")
    c(f"v_and_b32 v{b}, 7, v{L}")
    c(f"v_lshl_add_u32 v{a}, v{b}, 4, v{a}")
    c(f"v_add_u32 v{BV_XO}, s{B_WDB}, v{a}")
    c(f"v_add_u32 v{BV_XO+1}, {32*1152}, v{BV_XO}")
    c(f"s_lshr_b32 s42, s{S_W}, 1")
    c(f"s_mul_i32 s42, s42, {OOB}")
    c(f"s_add_u32 s42, s42, {64*1152}")
    c(f"v_add_u32 v{BV_XO+2}, s42, v{BV_XO}")
    c(f"s_mul_i32 s{Q_PX}, s{B_M}, 3")
    c(f"s_add_u32 s{Q_PX}, s{Q_PX}, s{B_N3}")
    c(f"s_mul_i32 s{Q_PX}, s{Q_PX}, {3*40960}")
    c(f"s_mul_i32 s{Q_RO}, s{B_M}, {80*128}")
    c(f"s_add_u32 s{Q_RO}, s{Q_RO}, s{Q_MH}")
    c(f"s_add_u32 s{Q_RO}, s{Q_RO}, {OM_SZ}")
    c(f"s_lshl_b32 s{Q_RM}, s{S_W}, 11")
    c(f"s_add_u32 s{Q_RM}, s{Q_RM}, {SWO}")
    c(f"s_mul_i32 s{Q_RW}, s{S_W}, {144*1152}")
    c(f"s_add_u32 s{Q_RW}, s{Q_RW}, s{B_WDB}")
    c(f"s_add_u32 s{Q_RW}, s{Q_RW}, {16*1152}")
    for i in range(3):
        c(f"s_mul_i32 s42, s{S_W}, 3")
        c(f"s_add_u32 s42, s42, {i}")
        c("s_and_b32 s43, s42, 3")
        c("s_lshr_b32 s42, s42, 2")
        c("s_lshl_b32 s43, s43, 10")
        c(f"s_sub_u32 s57, s{S_KT}, s42")
        c("s_add_u32 s57, s57, 2")
        c("s_mul_i32 s63, s57, 43")
        c("s_lshr_b32 s63, s63, 7")
        c("s_mul_i32 s63, s63, 3")
        c("s_sub_u32 s57, s57, s63")
        c("s_lshr_b32 s63, s57, 1")
        c(f"s_mul_i32 s63, s63, {OOB}")
        c("s_mul_i32 s57, s57, 20480")
        c("s_mul_i32 s42, s42, 40960")
        c("s_add_u32 s57, s57, s42")
        c(f"s_add_u32 s57, s57, s{Q_PX}")
        c("s_add_u32 s57, s57, s43")
        c(f"s_add_u32 s{PXS[i]}, s57, s63")

PXS = (60, 62, 64)
def a_tail_and_b(p, area8):
    L = V_LANE
    p.add(cs_write(CSACC, area8))
    p(f"s_add_u32 s{S_WFB}, s{S_FI}, s{S_W0}")
    p(f"s_add_u32 s{S_WFB}, s{S_WFB}, {FL_2}")
    p(f"s_mul_i32 s43, s{S_BT}, 21846")
    p("s_lshr_b32 s43, s43, 16")
    p("s_mul_i32 s42, s43, 3")
    p(f"s_sub_u32 s{B_N3}, s{S_BT}, s42")
    p(f"s_mul_i32 s42, s{S_KT}, 26")
    p(f"s_sub_u32 s{B_M}, s43, s42")
    srd(p, B_WD, P_WD, 0, WG_SZ)
    a, b = BT0, BT1
    p(f"s_lshr_b32 s40, s{S_W}, 1")
    p(f"s_and_b32 s41, s{S_W}, 1")
    p("s_mul_i32 s42, s40, 147456")
    p(f"v_lshl_add_u32 v{BV_H}, v{L}, 4, s42")
    p(f"v_add_u32 v{BV_H+1}, {2*147456}, v{BV_H}")
    p("s_cmp_eq_u32 s40, 0")
    p(f"s_cselect_b32 s42, 0, {OOB}")
    p(f"s_add_u32 s42, s42, {4*147456}")
    p(f"v_add_u32 v{BV_H+2}, s42, v{BV_H}")
    p("s_lshl_b32 s42, s40, 11")
    p(f"s_lshl_b32 s{B_MH}, s41, 10")
    p(f"s_add_u32 s{B_MH}, s{B_MH}, s42")
    p(f"s_mov_b32 s{B_IH}, s41")
    p(f"s_mov_b32 s{B_IW}, s40")
    p(f"s_mul_i32 s{B_MW}, s40, {BWD}")
    p("s_lshl_b32 s42, s41, 11")
    p(f"s_add_u32 s{B_MW}, s{B_MW}, s42")
    p(f"s_add_u32 s{B_MW}, s{B_MW}, {BWD}")
    p(f"v_lshrrev_b32 v{a}, 3, v{L}")
    p(f"v_mul_u32_u24 v{a}, 1152, v{a}")
    p(f"v_bfe_u32 v{b}, v{L}, 4, 2")
    p(f"v_lshlrev_b32 v{b}, 1, v{b}")
    p(f"v_and_b32 v{BV_D}, 7, v{L}")
    p(f"v_xor_b32 v{b}, v{b}, v{BV_D}")
    p(f"v_lshl_add_u32 v{a}, v{b}, 4, v{a}")
    p(f"s_mul_i32 s41, s41, {16*1152}")
    p(f"s_mul_i32 s{B_WDB}, s{B_N3}, 384")
    p(f"s_add_u32 s41, s41, s{B_WDB}")
    p(f"v_add_u32 v{BV_D}, s41, v{a}")
    for i in range(3):
        for blk in range(2):
            if i or blk: p(f"v_add_u32 v{BV_D+2*i+blk}, {i*128 + blk*9216}, v{BV_D}")
    p(f"s_mul_i32 s{B_HB}, s{B_M}, {5*147456}")
    check_tokens(p, "F1", [f"buffer_load_dwordx2 {vr(T1,2)}, v{BV_FA}, {sr(S_FL)}, 0 offen sc1"], [T1])
    p(f"v_mov_b32 v{BV_TAB}, v{BV_TAB}")
    p("s_waitcnt lgkmcnt(0)")
    p("s_barrier")
    p.add(stamp(2))
    p(f"s_cmp_eq_u32 s{S_BT}, 255")
    p("s_cbranch_scc1 LB_spare")
    epi = Prog(); mean_fix(epi, 3, area8)
    k = len(epi.l)
    ffn_epi(3, 8, epi)
    iss = Prog()
    for s_ in range(3): b_issue(iss, s_, f"D{s_}")
    srd(epi, B_X, P_X, 0, X_SZ)
    s_setup(epi)
    for r in range(60): epi(f"v_mov_b32 v{ACC1+r}, 0")
    for k in range(15):
        epi(f"v_mov_b32 v{PIN+4*k+2}, s{S_TOK}")
        epi(f"v_mov_b32 v{PIN+4*k+3}, s{S_TOK+1}")
    p.add(zipweave(epi.l, iss.l))
    srd(p, B_WO, P_WO, 0, WOIN_SZ)
    srd(p, B_OUT, P_OUT, 0, X_SZ)
    srd(p, B_PX, P_WS, PX_OFF, PX_SZ)
    p(f"v_add_u32 v{BV_FA}, {FL_M - FL_1}, v{BV_FA}")
    p(f"v_lshlrev_b32 v{BV_HR}, 4, v{L}")
    p(f"v_lshrrev_b32 v{a}, 5, v{L}")
    p(f"v_lshlrev_b32 v{a}, 11, v{a}")
    p(f"v_bfe_u32 v{b}, v{L}, 2, 3")
    p(f"v_lshl_add_u32 v{a}, v{b}, 7, v{a}")
    p(f"v_and_b32 v{BV_T}, 3, v{L}")
    p(f"v_lshl_add_u32 v{BV_O}, v{BV_T}, 3, v{a}")
    p(f"v_lshrrev_b32 v{b}, 1, v{b}")
    for i in range(3):
        p(f"s_mul_i32 s40, s{S_W}, 3")
        p(f"s_add_u32 s40, s40, {i}")
        p("s_and_b32 s41, s40, 3")
        p("s_lshr_b32 s40, s40, 2")
        p("s_lshl_b32 s40, s40, 12")
        p(f"s_add_u32 s40, s40, {BWD}")
        p(f"v_xor_b32 v{a}, s41, v{b}")
        p(f"v_lshl_add_u32 v{a}, v{a}, 5, v{BV_O}")
        p(f"v_add_u32 v{BV_TR+i}, s40, v{a}")
    p(f"v_xor_b32 v{a}, s{S_W}, v{b}")
    p(f"v_lshl_add_u32 v{BV_T}, v{a}, 5, v{BV_O}")
    p(f"v_mov_b32 v{BV_O}, v{BV_HR}")
    p.wait(vm=["D0"])
    p("s_barrier")
    b_issue(p, 3, "D3")
    b_reads(p, 0, 0)
    p.add(st3(5))
    p(f"s_mov_b32 s{B_IT}, 0")

def stage_b():
    out = ""
    L = V_LANE
    fl = f"buffer_load_dwordx2 {vr(BV_FD,2)}, v{BV_FA}, {sr(S_FL)}, 0 offen sc1"
    p = Prog()
    p("LB_loop:")
    for s in range(4):
        p(f"s_waitcnt vmcnt({19 if s else 18}) lgkmcnt(0)")
        p("s_barrier")
        if s == 0:
            p(f"s_and_b32 s40, s{B_IT}, 1")
            p("s_cbranch_scc0 LF2_ok")
            check_tokens(p, "F2", [fl], [BV_FD])
            p(f"s_cmp_eq_u32 s{B_IT}, 1")
            p(f"s_cselect_b32 s40, {FL_2 - FL_M}, 0")
            p(f"v_add_u32 v{BV_FA}, s40, v{BV_FA}")
        if s == 2:
            p(f"s_cmp_eq_u32 s{B_IT}, 0")
            p("s_cbranch_scc0 LB_pub")
            flag_store(p, S_WFB, BT0)
            p("LB_pub:")
        r = Prog(); b_reads(r, (s + 1) % 4, (s + 1) & 1)
        i_ = Prog(); b_issue(i_, s, "D")
        if s == 0: i_(fl)
        p.add(b_stage(b_mfma(s & 1), r.l, [i_.l]))
    p(f"s_add_u32 s{B_IT}, s{B_IT}, 1")
    p(f"s_cmp_lt_u32 s{B_IT}, 5")
    p("s_cbranch_scc1 LB_loop")
    out += render(pad_hazards(flat(p.l)))
    seed = Prog()
    for s in (1, 2, 3): b_issue(seed, s, f"D{s}")
    vm0 = [(set(i.wr), i.tag, i.kind) for i in seed.l if i.kind in VMK]
    p = Prog()
    p.add(st3(6))
    a, b = BT0, BT1
    d = Prog()
    for tt in range(5): d(f"buffer_load_dword v{BV_RS+tt}, v{SRS}, {sr(S_FL)}, 0 offen offset:{256*tt} sc1")
    for k in range(3): d(f"buffer_load_dwordx4 {vr(XR+4*k,4)}, v{BV_XO+k}, {sr(B_X)}, 0 offen")
    g = Prog(); s_issue(g, 4)
    extra = {1: d}
    def px(i):
        x = Prog()
        for tt in range(5):
            t = PIN + 20*i + 4*tt
            x(f"v_cvt_pk_bf16_f32 v{t}, v{acc1(i,tt)}, v{acc1(i,tt)+1}")
            x(f"v_cvt_pk_bf16_f32 v{t+1}, v{acc1(i,tt)+2}, v{acc1(i,tt)+3}")
            x(f"buffer_store_dwordx4 {vr(t,4)}, v{BV_O}, {sr(B_PX)}, s{PXS[i]} offen sc1")
            if tt < 4: x(f"s_addk_i32 s{PXS[i]}, 4096")
        return x.l
    for s in range(4):
        p.wait(vm=[f"D{s+1}" if s < 3 else "S0"])
        p("s_waitcnt lgkmcnt(0)")
        p("s_barrier")
        r = Prog()
        if s < 3: b_reads(r, s + 1, (s + 1) & 1)
        else: s_reads(r, 0)
        i_ = Prog()
        if s in extra: i_.add(extra[s])
        s_issue(i_, s)
        p.add(b_stage(b_mfma(s & 1), r.l, [i_.l], late=[(12, px(0)), (22, px(1))] if s == 3 else []))
    p.add(st3(7)); p.add(st6(0))
    OWN = BSLOT
    pxl = [f"buffer_load_dwordx4 {vr(PIN+20*src+4*tt,4)}, v{BV_H + src}, {sr(B_PX)}, s{40+tt if tt < 4 else 54} offen sc1"
           for src in range(2) for tt in range(5)]
    F_ = PIN + 40; T = ACC1
    silu = Prog()
    for tt in range(5): silu(f"v_mul_f32 v{BV_RS+tt}, v{BV_RS+tt}, v{BV_RS+tt}")
    for src in range(2):
        for tt in range(5):
            t = PIN + 20*src + 4*tt
            for k in range(2):
                silu(f"v_lshlrev_b32 v{t+2}, 16, v{t+k}")
                silu(f"v_and_b32 v{t+3}, 0xffff0000, v{t+k}")
                silu(f"v_add_f32 v{F_+4*tt+2*k}, v{F_+4*tt+2*k}, v{t+2}")
                silu(f"v_add_f32 v{F_+4*tt+2*k+1}, v{F_+4*tt+2*k+1}, v{t+3}")
    for r in range(20): silu(f"v_mul_f32 v{F_+r}, v{BV_RS+r//4}, v{F_+r}")
    for r in range(20): silu(f"v_mul_f32 v{T+r}, s{S_NL2E}, v{F_+r}")
    for r in range(20): silu(f"v_exp_f32 v{T+r}, v{T+r}")
    for r in range(20): silu(f"v_add_f32 v{T+r}, 1.0, v{T+r}")
    for r in range(20): silu(f"v_rcp_f32 v{T+r}, v{T+r}")
    for r in range(20): silu(f"v_mul_f32 v{F_+r}, v{F_+r}, v{T+r}")
    cutk = 70
    for i in range(5):
        if i < 4: p.wait(vm=[f"S{i+1}"])
        p("s_waitcnt lgkmcnt(0)")
        if i < 4: p("s_barrier")
        r = Prog()
        if i < 4: s_reads(r, i + 1)
        o = []
        if i == 0: o = [px(2), g.l]
        if i == 1:
            for k in range(3):
                p(f"s_cmp_lt_u32 s{PXS[k]}, {OOB}")
                p(f"s_cbranch_scc1 LB_x{k}")
                p(f"s_mul_i32 s40, s{S_W}, 3")
                p(f"s_add_u32 s40, s40, {k}")
                p("s_and_b32 s40, s40, 3")
                p("s_lshl_b32 s40, s40, 10")
                p(f"s_add_u32 s40, s40, {OWN}")
                p(f"v_add_u32 v{a}, s40, v{BV_O}")
                for tt in range(5): p.l.append(Raw(f"    ds_write_b128 v{a}, {vr(acc1(k,tt),4)} offset:{tt*4096}"))
                p(f"LB_x{k}:")
        if i == OPTS.get("pxi", 2):
            x = Prog()
            x(f"s_mul_i32 s40, s{S_KT}, 40960")
            x(f"s_add_u32 s40, s40, s{Q_PX}")
            x(f"s_add_u32 s40, s40, s{Q_MH}")
            for k in (1, 2, 3): x(f"s_add_u32 s{40+k}, s40, {4096*k}")
            x("s_add_u32 s54, s40, 16384")
            x(f"v_mov_b32 v{BV_H}, v{BV_O}")
            x(f"v_add_u32 v{BV_H+1}, 20480, v{BV_O}")
            for l in pxl: x(l)
            o = [x.l]
        if i == 2:
            r(f"s_add_u32 s57, s{Q_MH}, {OWN}")
            r(f"v_add_u32 v{BV_H+2}, s57, v{BV_O}")
        if i == 2:
            for tt in range(5): r(f"ds_read_b128 {vr(F_+4*tt,4)}, v{BV_H+2} offset:{tt*4096}")
        if i == OPTS.get("pxc", 4):
            check_tokens(p, "FX", pxl, [PIN + 20*src + 4*tt + 2 for src in range(2) for tt in range(5)], "s[60:61]")
            o = [silu.l[:cutk]] if i == 3 else [silu.l]
        elif i == 4: o = [silu.l[cutk:]]
        p.add(b_stage(s_mfma(i), r.l, o))
        p.add(st6(1 + i))
    if OPTS.get("time") in (1, 3): p.add(stamp(3))
    p(f"v_and_b32 v{a}, 15, v{L}")
    p(f"v_mul_u32_u24 v{a}, 272, v{a}")
    p(f"v_and_b32 v{b}, 48, v{L}")
    p(f"s_lshl_b32 s40, s{S_W}, 6")
    p(f"s_add_u32 s40, s40, {2*BSLOT}")
    p(f"v_add3_u32 v{BV_TR}, v{a}, v{b}, s40")
    p(f"v_lshrrev_b32 v{a}, 3, v{L}")
    p(f"v_mul_u32_u24 v{a}, 272, v{a}")
    p(f"v_and_b32 v{b}, 7, v{L}")
    p(f"v_lshl_add_u32 v{a}, v{b}, 5, v{a}")
    p(f"s_mul_i32 s40, s{S_W}, {8*272}")
    p(f"s_add_u32 s40, s40, {2*BSLOT}")
    p(f"v_add_u32 v{BV_TR+1}, s40, v{a}")
    for tt in range(5):
        for r in range(4): p(f"v_mul_f32 v{F_+4*tt+r}, v{F_+4*tt+r}, v{ACC2+4*tt+r}")
        p(f"ds_write_b128 v{BV_TR}, {vr(F_+4*tt,4)} offset:{tt*16*272}")
    for k in range(3):
        for r in range(4):
            p(f"v_lshlrev_b32 v{T+8*k+2*r}, 16, v{XR+4*k+r}")
            p(f"v_and_b32 v{T+8*k+2*r+1}, 0xffff0000, v{XR+4*k+r}")
    p("s_waitcnt lgkmcnt(0)")
    p("s_barrier")
    for k in range(3):
        for h_ in range(2): p(f"ds_read_b128 {vr(PIN+8*k+4*h_,4)}, v{BV_TR+1} offset:{k*32*272 + h_*16}")
    for k in range(3):
        for r in range(8): p(f"v_add_f32 v{T+8*k+r}, v{T+8*k+r}, v{PIN+8*k+r}")
        for r in range(4): p(f"v_cvt_pk_bf16_f32 v{XR+4*k+r}, v{T+8*k+2*r}, v{T+8*k+2*r+1}")
        p(f"buffer_store_dwordx4 {vr(XR+4*k,4)}, v{BV_XO+k}, {sr(B_OUT)}, 0 offen")
    p.add(st6(7))
    time_out(p)
    p("s_endpgm")
    out += render(pad_hazards(insert_waits(flat(p.l), vm0=vm0)))
    p = Prog()
    p("LB_spare:")
    mean_fix(p, 3, AREA8[0]); ffn_epi(3, 8, p)
    p("s_waitcnt vmcnt(0)")
    p("s_barrier")
    flag_store(p, S_WFB, BT0)
    p("s_endpgm")
    out += finalize(p.l)
    return out
AREA8 = [0]

def ktable():
    lv = [[], [], []]
    for j in range(32):
        order = (0, 1, 2, 3) if j % 4 in (0, 3) else (1, 2, 0, 3)
        ks = lambda u: 9*(j >> 1) + (5 if j & 1 else 0) + u
        lv[0] += [ks(order[0]), ks(order[1])]; lv[1].append(ks(order[2])); lv[2].append(ks(3))
        if not j & 1: lv[2].append(9*(j >> 1) + 4)
    out = "LK_tab:\n"
    for kt in range(3):
        part = [sorted(lv[0])[kt::3], sorted(lv[1])[(kt + 2) % 3::3], sorted(lv[2])[kt::3]]
        assert sum(map(len, part)) == 48
        assert len(part[0]) >= 16 and len(part[0]) + len(part[1]) >= 32, [len(x) for x in part]
        for mm in range(10):
            for n3 in range(3):
                row = []
                for l in part:
                    off = (OPTS.get("rm", 2)*mm + (n3 * len(l)) // 3 * OPTS.get("rn", 1)) % len(l)
                    row += l[off:] + l[:off]
                out += ".byte " + ", ".join(map(str, row)) + "\n"
    return out + ".p2align 2\n"

def gen(name, opts):
    OPTS.clear(); OPTS.update(opts); SLOW.clear()
    out = entry(name)
    p = Prog()
    prologue(p)
    stage_a(p)
    out += finalize(p.l)
    out += stage_b()
    for s in SLOW: out += finalize(s.l)
    out += "LK_end:\n    s_endpgm\n"
    out += ktable()
    out += kd(name, 512, 102, 256)
    return out

if __name__ == "__main__":
    NAME = "recurrent_scan__linear_kernel_hedgehog__swiglu_ffn__prompt"
    HDR = open(f"cdna_kernels/{NAME}.s.ref").read().split("; Override launch geometry")[0]
    opts = {}
    for a in sys.argv[2:]:
        k, v = a.split("=")
        opts[k] = int(v) if v.lstrip("-").isdigit() else v
    txt = HDR + f"; @launch grid=(256,1,1) block=(256,1,1) lds={LDS_BYTES}\n" + '.amdgcn_target "amdgcn-amd-amdhsa--gfx950"\n.text\n' + gen(NAME + "_kernel", opts)
    open(sys.argv[1], "w").write(txt)
```

```python
import re

TRANS = ("v_exp_f32", "v_log_f32", "v_rcp_f32", "v_rsq_f32", "v_sqrt_f32", "v_sin_f32", "v_cos_f32")

def _regs(tok):
    tok = tok.strip()
    neg = tok.lstrip("-")
    if neg.startswith("abs(") or neg.startswith("|"):
        neg = neg.replace("abs(", "").replace(")", "").replace("|", "")
    tok = neg
    m = re.fullmatch(r"([vas])\[(\d+):(\d+)\]", tok)
    if m:
        return [f"{m.group(1)}{i}" for i in range(int(m.group(2)), int(m.group(3)) + 1)]
    m = re.fullmatch(r"([vas])(\d+)", tok)
    if m:
        return [tok]
    if tok in ("vcc", "exec", "m0", "scc"):
        return [tok]
    if tok in ("vcc_lo", "vcc_hi"):
        return ["vcc"]
    if tok in ("exec_lo", "exec_hi"):
        return ["exec"]
    return []

class I:
    __slots__ = ("text", "op", "kind", "rd", "wr", "tag", "cost", "mf_c", "mf_ab", "passes", "lds_rd", "nwait", "comment", "dpp", "unc")
    def __init__(self, text, tag=None, comment=None):
        self.text = text.strip()
        self.tag = tag
        self.comment = comment
        self.unc = False
        self.mf_c = []; self.mf_ab = []; self.passes = 0; self.nwait = 1; self.dpp = False
        self.parse()
    def parse(self):
        t = self.text
        if t.endswith(":"):
            self.op = "label"; self.kind = "label"; self.rd = set(); self.wr = set(); self.cost = 0; self.nwait = 0
            return
        parts = t.split(None, 1)
        op = parts[0]
        self.op = op
        rest = parts[1] if len(parts) > 1 else ""
        ops = [o.strip() for o in re.split(r",(?![^\[]*\])", rest)] if rest else []
        mods = ""
        if ops:
            lp = ops[-1].split(None, 1)
            ops[-1] = lp[0]
            mods = lp[1] if len(lp) > 1 else ""
        rd = set(); wr = set()
        R = lambda k: set(_regs(ops[k])) if k < len(ops) else set()
        allr = lambda ks: set().union(*[R(k) for k in ks]) if ks else set()
        n = len(ops)
        cost = 1
        if op.startswith("v_mfma"):
            kind = "mfma"
            wr = R(0); rd = allr([1, 2, 3])
            self.mf_ab = R(1) | R(2); self.mf_c = R(3)
            self.passes = 8 if ("32x32x16" in op or "32x32x8" in op) else 4 if "16x16x32" in op else None
            assert self.passes
        elif op.startswith("ds_read") or op.startswith("ds_bpermute") or op.startswith("ds_swizzle"):
            kind = "dsr"; wr = R(0); rd = allr(range(1, n))
        elif op.startswith("ds_write") or op.startswith("ds_add"):
            kind = "dsw"; rd = allr(range(n))
        elif op.startswith("buffer_load") or op.startswith("global_load"):
            if " lds" in (" " + mods) or "_lds_" in op:
                kind = "dma"; rd = allr(range(n)) | {"m0"}
            else:
                kind = "vld"; wr = R(0); rd = allr(range(1, n))
                if "d16" in op:
                    rd |= R(0)
        elif op.startswith("buffer_store") or op.startswith("global_store"):
            kind = "vst"; rd = allr(range(n))
        elif op.startswith("buffer_atomic") or op.startswith("global_atomic"):
            kind = "vst"; rd = allr(range(n))
            if "sc0" in mods.split():
                kind = "vld"; wr = R(0)
        elif op in ("buffer_inv", "buffer_wbl2"):
            kind = "vst"
        elif op.startswith("s_load") or op in ("s_memtime", "s_memrealtime"):
            kind = "smem"; wr = R(0); rd = allr(range(1, n))
        elif op == "s_waitcnt":
            kind = "wait"
        elif op == "s_barrier":
            kind = "bar"
        elif op == "s_nop":
            kind = "nop"; self.nwait = int(ops[0], 0) + 1; cost = self.nwait
        elif op.startswith("s_cbranch") or op in ("s_branch", "s_endpgm", "s_setpc_b64"):
            kind = "branch"
            if "scc" in op: rd = {"scc"}
            if "vcc" in op: rd = {"vcc"}
            if "exec" in op: rd = {"exec"}
        elif op.startswith("s_cmp"):
            kind = "salu"; rd = allr(range(n)); wr = {"scc"}
        elif op in ("s_sleep", "s_setprio"):
            kind = "salu"
        elif op.startswith("s_"):
            kind = "salu"; wr = R(0); rd = allr(range(1, n))
            if op.startswith(("s_add", "s_sub", "s_and", "s_or", "s_xor", "s_lshl", "s_lshr", "s_ashr", "s_min", "s_max", "s_bfe", "s_not", "s_andn2")):
                wr |= {"scc"}
            if op.startswith(("s_addc", "s_subb", "s_cselect")):
                rd |= {"scc"}
            if "saveexec" in op:
                rd |= {"exec"}; wr |= {"exec", "scc"}
            if op in ("s_addk_i32", "s_mulk_i32"):
                rd |= R(0)
        elif op.startswith("v_"):
            base = re.sub(r"_(e32|e64|dpp|sdwa)$", "", op)
            kind = "trans" if base in TRANS else "valu"
            if kind == "trans": cost = 2
            if op.startswith("v_cmp"):
                wr = R(0); rd = allr(range(1, n))
            elif op.startswith(("v_readfirstlane", "v_readlane")):
                wr = R(0); rd = allr(range(1, n))
            elif op.startswith("v_permlane") and "swap" in op:
                wr = R(0) | R(1); rd = R(0) | R(1)
            elif base in ("v_add_co_u32", "v_sub_co_u32"):
                wr = R(0) | R(1); rd = allr(range(2, n))
            elif base in ("v_addc_co_u32",):
                wr = R(0) | R(1); rd = allr(range(2, n))
            else:
                wr = R(0); rd = allr(range(1, n))
                if base in ("v_fmac_f32", "v_dot2c_f32_bf16", "v_writelane_b32") or op.endswith("_dpp"):
                    rd |= R(0)
                if base == "v_cndmask_b32" and n == 3:
                    rd |= {"vcc"}
            if op.endswith("_dpp"):
                self.dpp = True
            rd |= {"exec"}
        else:
            raise ValueError("unknown instruction: " + t)
        self.kind = kind; self.rd = rd; self.wr = wr; self.cost = cost
    def __repr__(self):
        return self.text

def Sized(text, size):
    _SIZE[text] = size
    return I(text)
_SIZE = {}

class WaitTag:
    passes = 0
    def __init__(self, vm=(), lg=()):
        self.vm = set(vm); self.lg = set(lg)
        self.kind = "waittag"; self.cost = 1; self.rd = set(); self.wr = set()

class Bundle:
    def __init__(self, items):
        self.items = items; self.kind = "bundle"; self.cost = sum(i.cost for i in items)

def flat(lst):
    out = []
    for i in lst:
        if i.kind == "bundle": out += i.items
        else: out.append(i)
    return out

class Raw:
    def __init__(self, text):
        self.text = text; self.kind = "raw"; self.cost = 0; self.rd = set(); self.wr = set()

VM_LIMIT = 63
VMK = ("vld", "vst", "dma")
LGK = ("dsr", "dsw", "smem")

def insert_waits(prog, vm0=None, lg0=None):
    out = []
    vm = list(vm0 or [])
    lg = list(lg0 or [])
    def need(lst, pred):
        idx = -1
        for i, e in enumerate(lst):
            if pred(e): idx = i
        return idx
    for ins in prog:
        if ins.kind == "raw":
            out.append(ins); continue
        wv = wl = None
        if ins.kind == "waittag":
            i = need(vm, lambda e: e[1] in ins.vm)
            if i >= 0: wv = len(vm) - 1 - i
            i = need(lg, lambda e: e[1] in ins.lg)
            if i >= 0: wl = len(lg) - 1 - i
        elif ins.kind == "wait":
            m = re.search(r"vmcnt\((\d+)\)", ins.text)
            if m:
                k = int(m.group(1)); vm = vm[len(vm) - k:] if k < len(vm) else vm
            m = re.search(r"lgkmcnt\((\d+)\)", ins.text)
            if m:
                k = int(m.group(1)); lg = lg[len(lg) - k:] if k < len(lg) else lg
            out.append(ins); continue
        else:
            touch = ins.rd | ins.wr
            if ins.kind == "vld" and "d16" in ins.op:
                touch = ins.rd - ins.wr
            i = need(vm, lambda e: e[0] & touch)
            if i >= 0: wv = len(vm) - 1 - i
            i = need(lg, lambda e: e[0] & touch)
            if i >= 0: wl = len(lg) - 1 - i
        if wl is not None and any(e[2] == "smem" for e in lg):
            wl = 0
        if wv is not None or wl is not None:
            s = []
            if wv is not None:
                assert wv <= 63
                s.append(f"vmcnt({wv})"); vm = vm[len(vm) - wv:] if wv else []
            if wl is not None:
                wl = min(wl, 15)
                s.append(f"lgkmcnt({wl})"); lg = lg[len(lg) - wl:] if wl else []
            out.append(I("s_waitcnt " + " ".join(s)))
        if ins.kind == "waittag":
            continue
        if getattr(ins, "unc", False):
            pass
        elif ins.kind in VMK:
            if len(vm) >= VM_LIMIT:
                out.append(I(f"s_waitcnt vmcnt({VM_LIMIT-1})")); vm = vm[len(vm) - (VM_LIMIT-1):]
            vm.append((set(ins.wr), ins.tag, ins.kind))
        elif ins.kind in LGK:
            if len(lg) >= 15:
                if any(e[2] == "smem" for e in lg):
                    out.append(I("s_waitcnt lgkmcnt(0)")); lg = []
                else:
                    out.append(I("s_waitcnt lgkmcnt(14)")); lg = lg[len(lg) - 14:]
            lg.append((set(ins.wr), ins.tag, ins.kind))
        out.append(ins)
    insert_waits.vm = vm
    return out

def _isv(r): return r[0] in "va" and r not in ("vcc",)
def _iss(r): return r[0] == "s" and r != "scc" or r == "vcc"

def required_states(p, c):
    n = 0
    pv = p.kind in ("valu", "trans")
    cv = c.kind in ("valu", "trans")
    cmem = c.kind in ("vld", "vst", "dma", "dsr", "dsw")
    if pv:
        vw = {r for r in p.wr if _isv(r)}
        sw = {r for r in p.wr if _iss(r)}
        if c.kind == "mfma" and vw & c.rd: n = max(n, 2)
        if p.kind == "trans" and c.kind == "valu" and vw & c.rd: n = max(n, 1)
        if p.kind == "trans" and cmem and vw & c.rd: n = max(n, 1)
        if cv and c.op.startswith(("v_readlane", "v_readfirstlane")) and vw & c.rd: n = max(n, 1)
        if cv and c.op.startswith("v_permlane") and vw & c.rd: n = max(n, 2)
        if cv and c.dpp and vw & c.rd: n = max(n, 2)
        if sw:
            if cv and sw & c.rd: n = max(n, 4 if c.op.startswith(("v_readlane", "v_writelane")) else 2)
            if c.kind in ("vld", "vst", "dma") and sw & c.rd: n = max(n, 5)
            if c.kind in ("salu", "branch") and sw & c.rd: n = max(n, 1)
        if "exec" in p.wr:
            n = max(n, 5)
    if p.kind == "mfma":
        big = p.passes == 8
        if c.kind == "mfma":
            if p.wr & c.mf_ab: n = max(n, 12 if big else 8)
            if p.wr & c.mf_c:
                same = (p.wr == c.mf_c and p.passes == c.passes)
                if not same: n = max(n, 10 if big else 6)
            elif p.wr & c.wr:
                n = max(n, 0 if p.wr == c.wr and p.passes == c.passes else (10 if big else 6))
        elif cv or cmem:
            if p.wr & (c.rd | c.wr): n = max(n, 12 if big else 8)
            if cv and p.mf_c & c.wr: n = max(n, 7 if big else 3)
    if p.kind == "salu" and "m0" in p.wr and c.kind == "dma": n = max(n, 1)
    if p.kind == "vst" and ("x4" in p.op or "x3" in p.op):
        dat = set(_regs(re.split(r",(?![^\[]*\])", p.text.split(None, 1)[1])[0 if p.op.startswith("buffer") else 1]))
        if dat & c.wr: n = max(n, 2 if cv else 1)
    if p.kind == "dsw" and ("b128" in p.op or "b96" in p.op):
        if (p.rd & c.wr) and cv: n = max(n, 1)
    return n

def pad_hazards(prog, lookback=14):
    out = []
    for ins in prog:
        if ins.kind in ("raw", "label"):
            out.append(ins); continue
        need = 0; dist = 0
        for p in reversed(out):
            if p.kind in ("raw", "label"): continue
            if dist >= lookback: break
            r = required_states(p, ins)
            if r > dist: need = max(need, r - dist)
            dist += p.nwait
        while need > 0:
            k = min(need, 16)
            out.append(I(f"s_nop {k-1}")); need -= k
        out.append(ins)
    return out

def render(prog):
    lines = []
    for i in prog:
        if i.kind == "raw": lines.append(i.text)
        elif i.kind == "label": lines.append(i.text)
        else: lines.append("    " + i.text + (f"    ; {i.comment}" if getattr(i, "comment", None) else ""))
    return "\n".join(lines) + "\n"

def finalize(prog):
    return render(pad_hazards(insert_waits(flat(prog))))

class Prog:
    def __init__(self):
        self.l = []
    def __call__(self, text, tag=None, comment=None):
        for line in text.strip().split("\n"):
            line = line.split(";")[0].strip()
            if line:
                self.l.append(I(line, tag, comment))
        return self
    def b(self, *texts, tag=None):
        self.l.append(Bundle([I(t, tag) for t in texts])); return self
    def add(self, x):
        if isinstance(x, Prog): self.l += x.l
        elif isinstance(x, list): self.l += x
        else: self.l.append(x)
        return self
    def wait(self, vm=(), lg=()):
        self.l.append(WaitTag(vm, lg)); return self

SCAL = ("salu", "wait", "waittag", "nop", "bar")
def slot_cost(i):
    if i.kind == "bundle": return sum(slot_cost(x) for x in i.items)
    if i.kind in ("vld", "vst", "dma"): return VMEM_COST
    if i.kind == "mfma": return 2
    if i.kind == "valu" and i.op.startswith("v_permlane"): return 2
    if i.kind in ("label", "raw"): return 0
    return i.cost
VMEM_COST = 2
LAT_DS = 4
CAP16 = 2

def sizes_of(instrs):
    import subprocess
    todo = sorted({i.text for i in instrs if isinstance(i, I) and i.kind not in ("label", "branch") and i.text not in _SIZE})
    if todo:
        r = subprocess.run(["llvm-mc", "-triple=amdgcn-amd-amdhsa", "-mcpu=gfx950", "-show-encoding"],
                           input="\n".join(todo) + "\n", capture_output=True, text=True)
        enc = [l for l in r.stdout.split("\n") if "encoding:" in l]
        assert len(enc) == len(todo), r.stderr[:2000]
        for t, l in zip(todo, enc): _SIZE[t] = l.split("encoding:")[1].count("0x")
def nbytes(i):
    if i.kind == "bundle": return sum(nbytes(x) for x in i.items)
    if i.kind in ("label", "raw"): return 0
    if i.kind in ("waittag", "branch"): return 4
    return _SIZE[i.text]
BYTES32 = 48
CARRY = 8

def check_streams(sides, after):
    info = []
    def before(x, y):
        while y is not None:
            y = after[y]
            if y == x: return True
        return False
    for (a, b, lst) in sides:
        lst = flat(lst)
        rd = set().union(*[i.rd for i in lst]) - {"exec", "scc"}
        wr = set().union(*[i.wr for i in lst]) - {"exec", "scc"}
        info.append((a, b, rd, wr))
    for x in range(len(info)):
        for y in range(x + 1, len(info)):
            a, b, rd, wr = info[x]; a2, b2, rd2, wr2 = info[y]
            if a < b2 and a2 < b and not before(x, y) and not before(y, x):
                c = (wr & (rd2 | wr2)) | (wr2 & rd)
                assert not c, f"streams {x} {(a,b)} and {y} {(a2,b2)} conflict on {sorted(c)}"

def stall_of(out, ins, lookback=14):
    first = ins.items[0] if ins.kind == "bundle" else ins
    if first.kind in ("waittag", "label"): return 0
    need = 0; dist = 0
    for p in reversed(out):
        if p.kind in ("raw", "label"): continue
        if dist >= lookback: break
        if p.kind != "waittag":
            r = required_states(p, first)
            if r > dist: need = max(need, r - dist)
        dist += getattr(p, "nwait", 1)
    return need

def weave(main, sides, cap=6):
    after = [(x[3] if len(x) > 3 else None) for x in sides]
    paced = [(x[4] if len(x) > 4 else False) for x in sides]
    sides = [(x[0], x[1], (x[2].l if isinstance(x[2], Prog) else x[2])) for x in sides]
    check_streams(sides, after)
    done_at = [None] * len(sides)
    sizes_of([x for (_, _, l) in sides for x in flat(l)] + [x for (m, f) in main for x in [m] + list(f)])
    bcarry = 0
    pos = [0] * len(sides)
    rem = [sum(slot_cost(i) for i in l) for (_, _, l) in sides]
    tot0 = list(rem)
    out = []; loads = []
    ready = {}
    def note(i, g):
        for x in flat([i]):
            lat = LAT_DS if x.kind == "dsr" else (3 if x.passes == 8 else 2) if x.kind == "mfma" else 0
            for r in x.wr: ready[r] = g + lat
    def blocked(i, g):
        return any(ready.get(r, 0) > g for x in flat([i]) for r in (x.rd | x.wr))
    cap0 = cap
    for g, (mf, fixed) in enumerate(main):
        cap = cap0 if mf.passes == 8 else CAP16
        out.append(mf)
        used = 0; head = True
        bcap = (BYTES32 if mf.passes == 8 else BYTES32 // 2) + bcarry
        bused = 8 + sum(nbytes(i) for i in fixed)
        for i in fixed:
            if not (head and i.kind in SCAL): used += slot_cost(i)
            head = False
            out.append(i)
        while True:
            act = [k for k, (a, b, l) in enumerate(sides) if a <= g < b and pos[k] < len(l)
                   and (after[k] is None or pos[after[k]] == len(sides[after[k]][2]))
                   and (not paced[k] or g == b - 1 or (tot0[k] - rem[k]) <= tot0[k] * (g - a + 0.5) / (b - a))]
            act = [k for k in act if sides[k][1] - 1 == g or not blocked(sides[k][2][pos[k]], g)]
            if not act: break
            must = [k for k in act if sides[k][1] - 1 == g]
            tot = sum(rem[k] / (sides[k][1] - g) for k in act)
            budget = max(cap, used_fixed_avg + tot) if False else cap
            cands = []
            for k in act:
                i = sides[k][2][pos[k]]
                c = slot_cost(i)
                free = head and (i.kind in SCAL)
                urg = rem[k] / (sides[k][1] - g) + (100 if paced[k] else 0)
                st = stall_of(out, i)
                cands.append((k, i, 0 if free else c, urg, st))
            fit = [c for c in cands if (used + c[2] + c[4] <= cap or c[2] == 0) and bused + nbytes(c[1]) <= bcap]
            if head and any(c[2] == 0 for c in fit): fit = [c for c in fit if c[2] == 0]
            nostall = [c for c in fit if c[4] == 0]
            if nostall: fit = nostall
            elif fit and not must:
                if tot < cap - 2: fit = []
            if not fit:
                if must: fit = [c for c in cands if c[0] in must]
                elif cap == cap0 and tot + 1.0 > cap and used < tot + 1.5:
                    fit = [c for c in cands if c[4] == 0] or cands
                else: break
            k, i, c, urg, st = max(fit, key=lambda c: c[3])
            note(i, g); bused += nbytes(i)
            out += flat([i]); pos[k] += 1; rem[k] -= slot_cost(i); used += c + st; head = False
            if pos[k] == len(sides[k][2]): done_at[k] = g
        loads.append(max(used - cap, (bused - bcap + 5) // 6))
        bcarry = max(min(bcap - bused, CARRY), 0)
    for k, (a, b, l) in enumerate(sides): assert pos[k] == len(l), (k, a, b)
    weave.done_at = done_at
    return out, loads

KD = """.section .rodata,"a"
.p2align 6
.amdhsa_kernel {name}
  .amdhsa_next_free_vgpr {vgpr}
  .amdhsa_next_free_sgpr {sgpr}
  .amdhsa_accum_offset {acc}
  .amdhsa_group_segment_fixed_size 0
  .amdhsa_kernarg_size 88
  .amdhsa_user_sgpr_count 2
  .amdhsa_user_sgpr_kernarg_segment_ptr 1
  .amdhsa_system_sgpr_workgroup_id_x 1
.end_amdhsa_kernel
.text
"""
def kd(name, vgpr, sgpr=102, acc=None):
    if acc is None: acc = min(256, (vgpr + 3) // 4 * 4)
    return KD.format(name=name, vgpr=vgpr, sgpr=sgpr, acc=acc)
def entry(name):
    return f".globl {name}\n.p2align 8\n.type {name},@function\n{name}:\n"
```

```python
import struct, sys
from asmgen import *
from layout import *

def np_f32(x): return struct.unpack("<I", struct.pack("<f", x))[0]
def vr(b, n): return f"v[{b}:{b+n-1}]"
def ar(b, n): return f"a[{b}:{b+n-1}]"
def sr(b, n=4): return f"s[{b}:{b+n-1}]"
def srd(p, d, base, off, size):
    if off:
        p(f"s_add_u32 s{d}, s{base}, {off}")
        p(f"s_addc_u32 s{d+1}, s{base+1}, 0")
    else:
        p(f"s_mov_b32 s{d}, s{base}")
        p(f"s_mov_b32 s{d+1}, s{base+1}")
    p(f"s_mov_b32 s{d+2}, {size}")
    p(f"s_mov_b32 s{d+3}, 0x20000")

MF = "v_mfma_f32_32x32x16_bf16"
MF8 = "v_mfma_f32_32x32x8_bf16"
MF16 = "v_mfma_f32_16x16x32_bf16"
L2E = 1.4426950408889634
OOB = 0x7ff00000
SPIN = 100000
STO = 32768
SLOT = 49184; PUP = 8224; XP = 16416
BUF = (0, 73760); BUP = 36896
SCR = 3 * SLOT; SCR_W = 3600; SROW = 112
CSX = 4 * SCR_W
TOKA = SCR + CSX + 1536
LDS_BYTES = TOKA + 64
P_X, P_WQKV, P_WPHI, P_WO, P_WG, P_WU, P_WD, P_OUT, P_DBG, P_WS = 64, 66, 68, 70, 72, 74, 76, 78, 80, 82
S_X, S_WF, S_WG, S_WU, S_HF, S_KV, S_OF, S_FL = 4, 8, 12, 16, 20, 24, 28, 32
S_W, S_MT, S_J, S_FI = 36, 37, 38, 39
S_M0X, S_M0W, S_FB, S_CG, S_NL2E, S_M0P, S_SPIN, S_TOK, S_SO, S_SO2, S_KVB, S_BT = 3, 44, 45, 50, 55, 56, 57, 58, 60, 61, 62, 63
S_WX = 66
S_WFB = 80
S_KT = 101
S_RG = 100
S_W0 = 81
STAMPS = list(range(84, 102, 2))
V_FL, V_LANE, V_W, V_H, V_SW, V_SR, V_B0, V_TRL, TR = 0, 1, 2, 3, 4, 5, 6, 7, 8
T1, T2, T3, T4 = 12, 13, 14, 15
XT, ACC, RING, RA = 16, 48, 176, 192
MV, E, SM = 80, 96, 106
KA = 48
CSA, MB, RL, SEL, CSACC, CT, EP = 224, 226, 230, 232, 236, 244, 248
V_CW, V_CR, V_A, V_Bq = 244, 245, 246, 247
CS4, XA, XD, WD, STG = 192, 208, 212, 214, 216
OPTS = {}
def stamp(i, modes=(1, 3)):
    return [I(f"s_memrealtime {sr(STAMPS[i],2)}")] if OPTS.get("time", 0) in modes else []
def st5(i):
    return [I(f"s_memtime {sr(STAMPS[i],2)}"), I("s_waitcnt lgkmcnt(0)")] if OPTS.get("time", 0) == 5 else []
def st6(i):
    return [I(f"s_memrealtime {sr(STAMPS[i],2)}"), I("s_waitcnt lgkmcnt(0)")] if OPTS.get("time", 0) == 6 else []
def st3(i):
    return [I(f"s_memrealtime {sr(STAMPS[i],2)}"), I("s_waitcnt lgkmcnt(0)")] if OPTS.get("time", 0) == 3 else []
def xreg(tt, s):
    if tt == 0: return ar(4*s, 4)
    if s < 28: return ar(144 + 4*s, 4)
    return vr(XT + 4*(s - 28), 4)
def acc(st, tt): return (RA if st == 4 else ACC + 32*st) + 16*tt

SLOW = []
def check_tokens(q, name, loads, pairs, tmp="s[42:43]"):
    def test(lst):
        for k, v in enumerate(pairs):
            if k == 0: lst.append(f"v_cmp_eq_u64 vcc, {sr(S_TOK,2)}, {vr(v,2)}")
            else:
                lst.append(f"v_cmp_eq_u64 {tmp}, {sr(S_TOK,2)}, {vr(v,2)}")
                lst.append("s_nop 0"); lst.append(f"s_and_b64 vcc, vcc, {tmp}")
        lst.append("s_nop 1"); lst.append("s_cmp_eq_u64 vcc, -1")
    items = []; test(items)
    q.b(*(items + [f"s_cbranch_scc0 L{name}_slow", f"L{name}_ok:"]))
    s = Prog()
    s(f"L{name}_slow:")
    s(f"s_mov_b32 s{S_SPIN}, 0")
    s(f"L{name}_spin:")
    s("s_sleep 2")
    for l in loads: s(l)
    s("s_waitcnt vmcnt(0)")
    s(f"s_add_u32 s{S_SPIN}, s{S_SPIN}, 1")
    items = []; test(items)
    for t in items: s(t)
    s(f"s_cbranch_scc1 L{name}_ok")
    s(f"s_cmp_lt_u32 s{S_SPIN}, {SPIN}")
    s(f"s_cbranch_scc1 L{name}_spin")
    s(f"s_branch L{name}_ok")
    SLOW.append(s)

def flag_store(q, sidx, tmpv):
    q(f"v_mov_b32 v{tmpv}, s{S_TOK}")
    q(f"v_mov_b32 v{tmpv+1}, s{S_TOK+1}")
    q(f"buffer_store_dwordx2 {vr(tmpv,2)}, v{V_FL}, {sr(S_FL)}, s{sidx} offen sc1")

def row16_allreduce(p, v):
    for r in (8, 4, 2, 1):
        p(f"v_add_f32_dpp v{v}, v{v}, v{v} row_ror:{r} row_mask:0xf bank_mask:0xf")
def half_allreduce(p, v, t):
    row16_allreduce(p, v)
    p(f"v_mov_b32 v{t}, v{v}")
    p(f"v_permlane16_swap_b32 v{v}, v{t}")
    p(f"v_add_f32 v{v}, v{v}, v{t}")
def bf16_round(p, v):
    p(f"v_cvt_pk_bf16_f32 v{v}, v{v}, v{v}")
    p(f"v_and_b32 v{v}, 0xffff0000, v{v}")

def rg_next(q):
    q.b(f"s_add_u32 s{S_RG}, s{S_RG}, 1", f"s_cmp_eq_u32 s{S_RG}, 9", f"s_cselect_b32 s{S_RG}, 0, s{S_RG}")
def ring_group(g):
    b = (g % 3) * SLOT
    q = Prog()
    q(f"s_mul_i32 s{S_SO}, s{S_RG}, 589824")
    q(f"s_add_u32 s{S_SO}, s{S_SO}, s{S_FB}")
    for h8 in range(2):
        q(f"s_add_u32 m0, s{S_M0P}, {b + h8*1024}")
        if h8: q(f"s_add_u32 s{S_SO}, s{S_SO}, 73728")
        else: q("s_nop 0")
        q(f"buffer_load_dwordx4 v{WD}, {sr(S_WG)}, s{S_SO} offen lds", tag=f"W{g}")
        q(f"s_add_u32 m0, s{S_M0P}, {b + PUP + h8*1024}")
        q(f"s_nop 0")
        q(f"buffer_load_dwordx4 v{WD}, {sr(S_WU)}, s{S_SO} offen lds", tag=f"W{g}")
    for i in range(8):
        q(f"s_add_u32 m0, s{S_M0X}, {b + XP + i*1024}")
        q(f"s_add_u32 s{S_SO}, s{S_SO}, 9216" if i else f"s_lshl_b32 s{S_SO}, s{S_RG}, 7")
        q(f"buffer_load_dwordx4 v{XD + (i & 1)}, {sr(S_X)}, s{S_SO} offen lds", tag=f"X{g}")
    rg_next(q)
    return q

def x_copy(g):
    q = Prog()
    q.wait(vm=[f"X{g}"])
    for p_ in range(4):
        if g: q(f"v_add_u32 v{XA+p_}, {SLOT if g % 3 else (-2*SLOT) & 0xffffffff}, v{XA+p_}")
        for tt in range(2):
            q(f"ds_read_b128 {xreg(tt, 4*g+p_)}, v{XA+p_} offset:{tt*4096}")
    return q

def dma_unit_group(u, g):
    b = BUF[(u + 1) & 1]
    q = Prog()
    q(f"s_mul_i32 s{S_SO}, s{S_RG}, 589824")
    q(f"s_add_u32 m0, s{S_M0W}, {b + g*4096}")
    q(f"s_add_u32 s{S_SO}, s{S_SO}, s{S_FB+u}")
    q(f"buffer_load_dwordx4 v{V_W}, {sr(S_WG)}, s{S_SO} offen lds", tag=f"U{u}")
    q(f"s_add_u32 m0, s{S_M0W}, {b + BUP + g*4096}")
    rg_next(q)
    q(f"buffer_load_dwordx4 v{V_W}, {sr(S_WU)}, s{S_SO} offen lds", tag=f"U{u}")
    return q

def dma_wf(t):
    q = Prog()
    for g in range(9):
        q(f"s_lshl_b32 s{S_SO}, s{S_RG}, 12")
        q(f"s_add_u32 m0, s{S_M0W}, {t*BUP + g*4096}")
        q(f"s_add_u32 s{S_SO}, s{S_SO}, s{S_WFB}")
        q(f"buffer_load_dwordx4 v{V_B0}, {sr(S_WF)}, s{S_SO} offen sc1 lds", tag=f"T{t}")
        rg_next(q)
    if t == 0: q(f"s_add_u32 s{S_WFB}, s{S_WFB}, 36864")
    return q

TKR = STG + 6
GA = STG + 4
TOKLD = f"buffer_load_dwordx2 {vr(TKR,2)}, v{GA+1}, s[20:23], 0 offen sc1"
FA = 112
SR_ = 36
F_VA, F_VB, F_RHO, F_HF, F_DV, F_Z = 236, 238, 240, 241, 242, 243
def prologue(p):
    L = V_LANE
    p("s_cmp_ge_u32 s2, 256")
    p("s_cbranch_scc1 LK_end")
    p.add(st5(0))
    p("s_load_dwordx8 s[64:71], s[0:1], 0")
    p("s_load_dwordx8 s[72:79], s[0:1], 40")
    p("s_load_dwordx4 s[80:83], s[0:1], 72")
    p.add(stamp(0))
    p("v_lshrrev_b32 v14, 6, v0")
    p(f"v_and_b32 v{L}, 63, v0")
    p(f"v_readfirstlane_b32 s{S_W}, v14")
    p("s_and_b32 s40, s2, 7")
    p("s_lshr_b32 s41, s2, 3")
    p("s_and_b32 s42, s40, 1")
    p("s_lshl_b32 s42, s42, 2")
    p("s_and_b32 s43, s41, 3")
    p(f"s_add_u32 s{S_MT}, s42, s43")
    p("s_lshr_b32 s42, s40, 1")
    p("s_lshl_b32 s42, s42, 3")
    p("s_lshr_b32 s43, s41, 2")
    p(f"s_add_u32 s{S_J}, s42, s43")
    p(f"s_lshl_b32 s{S_M0W}, s{S_W}, 10")
    p(f"s_lshl_b32 s{S_M0P}, s{S_W}, 11")
    p(f"s_lshl_b32 s{S_M0X}, s{S_W}, 13")
    p(f"s_lshl_b32 s{S_BT}, s{S_W}, 3")
    p(f"s_add_u32 s{S_BT}, s{S_BT}, s{S_MT}")
    p(f"s_mul_i32 s40, s{S_J}, 144")
    p(f"s_and_b32 s41, s{S_J}, 1")
    p("s_lshl_b32 s42, s41, 4")
    p("s_add_u32 s42, s42, s40")
    p("s_cmp_eq_u32 s41, 0")
    p("s_cselect_b32 s43, 128, 0")
    p("s_add_u32 s43, s43, s40")
    p(f"s_add_u32 s40, s{S_J}, 1")
    p("s_and_b32 s40, s40, 2")
    p("s_lshl_b32 s40, s40, 4")
    p(f"s_add_u32 s{S_FB}, s42, s40")
    p(f"s_lshl_b32 s{S_FB}, s{S_FB}, 1")
    p(f"v_lshrrev_b32 v17, 5, v{L}")
    p(f"v_and_b32 v19, 31, v{L}")
    p(f"s_lshl_b32 s{S_FI}, s{S_MT}, 5")
    p(f"s_add_u32 s{S_FI}, s{S_FI}, s{S_J}")
    p(f"s_lshl_b32 s{S_FI}, s{S_FI}, 3")
    p(f"s_lshl_b32 s{S_SO2}, s{S_W}, 1")
    p(f"s_add_u32 s{S_SO2}, s{S_SO2}, s{S_FI}")
    p(f"v_add_u32 v16, s{S_SO2}, v17")
    p("v_mul_u32_u24 v15, 1152, v16")
    p("v_lshl_add_u32 v15, v19, 2, v15")
    p(f"s_add_u32 s{S_RG}, s{S_MT}, s{S_J}")
    p(f"s_mul_i32 s{S_KVB}, s{S_RG}, 7282")
    p(f"s_lshr_b32 s{S_KVB}, s{S_KVB}, 16")
    p(f"s_mul_i32 s{S_KVB}, s{S_KVB}, 9")
    p(f"s_sub_u32 s{S_RG}, s{S_RG}, s{S_KVB}")
    if OPTS.get("norot") == 1: p(f"s_mov_b32 s{S_RG}, 0")
    if OPTS.get("norot") == 2: p(f"s_and_b32 s{S_RG}, s2, 7")
    if OPTS.get("norot") == 3: p(f"s_mov_b32 s{S_RG}, s{S_MT}")
    p(f"v_lshrrev_b32 v12, 3, v{L}")
    p(f"s_lshl_b32 s{S_SO2}, s{S_MT}, 2")
    p(f"s_add_u32 s{S_SO2}, s{S_SO2}, s{S_W}")
    p(f"s_lshl_b32 s{S_SO2}, s{S_SO2}, 6")
    p(f"v_add_u32 v13, s{S_SO2}, v12")
    p("v_mul_u32_u24 v13, 1152, v13")
    p("v_lshrrev_b32 v12, 1, v12")
    p(f"v_and_b32 v14, 7, v{L}")
    p("v_xor_b32 v12, v12, v14")
    p(f"v_lshl_add_u32 v{XD}, v12, 4, v13")
    p(f"v_xor_b32 v{XD+1}, 64, v{XD}")
    p(f"v_bfe_u32 v12, v{L}, 2, 3")
    p(f"s_lshl_b32 s{S_SO2}, s{S_W}, 4")
    p(f"v_add_u32 v12, s{S_SO2}, v12")
    p("v_mul_u32_u24 v12, 9216, v12")
    p("v_lshl_add_u32 v12, v17, 6, v12")
    p(f"v_and_b32 v13, 3, v{L}")
    p(f"v_lshl_add_u32 v{WD}, v13, 4, v12")
    p(f"v_cmp_eq_u32 vcc, 0, v{L}")
    p(f"v_mov_b32 v18, {OOB}")
    p(f"v_cndmask_b32 v{V_FL}, v18, v{L}, vcc")
    p(f"v_lshlrev_b32 v{V_B0}, 4, v{L}")
    p("s_waitcnt lgkmcnt(0)")
    p.add(st5(1))
    srd(p, S_X, P_X, 0, X_SZ)
    code_touch(p)
    for i in range(9): p(f"buffer_load_dword v{SR_+i}, v15, {sr(S_X)}, 0 offen offset:{128*i}")
    srd(p, S_WG, P_WG, 0, WG_SZ)
    srd(p, S_WU, P_WU, 0, WG_SZ)
    srd(p, 24, P_WQKV, 0, WQKV_SZ)
    p(f"v_min_u32 v20, 15, v{L}")
    p("v_lshlrev_b32 v20, 7, v20")
    p("s_lshl_b32 s46, s2, 2")
    p(f"s_add_u32 s46, s46, s{S_W}")
    p("s_lshl_b32 s46, s46, 11")
    p(f"buffer_load_dword v{EP}, v20, s[24:27], s46 offen")
    g0 = ring_group(0).l
    cut = [k for k, i in enumerate(g0) if i.kind == "dma"][OPTS.get("cut", 5)] - 2
    p.add(g0[:cut])
    srd(p, 20, P_DBG, 0, 256)
    p(f"s_or_b32 s46, s2, s{S_W}")
    p(f"s_cmp_lg_u32 s46, 0")
    p("s_cbranch_scc1 LT_skip")
    p("s_memrealtime s[46:47]")
    p("v_mov_b32 v34, 0")
    p("v_mov_b32 v35, 0")
    p("s_waitcnt lgkmcnt(0)")
    p("s_or_b32 s46, s46, 1")
    p("v_mov_b32 v32, s46")
    p("v_mov_b32 v33, s47")
    p.l.append(Raw(f"    buffer_atomic_cmpswap_x2 v[32:35], v{V_FL}, s[20:23], 0 offen sc1"))
    p("LT_skip:")
    p.add(st5(2))
    p(f"s_add_u32 s{S_FB+1}, s{S_FB}, 64")
    p("s_lshl_b32 s40, s40, 1")
    p("s_sub_u32 s40, 64, s40")
    p("s_add_u32 s40, s40, s42")
    p(f"s_lshl_b32 s{S_FB+2}, s40, 1")
    p(f"s_add_u32 s42, s42, 96")
    p(f"s_lshl_b32 s{S_FB+3}, s42, 1")
    p(f"s_lshl_b32 s{S_FB+4}, s43, 1")
    for u in range(5): p(f"s_lshl_b32 s{S_CG+u}, s{S_FB+u}, 4")
    p(f"s_mul_i32 s{S_KVB}, s{S_J}, 4608")
    srd(p, S_WF, P_WS, WF_OFF, WF_SZ)
    srd(p, 28, P_WPHI, 0, WPHI_SZ)
    srd(p, S_FL, P_WS, FL_OFF, FL_SZ + ST_SZ)
    for i in range(4):
        p(f"s_xor_b32 s{S_WX+i}, s{S_W}, {i}")
        p(f"s_lshl_b32 s{S_WX+i}, s{S_WX+i}, 10")
    p(f"s_mul_i32 s{S_WFB}, s{S_J}, 73728")
    p(f"s_add_u32 s{S_WFB}, s{S_WFB}, s{S_M0W}")
    p(f"s_cmp_eq_u32 s{S_W}, 0")
    p(f"s_cselect_b32 s{S_W0}, 0, {OOB}")
    p(f"v_bfe_u32 v12, v{L}, 2, 2")
    p(f"v_and_b32 v13, 3, v{L}")
    p("v_lshlrev_b32 v13, 3, v13")
    p("v_lshl_add_u32 v12, v12, 6, v13")
    p(f"v_bfe_u32 v13, v{L}, 4, 1")
    p(f"v_mul_u32_u24 v14, {BUP}, v13")
    p("v_add_u32 v14, v14, v12")
    p(f"v_lshl_add_u32 v{V_TRL}, v17, 9, v14")
    p(f"v_mul_u32_u24 v14, {PUP}, v13")
    p("v_add_u32 v14, v14, v12")
    p("v_lshl_add_u32 v14, v17, 10, v14")
    for i in range(4):
        p(f"s_lshl_b32 s40, s{S_WX+i}, 1")
        p(f"v_add_u32 v{TR+i}, s40, v14")
    p(f"v_bfe_u32 v12, v{L}, 1, 3")
    p("v_xor_b32 v12, v12, v17")
    p(f"s_add_u32 s41, s{S_M0X}, {XP}")
    p("v_lshl_add_u32 v14, v19, 7, s41")
    for i in range(4):
        p(f"s_lshr_b32 s40, s{S_WX+i}, 9")
        p("v_xor_b32 v15, s40, v12")
        p(f"v_lshl_add_u32 v{XA+i}, v15, 4, v14")
    p(f"v_lshrrev_b32 v12, 2, v{L}")
    p(f"s_lshl_b32 s40, s{S_W}, 4")
    p("v_add_u32 v12, s40, v12")
    p("v_mul_u32_u24 v12, 9216, v12")
    p(f"v_and_b32 v14, 3, v{L}")
    p(f"v_lshl_add_u32 v{V_W}, v14, 4, v12")
    p(f"s_lshl_b32 s40, s{S_MT}, 4")
    p(f"s_lshl_b32 s41, s{S_W}, 2")
    p("s_add_u32 s40, s40, s41")
    p("v_add_u32 v12, s40, v13")
    p("v_mul_u32_u24 v12, 147456, v12")
    p(f"v_and_b32 v14, 15, v{L}")
    p("v_lshl_add_u32 v12, v14, 4, v12")
    p(f"v_lshl_add_u32 v{V_H}, v17, 8, v12")
    p(f"s_mul_i32 s40, s{S_W}, {SCR_W}")
    p(f"s_add_u32 s40, s40, {SCR}")
    p(f"v_mul_u32_u24 v12, {SROW}, v19")
    p("v_lshl_add_u32 v12, v17, 3, v12")
    p(f"v_add_u32 v{V_SW}, s40, v12")
    p(f"v_lshrrev_b32 v12, 4, v{L}")
    p(f"v_bfe_u32 v15, v{L}, 2, 2")
    p("v_lshl_add_u32 v12, v12, 3, v15")
    p(f"v_mul_u32_u24 v12, {SROW}, v12")
    p(f"v_and_b32 v15, 3, v{L}")
    p("v_lshl_add_u32 v12, v15, 3, v12")
    p(f"v_add_u32 v{V_SR}, s40, v12")
    p(f"s_lshl_b32 s41, s{S_W}, 7")
    p(f"s_add_u32 s41, s41, {SCR}")
    p(f"v_lshl_add_u32 v{V_CW}, v{L}, 3, s41")
    p("v_lshlrev_b32 v12, 3, v14")
    p("v_lshl_add_u32 v12, v13, 2, v12")
    p(f"v_add_u32 v{V_CR}, {SCR}, v12")
    p(f"s_mov_b32 s{S_NL2E}, 0x{np_f32(-L2E):08x}")
    p(f"v_lshlrev_b32 v16, 4, v16")
    p(f"v_add_u32 v16, {STO}, v16")
    p(f"v_cmp_eq_u32 vcc, 0, v19")
    p(f"v_cndmask_b32 v{GA}, v18, v16, vcc")
    p(f"v_mov_b32 v{F_Z}, 0")
    p(f"v_mov_b32 v{F_HF}, v17")
    p("v_bfe_u32 v22, v19, 2, 1")
    p("v_lshrrev_b32 v23, 3, v19")
    p("v_and_b32 v24, 3, v19")
    p(f"v_lshl_or_b32 v{F_RHO}, v23, 2, v24")
    p("v_mul_u32_u24 v24, 9, v22")
    p(f"v_cmp_gt_u32 vcc, 9, v{F_RHO}")
    p(f"v_subrev_u32 v25, 9, v{F_RHO}")
    p(f"v_cndmask_b32 v25, v25, v{F_RHO}, vcc")
    p("v_add_u32 v25, v25, v24")
    p(f"v_cmp_gt_u32 vcc, 2, v{F_RHO}")
    p(f"v_add3_u32 v26, v{F_RHO}, v24, 7")
    p(f"v_cndmask_b32 v26, v{F_Z}, v26, vcc")
    p(f"s_add_u32 s41, s{S_M0W}, {SCR + 3*SCR_W}")
    p(f"v_lshl_add_u32 v{F_VB}, v25, 1, s41")
    p(f"v_lshl_add_u32 v{F_VB+1}, v26, 1, s41")
    p("v_and_b32 v20, 0x13, v19")
    p("v_and_b32 v21, 4, v19")
    p("v_lshl_or_b32 v20, v21, 1, v20")
    p("v_and_b32 v21, 8, v19")
    p("v_lshrrev_b32 v21, 1, v21")
    p("v_or_b32 v20, v20, v21")
    p("v_mul_u32_u24 v20, 36, v20")
    p(f"v_add_u32 v{V_A}, s40, v20")
    p(f"v_lshl_add_u32 v{V_Bq}, v17, 4, v{V_A}")
    p("v_mul_u32_u24 v27, 288, v17")
    p(f"v_add_u32 v{F_VA}, v{F_VB}, v27")
    p(f"v_add_u32 v{F_VA+1}, v{F_VB+1}, v27")
    p(f"v_subrev_u32 v25, 2, v{F_RHO}")
    p("v_lshl_add_u32 v26, v22, 3, v25")
    p("v_cmp_gt_u32 vcc, 8, v25")
    p("v_add_u32 v31, 8, v25")
    p("v_lshl_add_u32 v31, v22, 6, v31")
    p("v_cndmask_b32 v26, v31, v26, vcc")
    p("v_cmp_gt_u32 vcc, 10, v25")
    p("v_mov_b32 v31, 255")
    p("v_cndmask_b32 v26, v31, v26, vcc")
    p("v_lshlrev_b32 v27, 3, v17")
    p(f"v_sub_u32 v{F_DV}, v26, v27")
    for i in range(3):
        for r in (1, 2, 3): p(f"v_accvgpr_write_b32 a{FA+12+4*i+r}, 0")
    p.add(st5(3))
    p.add(g0[cut:])
    p("v_cmp_eq_u32 vcc, v14, v13")
    p("v_mov_b32 v12, 0x3f803f80")
    for r in range(4): p(f"v_cndmask_b32 v{SEL+r}, v{F_Z}, v12, vcc")
    for r in (CSA+1, MB+1, MB+3): p(f"v_mov_b32 v{r}, 0")
    p(f"v_mul_u32_u24 v20, 7282, v{L}")
    p("v_lshrrev_b32 v20, 16, v20")
    p("v_mul_u32_u24 v21, 9, v20")
    p(f"v_sub_u32 v21, v{L}, v21")
    p("v_mul_u32_u24 v20, 3456, v20")
    p(f"v_lshl_add_u32 v{T3}, v21, 2, v20")
    p(f"v_mov_b32 v{GA+1}, s{S_W0}")
    p.add(ring_group(1))
    p.add(st5(4))
    p.add(stamp(4, (1,)))

def fold_loads():
    q = Prog()
    q(f"s_mul_i32 s41, s{S_BT}, {32*3456}")
    q(f"s_mul_i32 s42, s{S_J}, 36")
    q("s_add_u32 s41, s41, s42")
    q(f"s_mul_i32 s40, s{S_W}, {SCR_W}")
    q(f"s_add_u32 s40, s40, {SCR}")
    items = [(f"s_add_u32 m0, s{S_M0W}, {SCR + 3*SCR_W}", f"s_mul_i32 s42, s{S_J}, 648", f"buffer_load_dwordx4 v{V_B0}, s[28:31], s42 offen lds")]
    for mat in range(3):
        for i in range(5):
            items.append((f"s_add_u32 m0, s40, {mat*1152 + i*252}", f"s_add_u32 s42, s41, {mat*1152 + i*7*3456}", f"buffer_load_dword v{T3}, s[24:27], s42 offen lds"))
    for k in range(0, 16, 2):
        b = [I(f"s_cmp_ge_u32 s{S_BT}, 18"), I(f"s_cbranch_scc1 LP_nf{k}")]
        for it in items[k:k+2]:
            b += [I(t) for t in it]; b[-1].unc = True
        b.append(I(f"LP_nf{k}:"))
        q.l.append(Bundle(b))
    return q

def late_srds():
    q = Prog()
    for d, off, sz in ((S_KV, KV_OFF, KV_SZ), (S_OF, OF_OFF, OF_SZ)):
        q.b(f"s_add_u32 s{d}, s{P_WS}, {off}", f"s_addc_u32 s{d+1}, s{P_WS+1}, 0")
        q(f"s_mov_b32 s{d+2}, {sz}")
    return q

def stats_stream():
    p = Prog()
    X = 16; M = STG; V = 34; R = SR_
    for i in range(9):
        p(f"v_lshlrev_b32 v{X+2*i}, 16, v{R+i}")
        p(f"v_and_b32 v{X+2*i+1}, 0xffff0000, v{R+i}")
    p(f"v_add_f32 v{M}, v{X}, v{X+2}")
    p(f"v_add_f32 v{M+1}, v{X+1}, v{X+3}")
    for i in range(2, 9):
        p(f"v_add_f32 v{M}, v{M}, v{X+2*i}")
        p(f"v_add_f32 v{M+1}, v{M+1}, v{X+2*i+1}")
    p(f"v_add_f32 v{M}, v{M}, v{M+1}")
    half_allreduce(p, M, M+1)
    p(f"v_mul_f32 v{M}, 0x{np_f32(1/576):08x}, v{M}")
    for i in range(18): p(f"v_sub_f32 v{X+i}, v{X+i}, v{M}")
    p(f"v_mul_f32 v{V}, v{X}, v{X}")
    p(f"v_mul_f32 v{V+1}, v{X+1}, v{X+1}")
    for i in range(1, 9):
        p(f"v_fmac_f32 v{V}, v{X+2*i}, v{X+2*i}")
        p(f"v_fmac_f32 v{V+1}, v{X+2*i+1}, v{X+2*i+1}")
    p(f"v_add_f32 v{V}, v{V}, v{V+1}")
    half_allreduce(p, V, V+1)
    p(f"v_mul_f32 v{V}, 0x{np_f32(1/576):08x}, v{V}")
    bf16_round(p, M)
    bf16_round(p, V)
    p(f"v_add_f32 v{V}, 0x{np_f32(1e-5):08x}, v{V}")
    bf16_round(p, V)
    p(f"v_sqrt_f32 v{V}, v{V}")
    bf16_round(p, V)
    p(f"v_rcp_f32 v{M+1}, v{V}")
    return p

def fold_stream():
    q = Prog()
    B0, B1, D, O = XT, XT + 8, XT + 16, EP
    q.wait(vm=["W2"])
    for mat in range(3):
        q(f"v_add_u32 v{D}, {mat*1152}, v{V_Bq}")
        q(f"ds_read2_b32 {ar(FA+4*mat,2)}, v{D} offset0:0 offset1:1")
        q(f"ds_read2_b32 {ar(FA+4*mat+2,2)}, v{D} offset0:2 offset1:3")
        q(f"ds_read_b32 a{FA+12+4*mat}, v{V_A} offset:{mat*1152+32}")
    q(f"s_lshl_b32 s41, s{S_BT}, 11")
    q(f"s_add_u32 s41, s{S_WFB}, s41")
    q(f"s_sub_u32 s41, s41, s{S_M0W}")
    q(f"s_lshl_b32 s43, s{S_BT}, 8")
    q(f"s_add_u32 s43, s43, s{S_KVB}")
    q.b(f"s_cmp_lt_u32 s{S_BT}, 18", f"s_cselect_b32 s41, s41, {OOB}", f"s_cselect_b32 s43, s43, {OOB}")
    q("s_add_u32 s42, s41, 36864")
    for b in (B0, B1):
        for r in (5, 6, 7): q(f"v_mov_b32 v{b+r}, 0")
    for t in range(2):
        for e in range(8): q(f"ds_read_u16 v{D+e}, v{F_VA+t} offset:{e*36}")
        q(f"ds_read_u16 v{D+8}, v{F_VB+t} offset:{16*36}")
        q(f"ds_read_u16 v{D+9}, v{F_VB+t} offset:{17*36}")
        if t == 1:
            q(f"v_mov_b32 v{D+10}, 0x3f80")
            for r, sub in enumerate((0, 2, 4, 6, 16)):
                q(f"v_subrev_u32 v{D+11}, {sub}, v{F_DV}")
                q(f"v_lshlrev_b32 v{D+12}, 4, v{D+11}")
                q(f"v_cmp_gt_u32 vcc, 2, v{D+11}")
                q(f"v_lshlrev_b32 v{D+12}, v{D+12}, v{D+10}")
                q(f"v_cndmask_b32 v{B1+r}, v{F_Z}, v{D+12}, vcc")
        q(f"v_cmp_eq_u32 vcc, 0, v{F_HF}")
        for r in range(5): q(f"v_lshl_or_b32 v{D+r}, v{D+2*r+1}, 16, v{D+2*r}")
        q(f"v_cndmask_b32 v{D+4}, v{F_Z}, v{D+4}, vcc")
        q(f"v_cmp_gt_u32 vcc, {9 if t == 0 else 2}, v{F_RHO}")
        q("s_nop 0")
        for r in range(5): q(f"v_cndmask_b32 v{B0+r}, v{F_Z}, v{D+r}, vcc")
        if t == 0:
            for r in range(5): q(f"v_cndmask_b32 v{B1+r}, v{D+r}, v{F_Z}, vcc")
        a0 = FA + 4*t
        q(f"{MF} {vr(D,16)}, {ar(a0,4)}, {vr(B0,4)}, 0")
        q(f"{MF} {vr(D,16)}, {ar(a0+12,4)}, {vr(B0+4,4)}, {vr(D,16)}")
        q(f"{MF} {vr(D,16)}, {ar(a0+4,4)}, {vr(B1,4)}, {vr(D,16)}")
        q(f"{MF} {vr(D,16)}, {ar(a0+16,4)}, {vr(B1+4,4)}, {vr(D,16)}")
        for r in range(8): q(f"v_cvt_pk_bf16_f32 v{O+r}, v{D+2*r}, v{D+2*r+1}")
        for jj in range(2):
            q(f"buffer_store_dwordx4 {vr(O+4*jj,4)}, v{V_B0}, {sr(S_WF)}, s{41+t} offen offset:{1024*jj} sc1", tag="fold")
    q(f"v_cmp_gt_u32 vcc, 16, v{V_LANE}")
    q(f"v_mov_b32 v{D}, {OOB}")
    q(f"v_mov_b32 v{B0+4}, 0")
    q(f"v_cndmask_b32 v{D}, v{D}, v{V_B0}, vcc")
    q(f"buffer_store_dwordx4 {vr(B0+4,4)}, v{D}, {sr(S_KV)}, s43 offen sc1", tag="fold")
    return q

def code_touch(q):
    L = V_LANE
    q("s_getpc_b64 s[46:47]")
    q("LT_pc:")
    q("s_lshr_b32 s48, s2, 3")
    q("s_lshl_b32 s48, s48, 2")
    q(f"s_add_u32 s48, s48, s{S_W}")
    q("s_cmp_gt_u32 s48, 7")
    q("s_cbranch_scc1 LT_nocode")
    q("s_lshl_b32 s48, s48, 13")
    q(f"v_lshlrev_b32 v21, 7, v{L}")
    q(f"v_add_u32 v21, s48, v21")
    q(f"v_min_u32 v21, LK_end-LT_pc-4, v21")
    q.l.append(Raw(f"    global_load_dword v{EP+7}, v21, s[46:47]"))
    q("LT_nocode:")

def late_touch():
    q = Prog()
    L = V_LANE
    q(f"v_mul_u32_u24 v{T3}, 21846, v{L}")
    q(f"v_lshrrev_b32 v{T3}, 16, v{T3}")
    q(f"v_mul_u32_u24 v{T4}, 3, v{T3}")
    q(f"v_sub_u32 v{T4}, v{L}, v{T4}")
    q(f"v_mul_u32_u24 v{T3}, 9216, v{T3}")
    q(f"v_lshl_add_u32 v{T3}, v{T4}, 7, v{T3}")
    q(f"s_mul_i32 s41, s{S_J}, 288")
    q("s_and_b32 s41, s41, 0xffffff80")
    q(f"s_mul_i32 s42, s{S_BT}, {18*9216}")
    q("s_add_u32 s41, s41, s42")
    q(f"buffer_load_dword v{V_A}, v{T3}, {sr(S_WG)}, s41 offen")
    q(f"buffer_load_dword v{V_Bq}, v{T3}, {sr(S_WU)}, s41 offen")
    return q

def token_issue():
    q = Prog(); q(TOKLD); return q
def token_share():
    q = Prog()
    q(f"s_lshl_b32 s40, s{S_W}, 3")
    q(f"s_add_u32 s40, s40, {TOKA}")
    q(f"v_mov_b32 v{T1}, s40")
    q.b(f"v_readfirstlane_b32 s40, v{TKR}", f"s_or_b32 s40, s40, s{S_W}", "s_cbranch_scc0 LT_slow", "LT_ok:")
    s = Prog()
    s("LT_slow:"); s(f"s_mov_b32 s{S_SPIN}, 0"); s("LT_spin:"); s("s_sleep 2"); s(TOKLD); s("s_waitcnt vmcnt(0)")
    s(f"v_readfirstlane_b32 s40, v{TKR}"); s(f"s_add_u32 s{S_SPIN}, s{S_SPIN}, 1"); s("s_cmp_lg_u32 s40, 0"); s("s_cbranch_scc1 LT_ok")
    s(f"s_cmp_lt_u32 s{S_SPIN}, {SPIN}"); s("s_cbranch_scc1 LT_spin"); s("s_branch LT_ok")
    SLOW.append(s)
    q(f"ds_write_b64 v{T1}, {vr(TKR,2)}")
    return q
def token_and_stats():
    q = Prog()
    q(f"v_mov_b32 v{T1}, {TOKA}")
    q(f"ds_read_b64 {vr(TKR,2)}, v{T1}")
    q(f"v_readfirstlane_b32 s{S_TOK}, v{TKR}")
    q(f"v_readfirstlane_b32 s{S_TOK+1}, v{TKR+1}")
    q(f"v_mov_b32 v{STG+2}, v{TKR}")
    q(f"v_mov_b32 v{STG+3}, v{TKR+1}")
    q(f"buffer_store_dwordx4 {vr(STG,4)}, v{GA}, {sr(S_FL)}, 0 offen sc1")
    q.b(f"s_add_u32 s{S_HF}, s{P_WS}, {HF_OFF}", f"s_addc_u32 s{S_HF+1}, s{P_WS+1}, 0")
    q(f"s_mov_b32 s{S_HF+2}, {HF_SZ}")
    return q

def fold_flag():
    q = Prog()
    q(f"s_lshl_b32 s40, s{S_J}, 5")
    q(f"s_add_u32 s40, s40, s{S_BT}")
    q("s_lshl_b32 s40, s40, 3")
    q.wait(vm=["fold"])
    flag_store(q, 40, T1)
    return q

def st_loads():
    return [f"buffer_load_dwordx4 {vr(STG+4*tt,4)}, v{T3}, {sr(S_FL)}, 0 offen offset:{512*tt} sc1" for tt in range(2)]
def fw_load(): return f"buffer_load_dwordx2 {vr(T1,2)}, v{T4}, {sr(S_FL)}, 0 offen sc1"
def handoff_issue():
    q = Prog()
    q(f"s_lshl_b32 s40, s{S_MT}, 2")
    q(f"s_add_u32 s40, s40, s{S_W}")
    q("s_lshl_b32 s40, s40, 10")
    q(f"s_add_u32 s40, s40, {STO}")
    q(f"v_and_b32 v{T3}, 31, v{V_LANE}")
    q(f"v_lshl_add_u32 v{T3}, v{T3}, 4, s40")
    q(f"s_lshl_b32 s40, s{S_J}, 8")
    q(f"v_min_u32 v{T4}, 17, v{V_LANE}")
    q(f"v_lshl_add_u32 v{T4}, v{T4}, 3, s40")
    q(fw_load())
    for l in st_loads(): q(l)
    return q
def fw_check():
    q = Prog(); check_tokens(q, "W", [fw_load()], [T1]); return q
def st_check():
    q = Prog()
    check_tokens(q, "S", st_loads(), [STG+2, STG+6])
    q(f"v_cmp_gt_u32 vcc, 32, v{V_LANE}")
    for tt in range(2):
        q(f"v_cvt_pk_bf16_f32 v{STG+4*tt}, -v{STG+4*tt}, -v{STG+4*tt}")
        q(f"v_mul_f32 v{RL+tt}, s{S_NL2E}, v{STG+4*tt+1}")
    for tt in range(2): q(f"v_cndmask_b32 v{MB+2*tt}, v{CSA+1}, v{STG+4*tt}, vcc")
    return q

def cs_write(reg, area, dist=False):
    q = Prog()
    a = V_CW
    if dist:
        q(f"s_mul_i32 s40, s{S_W}, {SCR_W - 128}")
        q(f"v_add_u32 v{V_Bq}, s40, v{V_CW}")
        a = V_Bq
    if OPTS.get("nofix"): q("s_nop 0")
    else: q.b("s_mov_b64 exec, 0xffff", f"ds_write_b64 v{a}, {vr(reg,2)} offset:{area}", "s_mov_b64 exec, -1", tag="csw")
    return q

def mean_fix(q, st, area, stride=128):
    if OPTS.get("nofix"):
        q("s_nop 0"); return
    t = EP
    for w in range(4): q(f"ds_read_b32 v{t+w}, v{V_CR} offset:{area + w*stride}")
    q(f"v_add_f32 v{t}, v{t}, v{t+1}")
    q(f"v_add_f32 v{t+2}, v{t+2}, v{t+3}")
    q(f"v_add_f32 v{t}, v{t}, v{t+2}")
    q(f"v_cvt_pk_bf16_f32 v{t+1}, v{t}, v{t}")
    q(f"v_lshlrev_b32 v{t+1}, 16, v{t+1}")
    q(f"v_sub_f32 v{t+1}, v{t}, v{t+1}")
    q(f"v_cvt_pk_bf16_f32 v{CSA}, v{t}, v{t+1}")
    for tt in range(2):
        q(f"{MF8} {vr(acc(st,tt),16)}, {vr(CSA,2)}, {vr(MB+2*tt,2)}, {vr(acc(st,tt),16)}")

def ffn_epi(st, c, q=None):
    q = q or Prog()
    u, xy = c // 2, c & 1
    for tt in range(2):
        a = acc(st, tt)
        for r in range(8): q(f"v_mul_f32 v{EP+r}, {'s55' if OPTS.get('sgp') else 'v%d' % (RL+tt)}, v{a+r}")
        for r in range(8): q(f"v_exp_f32 v{EP+r}, v{EP+r}")
        for r in range(8): q(f"v_mul_f32 v{a+r}, v{a+r}, v{a+8+r}")
        for r in range(8): q(f"v_add_f32 v{EP+r}, 1.0, v{EP+r}")
        for r in range(8): q(f"v_rcp_f32 v{EP+r}, v{EP+r}")
        q(f"s_add_u32 s{S_SO2}, s{S_CG+u}, {xy*512 + tt*294912}")
        for r in range(8): q(f"v_mul_f32 v{a+r}, v{a+r}, v{EP+r}")
        for r in range(4): q(f"v_cvt_pk_bf16_f32 v{a+8+r}, v{a+2*r}, v{a+2*r+1}")
        if OPTS.get("nost"): q("s_nop 0")
        else: q(f"buffer_store_dwordx4 {vr(a+8,4)}, v{V_H}, {sr(S_HF)}, s{S_SO2} offen {OPTS.get('hst', 'sc1')}", tag=f"h{c}")
    return q

def softmax2(q, src, outs, rl):
    m, n, t, c1, c2, t2 = SM, SM+1, SM+2, SM+3, SM+4, SM+5
    q(f"v_max3_f32 v{m}, v{src[0]}, v{src[1]}, v{src[2]}")
    q(f"v_max3_f32 v{n}, -v{src[0]}, -v{src[1]}, -v{src[2]}")
    q(f"v_max3_f32 v{c1}, v{src[3]}, v{src[4]}, v{src[5]}")
    q(f"v_max3_f32 v{c2}, -v{src[3]}, -v{src[4]}, -v{src[5]}")
    q(f"v_max3_f32 v{t}, v{src[6]}, v{src[7]}, v{src[8]}")
    q(f"v_max3_f32 v{t2}, -v{src[6]}, -v{src[7]}, -v{src[8]}")
    q(f"v_max3_f32 v{m}, v{m}, v{c1}, v{t}")
    q(f"v_max3_f32 v{n}, v{n}, v{c2}, v{t2}")
    q(f"v_permlane32_swap_b32 v{m}, v{n}")
    q(f"v_max_f32 v{m}, v{m}, v{n}")
    q(f"v_mul_f32 v{m}, v{rl}, v{m}")
    q(f"v_mov_b32 v{n}, v{m}")
    q(f"v_permlane32_swap_b32 v{m}, v{n}")
    for i in range(9): q(f"v_fma_f32 v{E+i}, v{src[i]}, v{rl}, v{n}")
    for i in range(9): q(f"v_fma_f32 v{src[i]}, -v{src[i]}, v{rl}, v{m}")
    for i in range(9): q(f"v_exp_f32 v{E+i}, v{E+i}")
    for i in range(9): q(f"v_exp_f32 v{src[i]}, v{src[i]}")
    q(f"v_add_f32 v{n}, v{E}, v{E+1}")
    q(f"v_add_f32 v{c2}, v{E+2}, v{E+3}")
    q(f"v_add_f32 v{m}, v{src[0]}, v{src[1]}")
    q(f"v_add_f32 v{c1}, v{src[2]}, v{src[3]}")
    for i in (4, 6):
        q(f"v_add_f32 v{n}, v{n}, v{E+i}")
        q(f"v_add_f32 v{c2}, v{c2}, v{E+i+1}")
        q(f"v_add_f32 v{m}, v{m}, v{src[i]}")
        q(f"v_add_f32 v{c1}, v{c1}, v{src[i+1]}")
    q(f"v_add_f32 v{n}, v{n}, v{E+8}")
    q(f"v_add_f32 v{m}, v{m}, v{src[8]}")
    q(f"v_add_f32 v{n}, v{n}, v{c2}")
    q(f"v_add_f32 v{m}, v{m}, v{c1}")
    q(f"v_permlane32_swap_b32 v{m}, v{n}")
    q(f"v_add_f32 v{m}, v{m}, v{n}")
    q(f"v_rcp_f32 v{m}, v{m}")
    q(f"v_mov_b32 v{n}, v{m}")
    q(f"v_permlane32_swap_b32 v{m}, v{n}")
    for i in range(9): q(f"v_mul_f32 v{src[i]}, v{src[i]}, v{m}")
    for i in range(9): q(f"v_mul_f32 v{E+i}, v{E+i}, v{n}")
    allv = list(src) + [E + i for i in range(9)]
    for i in range(9): q(f"v_cvt_pk_bf16_f32 v{outs[i]}, v{allv[2*i]}, v{allv[2*i+1]}")

def moves_a2(q):
    for tt in range(2): q(f"v_mul_f32 v{SM+tt}, 0x{np_f32(-1/L2E):08x}, v{RL+tt}")
    q(f"v_lshrrev_b32 v{SM+2}, 5, v{V_LANE}")
    q(f"v_cvt_f32_u32 v{SM+2}, v{SM+2}")
    for tt in range(2):
        a = acc(0, tt); m = MV + 8*tt
        q(f"v_mov_b32 v{m+6}, v{a}")
        q(f"v_mov_b32 v{m+7}, v{a+1}")
        for r in range(10):
            if r == 8: q(f"v_fma_f32 v{a+10}, v{a+10}, v{SM+tt}, v{SM+2}")
            else: q(f"v_mul_f32 v{a+2+r}, v{a+2+r}, v{SM+tt}")
        for r in range(5): q(f"v_cvt_pk_bf16_f32 v{m+r}, v{a+2+2*r}, v{a+3+2*r}")

PA = KA + 24
def k_part(q):
    KF = E
    for tt in range(2):
        a = acc(4, tt); m = MV + 8*tt
        src = [a+9+i for i in range(7)] + [m+6, m+7]
        outs = [a+10, a+11, a+12, a+13, a+14, a+15, E, E+1, m+5]
        softmax2(q, src, outs, RL+tt)
        for off, r in ((0, a+10), (16, a+12), (32, a+14), (48, E), (64, m), (80, m+2), (96, m+4)):
            q(f"ds_write_b64 v{V_SW}, {vr(r,2)} offset:{off}")
        for f, cb in enumerate((0, 16, 32, 48)):
            for sec in range(2):
                q(f"ds_read_b64_tr_b16 {vr(KF+4*f+2*sec,2)}, v{V_SR} offset:{sec*4*SROW + cb*2}")
        part_addr(q, tt)
        for rt, fa in enumerate((0, 1, 3)):
            for ct, fb in enumerate((2, 3)):
                d = KA + 4*(2*rt + ct)
                q(f"{MF16} {vr(d,4)}, {vr(KF+4*fa,4)}, {vr(KF+4*fb,4)}, {vr(d,4) if tt else '0'}")
    A1, A2, A4, A5 = PA, PA+1, PA+2, PA+3
    q(f"ds_write_b128 v{A1}, {vr(KA,4)}")
    q(f"ds_write_b128 v{A1}, {vr(KA+8,4)} offset:1024")
    q.b("s_mov_b32 exec_lo, 0xff00ff", "s_mov_b32 exec_hi, 0xff00ff", f"ds_write_b128 v{A2}, {vr(KA+4,4)} offset:2048",
        f"ds_write_b128 v{A2}, {vr(KA+12,4)} offset:2560", "s_mov_b32 exec_hi, 0", f"ds_write_b64 v{A5}, {vr(KA+22,2)} offset:3328",
        "s_mov_b32 exec_lo, -1", f"ds_write_b64 v{A4}, {vr(KA+18,2)} offset:3072", "s_mov_b32 exec_hi, -1")

def part_addr(q, half):
    L = V_LANE; A1, A2, A4, A5 = PA, PA+1, PA+2, PA+3
    if half == 0:
        q(f"s_mul_i32 s40, s{S_W}, {SCR_W}")
        q(f"s_add_u32 s40, s40, {SCR}")
        q(f"v_lshl_add_u32 v{A1}, v{L}, 4, s40")
        q(f"v_lshrrev_b32 v{V_A}, 4, v{L}")
        q(f"v_and_b32 v{V_Bq}, 15, v{L}")
        q(f"v_lshl_add_u32 v{V_A}, v{V_A}, 3, v{V_Bq}")
        q(f"v_lshl_add_u32 v{A2}, v{V_A}, 4, s40")
        q(f"v_lshl_add_u32 v{A4}, v{L}, 3, s40")
        q(f"v_lshl_add_u32 v{A5}, v{V_A}, 3, s40")

def kv_reduce():
    q = Prog()
    L = V_LANE; A1, A2, G1_, G2_ = T1, T2, T3, T4
    T = MV
    q(f"s_and_b32 s40, s{S_W}, 1")
    q(f"s_lshr_b32 s41, s{S_W}, 1")
    q.b("s_cmp_eq_u32 s41, 0", "s_cselect_b64 vcc, -1, 0")
    q(f"v_cndmask_b32 v{A1}, v{V_A}, v{L}, vcc")
    q("s_lshl_b32 s42, s40, 10")
    q("s_lshl_b32 s43, s40, 9")
    q("s_add_u32 s43, s43, 2048")
    q.b("s_cmp_eq_u32 s41, 0", "s_cselect_b32 s42, s42, s43")
    q(f"s_add_u32 s42, s42, {SCR}")
    q(f"v_lshl_add_u32 v{A1}, v{A1}, 4, s42")
    for w in range(4): q(f"ds_read_b128 {vr(T+4*w,4)}, v{A1} offset:{w*SCR_W}")
    q.b("s_cmp_eq_u32 s40, 0", "s_cselect_b64 vcc, -1, 0")
    q(f"v_cndmask_b32 v{A2}, v{V_A}, v{L}, vcc")
    q("s_lshl_b32 s42, s40, 8")
    q(f"s_add_u32 s42, s42, {SCR+3072}")
    q(f"v_lshl_add_u32 v{A2}, v{A2}, 3, s42")
    U = (RA+12, RA+14, RA+28, RA+30)
    for w in range(4): q(f"ds_read_b64 {vr(U[w],2)}, v{A2} offset:{w*SCR_W}")
    q(f"v_lshrrev_b32 v{G1_}, 5, v{L}")
    q(f"v_lshlrev_b32 v{G1_}, 10, v{G1_}")
    q(f"v_bfe_u32 v{G2_}, v{L}, 4, 1")
    q(f"v_lshlrev_b32 v{G2_}, 7, v{G2_}")
    q(f"v_lshl_add_u32 v{G2_}, v{V_Bq}, 2, v{G2_}")
    q("s_lshl_b32 s42, s40, 11")
    q("s_lshl_b32 s43, s41, 6")
    q("s_add_u32 s42, s42, s43")
    q(f"v_add3_u32 v{G1_}, v{G1_}, v{G2_}, s42")
    q("s_lshl_b32 s43, s41, 3")
    q("s_sub_u32 s43, 16, s43")
    q(f"v_cmp_gt_u32 vcc, s43, v{V_Bq}")
    q(f"v_mov_b32 v{A1}, {OOB}")
    q(f"v_cndmask_b32 v{G1_}, v{A1}, v{G1_}, vcc")
    q("s_lshl_b32 s42, s40, 6")
    q("s_add_u32 s42, s42, 4096")
    q(f"v_add_u32 v{G2_}, s42, v{G2_}")
    q("s_lshl_b32 s43, s40, 3")
    q("s_sub_u32 s43, 16, s43")
    q.b("s_cmp_eq_u32 s41, 0", "s_cselect_b32 s43, s43, 0")
    q(f"v_cmp_gt_u32 vcc, s43, v{V_Bq}")
    q(f"v_cmp_gt_u32 s[42:43], 32, v{L}")
    q("s_and_b64 vcc, vcc, s[42:43]")
    q(f"v_cndmask_b32 v{G2_}, v{A1}, v{G2_}, vcc")
    for i in range(4):
        q(f"v_add_f32 v{T+i}, v{T+i}, v{T+4+i}")
        q(f"v_add_f32 v{T+8+i}, v{T+8+i}, v{T+12+i}")
    for i in range(2):
        q(f"v_add_f32 v{U[0]+i}, v{U[0]+i}, v{U[1]+i}")
        q(f"v_add_f32 v{U[2]+i}, v{U[2]+i}, v{U[3]+i}")
    for i in range(4): q(f"v_add_f32 v{T+i}, v{T+i}, v{T+8+i}")
    for i in range(2): q(f"v_add_f32 v{U[0]+i}, v{U[0]+i}, v{U[2]+i}")
    for i in range(4):
        q(f"buffer_atomic_add_f32 v{T+i}, v{G1_}, {sr(S_KV)}, s{S_KVB} offen offset:{i*256}", tag="atom")
    for i in range(2):
        q(f"buffer_atomic_add_f32 v{U[0]+i}, v{G2_}, {sr(S_KV)}, s{S_KVB} offen offset:{i*256}", tag="atom")
    return q

def fk_publish():
    q = Prog()
    q(f"s_lshl_b32 s40, s{S_J}, 5")
    q(f"s_add_u32 s40, s40, s{S_BT}")
    q("s_lshl_b32 s40, s40, 3")
    q(f"s_add_u32 s40, s40, {FL_K}")
    q.wait(vm=["atom"])
    flag_store(q, 40, T1)
    q(f"s_lshl_b32 s40, s{S_J}, 8")
    q(f"s_add_u32 s40, s40, {FL_K}")
    q(f"v_and_b32 v{T3}, 31, v{V_LANE}")
    q(f"v_lshl_add_u32 v{T3}, v{T3}, 3, s40")
    q(f"v_lshlrev_b32 v{T4}, 2, v{V_LANE}")
    return q
def fk_load(): return f"buffer_load_dwordx2 {vr(T1,2)}, v{T3}, {sr(S_FL)}, 0 offen sc1"
KVL = MV; KVF = 100
def fk_check_and_load():
    q = Prog()
    check_tokens(q, "K", [fk_load()], [T1])
    q(f"s_add_u32 s40, s{S_KVB}, 4096")
    for s in range(18):
        so = f"s{S_KVB}" if s < 16 else "s40"
        q(f"buffer_load_dword v{KVL+s}, v{T4}, {sr(S_KV)}, {so} offen offset:{(s&15)*256} sc1")
    return q

def q_part():
    q = Prog()
    for tt in range(2):
        a = acc(4, tt)
        softmax2(q, [a+i for i in range(9)], [a+i for i in range(9)], RL+tt)
        for r in (9, 10, 11): q(f"v_mov_b32 v{a+r}, 0")
    return q

def o_finish():
    q = Prog()
    for i in range(9): q(f"v_cvt_pk_bf16_f32 v{KVF+i}, v{KVL+2*i}, v{KVL+2*i+1}")
    for r in (9, 10, 11): q(f"v_mov_b32 v{KVF+r}, 0")
    D_ = (acc(0, 0), acc(0, 1))
    L = V_LANE
    q(f"v_bfe_u32 v{T1}, v{L}, 4, 1")
    q(f"v_lshlrev_b32 v{T1}, 14, v{T1}")
    q(f"v_and_b32 v{T2}, 15, v{L}")
    q(f"v_lshl_add_u32 v{T1}, v{T2}, 4, v{T1}")
    q(f"v_lshrrev_b32 v{T2}, 5, v{L}")
    q(f"v_lshl_add_u32 v{T1}, v{T2}, 8, v{T1}")
    q(f"v_mul_u32_u24 v{T2}, 0x7ff000, v{T2}")
    q(f"v_lshlrev_b32 v{T2}, 8, v{T2}")
    q(f"v_lshl_add_u32 v{T2}, v{L}, 7, v{T2}")
    q(f"s_lshl_b32 s40, s{S_MT}, 3")
    q(f"s_lshl_b32 s41, s{S_W}, 1")
    q("s_add_u32 s40, s40, s41")
    q("s_lshl_b32 s42, s40, 12")
    q(f"s_lshl_b32 s41, s{S_J}, 2")
    q("s_add_u32 s42, s42, s41")
    q(f"s_add_u32 s42, s42, {OM_SZ}")
    q("s_lshl_b32 s40, s40, 15")
    q(f"s_lshl_b32 s41, s{S_J}, 9")
    q("s_add_u32 s40, s40, s41")
    q("s_add_u32 s41, s40, 32768")
    q("s_add_u32 s43, s42, 4096")
    for f in range(3):
        for tt in range(2):
            q(f"{MF} {vr(D_[tt],16)}, {vr(KVF+4*f,4)}, {vr(acc(4,tt)+4*f,4)}, {vr(D_[tt],16) if f else '0'}")
    for tt in range(2):
        d = D_[tt]
        q(f"v_mov_b32 v{d+12}, v{d+8}")
        q(f"v_mov_b32 v{d+13}, v{d+8}")
    for tt in range(2): q(f"v_permlane32_swap_b32 v{D_[tt]+12}, v{D_[tt]+13}")
    for tt in range(2):
        d = D_[tt]
        q(f"v_add_f32 v{d+13}, 0x{np_f32(1e-6):08x}, v{d+13}")
        q(f"v_rcp_f32 v{d+13}, v{d+13}")
    for tt in range(2):
        d = D_[tt]
        for r in range(10): q(f"v_mul_f32 v{d+r}, v{d+r}, v{d+13}")
        for r in range(5): q(f"v_cvt_pk_bf16_f32 v{d+r}, v{d+2*r}, v{d+2*r+1}")
        q(f"buffer_store_dwordx4 {vr(d,4)}, v{T1}, {sr(S_OF)}, s{40+tt} offen sc1")
        q(f"buffer_store_dword v{d+4}, v{T2}, {sr(S_OF)}, s{42+tt} offen sc1")
    return q

def wd_prefetch(half):
    q = Prog()
    if half:
        q(f"v_add_u32 v{V_B0}, 4096, v{V_B0}")
        q(f"buffer_load_dword v{T2}, v{V_B0}, {sr(S_X)}, s{S_WFB} offen")
        return q
    q("s_lshl_b32 s40, s2, 2")
    q(f"s_add_u32 s40, s40, s{S_W}")
    q.b("s_cmp_lt_u32 s40, 648", f"s_cselect_b32 s{S_X}, s{P_WD}, s{P_WO}", f"s_cselect_b32 s{S_X+1}, s{P_WD+1}, s{P_WO+1}",
        f"s_cselect_b32 s41, 0, 648")
    q.b("s_cmp_lt_u32 s40, 648", f"s_mov_b32 s42, {WOIN_SZ}", f"s_cselect_b32 s{S_X+2}, {WG_SZ}, s42")
    q("s_sub_u32 s40, s40, s41")
    q(f"s_lshl_b32 s{S_WFB}, s40, 13")
    q(f"v_and_b32 v{V_B0}, 31, v{V_LANE}")
    q(f"v_lshlrev_b32 v{V_B0}, 7, v{V_B0}")
    q(f"buffer_load_dword v{T1}, v{V_B0}, {sr(S_X)}, s{S_WFB} offen")
    return q

def wg_flag(arr, tmp):
    q = Prog()
    q(f"s_add_u32 s40, s{S_FI}, s{S_W0}")
    q(f"s_add_u32 s40, s40, {arr}")
    flag_store(q, 40, tmp)
    return q

BFA = V_A
def b_decode():
    q = Prog()
    q("s_and_b32 s40, s2, 7")
    q("s_lshr_b32 s41, s2, 3")
    q("s_mul_i32 s42, s40, 29")
    q("s_min_u32 s43, s40, 2")
    q("s_add_u32 s42, s42, s43")
    q(f"s_add_u32 s{S_BT}, s42, s41")
    q.b("s_cmp_lt_u32 s40, 2", "s_cselect_b32 s43, 30, 29")
    q.b("s_cmp_lt_u32 s41, s43", f"s_cselect_b32 s{S_BT}, s{S_BT}, 255")
    q(f"s_mul_i32 s40, s{S_BT}, 21846")
    q("s_lshr_b32 s40, s40, 16")
    q("s_mul_i32 s41, s40, 2521")
    q(f"s_lshr_b32 s{S_KT}, s41, 16")
    q(f"s_mul_i32 s41, s{S_KT}, 26")
    q("s_sub_u32 s40, s40, s41")
    q("s_mul_i32 s41, s40, 6554")
    q("s_lshr_b32 s41, s41, 16")
    q(f"s_sub_u32 s41, s{S_KT}, s41")
    q("s_mul_i32 s41, s41, 10")
    q("s_add_u32 s41, s41, s40")
    q("s_mul_i32 s41, s41, 3")
    q(f"s_mul_i32 s42, s{S_KT}, 26")
    q("s_add_u32 s42, s42, s40")
    q("s_mul_i32 s42, s42, 3")
    q(f"s_sub_u32 s42, s{S_BT}, s42")
    q("s_add_u32 s41, s41, s42")
    q(f"s_min_u32 s{S_RG}, s41, 89")
    q("s_mul_i32 s40, s40, 80")
    q("s_add_u32 s41, s40, 79")
    q("s_min_u32 s40, s40, 2047")
    q("s_min_u32 s41, s41, 2047")
    q("s_and_b32 s40, s40, 0xf00")
    q("s_and_b32 s41, s41, 0xf00")
    q("s_sub_u32 s41, s41, 256")
    q(f"v_mov_b32 v{BFA}, s40")
    q(f"v_mov_b32 v{V_Bq}, s41")
    q(f"v_cmp_gt_u32 vcc, 32, v{V_LANE}")
    q(f"v_cndmask_b32 v{BFA}, v{V_Bq}, v{BFA}, vcc")
    q(f"v_lshl_add_u32 v{BFA}, v{V_LANE}, 3, v{BFA}")
    q(f"v_add_u32 v{BFA}, {FL_1}, v{BFA}")
    q(f"buffer_load_dwordx2 {vr(T1,2)}, v{BFA}, {sr(S_FL)}, 0 offen sc1")
    q.b("s_getpc_b64 s[42:43]", "LB_pc:")
    q(f"s_mul_i32 s40, s{S_RG}, 48")
    q.l.append(Sized("s_add_u32 s40, s40, LK_tab-LB_pc", 8))
    q(f"v_min_u32 v{V_Bq}, 47, v{V_LANE}")
    q(f"v_add_u32 v{V_Bq}, s40, v{V_Bq}")
    q(f"global_load_ubyte v{V_Bq}, v{V_Bq}, s[42:43]")
    return q

def stage_a(p):
    frags = []
    def tr(p_, off): return [("ds_read_b64_tr_b16", 0, 2, TR + p_, off), ("ds_read_b64_tr_b16", 2, 2, TR + p_, off + 256)]
    for g in range(9):
        for p_ in range(4):
            for c in range(4):
                upd = []
                if g and c == 0: upd = [f"v_add_u32 v{TR+p_}, {SLOT if g % 3 else (-2*SLOT) & 0xffffffff}, v{TR+p_}"]
                frags.append((tr(p_, (c >> 1)*512 + (c & 1)*32), c, 4*g + p_, CS4 + 4*c if p_ == 0 else None, upd))
    chains = ["A1", "A2", 4, 5, 6, 7, 8]
    cset = {"A1": 4, "A2": 0, 4: 2, 5: 3, 6: 0, 7: 2, 8: 3}
    cs = {}
    for k, c in enumerate(chains):
        cs[c] = len(frags)
        for s in range(36):
            g, p_ = s >> 2, s & 3
            upd = []
            if c in ("A1", "A2"):
                if s < 4: upd = [f"s_add_u32 s{S_SPIN}, s{S_WX+p_}, {0 if c == 'A1' else BUP}", f"v_add_u32 v{TR+p_}, s{S_SPIN}, v{V_B0}"]
                rd = [("ds_read_b128", 0, 4, TR + p_, g*4096)]
            else:
                if s < 4 and not (c & 1): upd = [f"s_add_u32 s{S_SPIN}, s{S_WX+p_}, {BUF[(c//2 + 1) & 1]}", f"v_add_u32 v{TR+p_}, s{S_SPIN}, v{V_TRL}"]
                rd = tr(p_, g*4096 + (c & 1)*32)
            frags.append((rd, cset[c], s, CSACC + 4*(k & 1) if p_ == 0 else None, upd))
    NF = len(frags)
    bars = {16*g: [f"W{g}"] for g in range(9)}
    bars[cs["A1"]] = ["T0"]
    bars[cs["A2"]] = ["T1"]
    bars[cs[4]] = ["U2"]
    bars[cs[6]] = ["U3"] + [f"h{c}" for c in range(4)]
    bars[cs[8]] = ["U4", "h4", "h5"]
    def reads(n):
        slot = RING + 4*(n & 3)
        return [I(t) for t in frags[n][4]] + [I(f"{op} {vr(slot+o,cnt)}, v{va} offset:{off}", tag=f"fr{n}") for (op, o, cnt, va, off) in frags[n][0]]
    def barrier(tags): return [WaitTag(vm=tags), I("s_waitcnt lgkmcnt(0)"), I("s_barrier")]
    p.add(x_copy(0))
    p.add(barrier(bars[0]))
    p.add(stamp(1))
    p.add(st5(7))
    for n in range(4): p.add(reads(n))
    main = []; G = {}
    for n in range(NF):
        _, st, s, csa, _ = frags[n]
        G[n] = len(main)
        slot = RING + 4*(n & 3)
        mf = [I(f"{MF} {vr(acc(st,tt),16)}, {vr(slot,4)}, {xreg(tt,s)}, {vr(acc(st,tt),16) if s else '0'}") for tt in range(2)]
        f0 = barrier(bars[n + 3]) + reads(n + 3) if (n + 3 < NF and (n + 3) in bars and n + 3 >= 4) else []
        f1 = []
        if n + 1 < NF: f1.append(WaitTag(lg=[f"fr{n+1}"]))
        if n + 4 < NF and (n + 4) not in bars: f1 += reads(n + 4)
        if csa is not None and not OPTS.get("nocs"):
            main.append((I(f"{MF16} {vr(csa,4)}, {vr(SEL,4)}, {vr(slot,4)}, {vr(csa,4) if s else '0'}"), []))
        main.append((mf[0], f0)); main.append((mf[1], f1))
    G[NF] = len(main)
    C = {c: G[cs[c]] for c in cs}; C[9] = G[NF]
    def bar_gap(n): return G[n - 3] + (1 if (frags[n-3][3] is not None and not OPTS.get("nocs")) else 0)
    S = []
    def add(a, b, q, after=None, paced=False):
        S.append((a, b, q, after, paced)); return len(S) - 1
    for g in range(9):
        a, b = G[16*g], bar_gap(16*(g+1))
        q = Prog()
        if g == 0: q.add(fold_loads())
        if g + 2 < 9: q.add(ring_group(g + 2)); add(a, b + 5 - OPTS.get("rend", 0), q, None, OPTS.get("rpace", 1) == 1)
        if g + 1 < 9: add(b - 10, b, x_copy(g + 1))
    st = add(0, G[16] + OPTS.get("f0", 8), stats_stream())
    add(G[16], G[17], late_srds())
    add(G[16] + OPTS.get("f0", 8), G[52], fold_stream())
    add(G[20], G[21], token_issue())
    add(G[52], bar_gap(64), token_share())
    add(G[64], G[69], token_and_stats())
    add(G[80], G[83], fold_flag())
    add(G[16*6] + 8, G[16*6] + 16, handoff_issue())
    k = add(G[16*7], G[16*7] + 2, fw_check())
    add(G[16*7] + 2, bar_gap(16*8) - 10, dma_wf(0), None, True)
    add(G[16*8] + 14, G[16*8] + 22, st_check())
    q = Prog()
    for c in range(4): q.add(cs_write(CS4 + 4*c, 512*c))
    add(G[16*8 + 5], bar_gap(cs["A1"]), q)
    add(G[16*8], G[16*8] + 26, dma_wf(1), None, True)
    q = Prog()
    for g in range(9): q.add(dma_unit_group(2, g))
    add(C["A1"] - 4, C["A2"] + OPTS.get("dend", 10), q, None, True)
    for u, c in ((3, 4), (4, 6)):
        q = Prog()
        for g in range(9): q.add(dma_unit_group(u, g))
        add(C[c] - 4, C[c+1] + OPTS.get("dend", 10), q, None, True)
    area = {"A1": 2048, "A2": CSX, 4: CSX + 512, 5: CSX + 1024, 6: CSX, 7: CSX + 512, 8: CSX + 1024}
    nxt = {"A1": "A2", "A2": 4, 4: 5, 5: 6, 6: 7, 7: 8}
    MB_ = 12
    for k_, c in enumerate(chains[:-1]):
        add(C[nxt[c]] - 3, C[nxt[c]] + 6, cs_write(CSACC + 4*(k_ & 1), area[c]))
        if c != 4:
            g = C[nxt[c]] + MB_ - 1
            main[g] = (main[g][0], [WaitTag(lg=["csw"]), I("s_barrier")] + main[g][1])
    prev = None
    q = Prog()
    mean_fix(q, 0, 0); mean_fix(q, 1, 512); ffn_epi(0, 0, q); mean_fix(q, 2, 1024)
    prev = add(C["A1"] - 3, C["A2"] - 30, q)
    q = Prog(); ffn_epi(1, 1, q); mean_fix(q, 3, 1536)
    prev = add(C["A1"], C["A2"] + 5, q, prev)
    prev = add(C["A2"], C[4] - 40, ffn_epi(2, 2), prev)
    q = Prog(); mean_fix(q, 4, area["A1"]); ffn_epi(3, 3, q)
    prev = add(C["A2"] + MB_, C[4] + 6, q, prev)
    q = Prog(); mean_fix(q, 0, area["A2"])
    fixa2 = prev = add(C[4] + MB_, C[4] + MB_ + 10, q, prev)
    for c, st, a, dl in ((4, 2, C[6], C[7] - 1), (5, 3, C[6] + MB_, bar_gap(cs[8]) - 30), (6, 0, C[7] + MB_, C[8] + 10), (7, 2, C[8] + MB_, C[9])):
        q = Prog(); mean_fix(q, st, area[c]); ffn_epi(st, c, q)
        prev = add(a, dl, q, prev)
    q = Prog(); moves_a2(q); k_part(q)
    kp = add(C[4] + MB_, C[5] + 50, q, fixa2)
    add(C["A2"] + 10, C["A2"] + 20, wd_prefetch(0))
    add(C[5] + 12, C[5] + 14, wd_prefetch(1))
    red = add(C[6] - 2, C[6] + 30, kv_reduce())
    add(C[6] + 30, C[6] + 34, wg_flag(FL_1, T1))
    add(C[5], C[7] + 30, q_part(), kp)
    add(C[8] - 2, C[8] + 2, wg_flag(FL_M, V_A))
    add(C[6] + 62, C[7], fk_publish())
    q = Prog(); q(fk_load()); add(C[7] + 40, C[7] + 42, q)
    add(C[8] + 2, C[8] + 40, fk_check_and_load(), None, True)
    add(C[8] + 40, C[9] - 18, o_finish())
    add(C[9] - 18, C[9] - 4, b_decode())
    if OPTS.get("time") == 2:
        for i, g in enumerate([C["A1"], C["A2"], C[4], C[5], C[6], C[7], C[8]]):
            main[g-1] = (main[g-1][0], main[g-1][1] + [I(f"s_memtime {sr(STAMPS[i+1],2)}")])
        p(f"s_memtime {sr(STAMPS[0],2)}")
    if OPTS.get("time") == 4:
        for i in range(1, 8):
            g = G[16*(i + 1)] if i > 1 else G[16]
            main[g-1] = (main[g-1][0], main[g-1][1] + [I(f"s_memtime {sr(STAMPS[i],2)}")])
        p(f"s_memtime {sr(STAMPS[0],2)}")
    import asmgen
    asmgen.BYTES32 = OPTS.get("b32", 48); asmgen.CARRY = OPTS.get("carry", 8); asmgen.VMEM_COST = OPTS.get("vmc", 2); asmgen.CAP16 = OPTS.get("cap16", 2); asmgen.LAT_DS = OPTS.get("lat", 4)
    woven, loads = weave(main, S, OPTS.get('cap', 6))
    if OPTS.get("verbose"):
        print("done at", weave.done_at, C, file=sys.stderr)
        pts = [0, 72, 144, 216] + [C[c] for c in chains] + [C[9]]
        for a, b in zip(pts[:-1], pts[1:]):
            print("gaps", a, b, "slack", -sum(loads[a:b]), "over", sum(max(0, x) for x in loads[a:b]), file=sys.stderr)
    p.add(woven)
    AREA8[0] = area[8]
    a_tail_and_b(p, area[8])
BSLOT = 36864; BWD = 12288
SWO = 20480
B_WD, B_WO, B_X, B_OUT, B_PX = 4, 8, 12, 16, 24
B_M, B_N3, B_HB, B_WDB, B_HO, B_WDO, B_MH, B_IT, B_IH, B_IW, B_MW = 37, 38, 45, 46, 47, 48, 49, 50, 51, 52, 53
BV_H, BV_D, BV_TR, BV_HR, BV_T, BV_O, BV_FD, BT0, BT1, BV_RS, BV_XO = 16, 19, 25, 28, 29, 30, 32, 34, 35, 36, 9
BV_TAB, BV_FA = V_Bq, V_A
ACC1, WFR, ACC2, XR, PIN = 48, 108, 160, 240, 180
SD, SXO, SRS = 4, 9, 14
Q_MH, Q_HO, Q_MW, Q_WDO, Q_RO, Q_RM, Q_RW, Q_PX = 66, 67, 68, 69, 3, 39, 44, 56
def hfr(st, tt, k): return ar(40*st + 8*tt + 4*k, 4)
def wfr(st, i, k): return WFR + 24*st + 8*i + 4*k
def ofr(st, tt, k): return ar(80 + 80*st + 16*tt + 4*k, 4)
def acc1(i, tt): return ACC1 + 20*i + 4*tt

def b_issue(p, slot, tag):
    p(f"v_readlane_b32 s40, v{BV_TAB}, s{B_IH}")
    p(f"v_readlane_b32 s41, v{BV_TAB}, s{B_IW}")
    p(f"s_add_u32 m0, s{B_MH}, {slot*BSLOT}")
    p(f"s_lshl_b32 s40, s40, 10")
    p(f"s_add_u32 s{B_HO}, s{B_HB}, s40")
    p(f"s_mul_i32 s{B_WDO}, s41, {32*1152}")
    for i in range(3):
        p(f"buffer_load_dwordx4 v{BV_H+i}, {sr(S_HF)}, s{B_HO} offen {OPTS.get('hld', 'sc1')} lds", tag=tag)
        p("s_addk_i32 m0, 4096" if i < 2 else f"s_add_u32 m0, s{B_MW}, {slot*BSLOT}")
    p(f"s_add_u32 s{B_IH}, s{B_IH}, 2")
    for i in range(6):
        p(f"buffer_load_dwordx4 v{BV_D+i}, {sr(B_WD)}, s{B_WDO} offen lds", tag=tag)
        if i < 5: p(f"s_addk_i32 m0, {3072 if i & 1 else 1024}")
    p(f"s_add_u32 s{B_IW}, s{B_IW}, 2")

def step(slot): return BSLOT if slot != 3 else (-3*BSLOT) & 0xffffffff
def b_reads(p, slot, st):
    for i in range(3):
        for k in range(2):
            for sec in range(2):
                p(f"ds_read_b64_tr_b16 {vr(wfr(st,i,k)+2*sec,2)}, v{BV_TR+i} offset:{k*BWD + sec*1024}")
        for tt in ((0, 1), (2, 3), (4,))[i]:
            for k in range(2): p(f"ds_read_b128 {hfr(st,tt,k)}, v{BV_HR} offset:{(2*tt+k)*1024}")
    for r in (BV_TR, BV_TR+1, BV_TR+2, BV_HR): p(f"v_add_u32 v{r}, {step(slot)}, v{r}")
def b_mfma(st):
    return [I(f"{MF16} {vr(acc1(i,tt),4)}, {vr(wfr(st,i,k),4)}, {hfr(st,tt,k)}, {vr(acc1(i,tt),4)}")
            for i in range(3) for tt in range(5) for k in range(2)]

def s_issue(p, i):
    b = (i % 4) * BSLOT
    if i < 4:
        p(f"s_add_u32 m0, s{Q_MH}, {b}")
        p(f"s_add_u32 s40, s{Q_HO}, {i*4096}")
        for tt in range(5):
            p(f"buffer_load_dwordx4 v{BV_O}, {sr(S_OF)}, s40 offen sc1 lds", tag=f"S{i}")
            p("s_addk_i32 m0, 4096" if tt < 4 else f"s_add_u32 m0, s{Q_MW}, {b}")
            p("s_addk_i32 s40, 16384" if tt < 4 else f"s_add_u32 s40, s{Q_WDO}, {i*144*1152}")
        for i4 in range(4):
            p(f"buffer_load_dwordx4 v{SD}, {sr(B_WO)}, s40 offen lds", tag=f"S{i}")
            if i4 < 3:
                p("s_addk_i32 m0, 1024")
                p(f"s_addk_i32 s40, {(14 if i4 & 1 else 4)*1152}")
    else:
        p(f"s_add_u32 m0, s{Q_MH}, {b}")
        for k in range(3):
            p(f"s_add_u32 s40, s{Q_RO}, {k*4096}")
            p(f"buffer_load_dwordx4 v{SD+2}, {sr(S_OF)}, s40 offen sc1 lds", tag=f"S{i}")
            if k < 2: p("s_addk_i32 m0, 4096")
        for blk in range(2):
            p(f"s_add_u32 m0, s{Q_RM}, {b + blk*1024}")
            p(f"s_add_u32 s40, s{Q_RW}, {blk*36*1152}")
            p(f"buffer_load_dwordx4 v{SD+1}, {sr(B_WO)}, s40 offen lds", tag=f"S{i}")
def s_reads(p, i):
    nk = 4 if i < 4 else 2
    for k in range(nk):
        for sec in range(2):
            p(f"ds_read_b64_tr_b16 {vr(WFR+24*(i&1)+4*k+2*sec,2)}, v{BV_T} offset:{SWO + k*4096 + sec*1024}")
        for tt in range(5):
            if i < 4: p(f"ds_read_b128 {ofr(i&1,tt,k)}, v{BV_HR} offset:{tt*4096 + k*1024}")
            else: p(f"ds_read_b128 {ofr(i&1,tt,k)}, v{SD+3+k} offset:{tt*2048}")
    for r in (BV_T, BV_HR): p(f"v_add_u32 v{r}, {step(i % 4)}, v{r}")
def s_mfma(i):
    nk = 4 if i < 4 else 2
    return [I(f"{MF16} {vr(ACC2+4*tt,4)}, {vr(WFR+24*(i&1)+4*k,4)}, {ofr(i&1,tt,k)}, {vr(ACC2+4*tt,4) if (i or k) else '0'}")
            for tt in range(5) for k in range(nk)]

def b_stage(mf, reads, other, rd_end=0.75, late=()):
    import asmgen
    asmgen.CAP16 = 2; asmgen.BYTES32 = 48; asmgen.CARRY = 12; asmgen.VMEM_COST = 1
    n = len(mf)
    sides = []
    if reads: sides.append((0, max(1, int(n*rd_end)), reads))
    prev = None
    for o in other:
        if o: sides.append((0, n, o, prev, True)); prev = None
    for (g0, l) in late: sides.append((g0, n, l))
    w, _ = weave([(m, []) for m in mf], sides)
    return w

PADN = []
def time_out(p):
    if not OPTS.get("time"): return
    p("s_waitcnt vmcnt(0)")
    p.add(stamp(8))
    if OPTS.get("pad"):
        lab = f"LPAD{len(PADN)}"; PADN.append(1)
        p(f"{lab}:")
        p("s_memrealtime s[46:47]")
        p("s_waitcnt lgkmcnt(0)")
        p(f"s_sub_u32 s46, s46, s{S_TOK if OPTS.get('padtok') else STAMPS[0]}")
        if OPTS.get("padone"):
            p(f"s_cmp_eq_u32 s2, {OPTS['padone']}")
            p(f"s_cselect_b32 s46, s46, -1")
        p(f"s_cmp_lt_u32 s46, {OPTS['pad']}")
        p(f"s_cbranch_scc1 {lab}")
        return
    if OPTS.get("dbg"):
        p("s_load_dwordx2 s[46:47], s[0:1], 72")
        p("s_waitcnt lgkmcnt(0)")
        srd(p, 40, 46, 0, 256)
        p("s_and_b32 s44, s2, 63")
        p(f"s_or_b32 s44, s44, s{S_W}")
        p(f"s_cmp_eq_u32 s44, 0")
        p(f"s_cselect_b32 s44, 0, {OOB}")
        p("s_lshr_b32 s45, s2, 6")
        p("s_mul_i32 s45, s45, 12")
        p("s_add_u32 s44, s44, s45")
        p("s_add_u32 s44, s44, 16")
        for k, i in enumerate((1, 2, 8)):
            p(f"s_sub_u32 s45, s{STAMPS[i]}, s{STAMPS[0]}")
            p(f"v_mov_b32 v{28+k}, s45")
        p(f"buffer_store_dwordx3 v[28:30], v{V_FL}, s[40:43], s44 offen")
        return
    srd(p, 40, P_WS, WS_USED, 131072)
    p("s_waitcnt lgkmcnt(0)")
    for i in range(9): p(f"v_mov_b32 v{28+i}, s{STAMPS[i]}")
    p("s_lshl_b32 s44, s2, 2")
    p(f"s_add_u32 s44, s44, s{S_W}")
    p("s_lshl_b32 s44, s44, 6")
    p("v_mov_b32 v26, s44")
    p("buffer_store_dwordx4 v[28:31], v26, s[40:43], 0 offen")
    p("buffer_store_dwordx4 v[32:35], v26, s[40:43], 0 offen offset:16")
    p("buffer_store_dword v36, v26, s[40:43], 0 offen offset:32")

def zipweave(a, b):
    a = flat(a); b = flat(b)
    out = []; ia = ib = 0
    while ia < len(a) or ib < len(b):
        if ib >= len(b) or (ia < len(a) and ia * len(b) <= ib * len(a)):
            out.append(a[ia]); ia += 1
        else:
            out.append(b[ib]); ib += 1
    return out

def s_setup(c):
    L = V_LANE; a, b = 40, 41
    c(f"s_lshl_b32 s{Q_MH}, s{S_W}, 10")
    c(f"s_mul_i32 s{Q_HO}, s{B_M}, {5*16384}")
    c(f"s_add_u32 s{Q_HO}, s{Q_HO}, s{Q_MH}")
    c(f"s_lshl_b32 s{Q_MW}, s{S_W}, 12")
    c(f"s_add_u32 s{Q_MW}, s{Q_MW}, {SWO}")
    c(f"s_lshl_b32 s42, s{S_KT}, 7")
    c(f"s_add_u32 s{B_WDB}, s{B_WDB}, s42")
    c(f"s_mul_i32 s{Q_WDO}, s{S_W}, {36*1152}")
    c(f"s_add_u32 s{Q_WDO}, s{Q_WDO}, s{B_WDB}")
    c(f"v_bfe_u32 v{a}, v{L}, 4, 2")
    c(f"v_lshlrev_b32 v{a}, 1, v{a}")
    c(f"v_and_b32 v{b}, 7, v{L}")
    c(f"v_xor_b32 v{a}, v{a}, v{b}")
    c(f"v_lshlrev_b32 v{a}, 4, v{a}")
    c(f"v_bfe_u32 v{b}, v{L}, 3, 2")
    c(f"v_lshrrev_b32 v{SD+1}, 5, v{L}")
    c(f"v_lshl_add_u32 v{b}, v{SD+1}, 3, v{b}")
    c(f"v_mul_u32_u24 v{b}, 1152, v{b}")
    c(f"v_add_u32 v{SD}, v{a}, v{b}")
    c(f"v_mul_u32_u24 v{SD+1}, 72, v{SD+1}")
    c(f"v_bfe_u32 v{b}, v{L}, 4, 1")
    c(f"v_mul_u32_u24 v{b}, 18, v{b}")
    c(f"v_add_u32 v{SD+1}, v{SD+1}, v{b}")
    c(f"v_bfe_u32 v{b}, v{L}, 3, 1")
    c(f"v_add_u32 v{SD+1}, v{SD+1}, v{b}")
    c(f"v_mul_u32_u24 v{SD+1}, 1152, v{SD+1}")
    c(f"v_add_u32 v{SD+1}, v{SD+1}, v{a}")
    c(f"s_and_b32 s42, s{S_W}, 1")
    c("s_lshl_b32 s42, s42, 2")
    c(f"v_lshrrev_b32 v{a}, 4, v{L}")
    c(f"v_add_u32 v{a}, s42, v{a}")
    c(f"v_and_b32 v{b}, 7, v{L}")
    c(f"v_xor_b32 v{a}, v{a}, v{b}")
    c(f"v_and_b32 v{b}, 56, v{L}")
    c(f"v_lshlrev_b32 v{b}, 4, v{b}")
    c(f"v_lshl_add_u32 v{SD+2}, v{a}, 4, v{b}")
    c(f"v_bfe_u32 v{a}, v{L}, 1, 3")
    c(f"v_lshrrev_b32 v{b}, 4, v{L}")
    c(f"v_xor_b32 v{a}, v{a}, v{b}")
    c(f"v_and_b32 v{b}, 15, v{L}")
    c(f"v_lshlrev_b32 v{SD+3}, 7, v{b}")
    c(f"v_lshl_add_u32 v{SD+3}, v{a}, 4, v{SD+3}")
    c(f"v_xor_b32 v{SD+4}, 64, v{SD+3}")
    c(f"s_mul_i32 s42, s{B_M}, 80")
    c(f"v_add_u32 v{a}, s42, v{b}")
    c(f"v_lshlrev_b32 v{a}, 4, v{a}")
    c(f"v_add_u32 v{SRS}, {STO+4}, v{a}")
    c(f"s_lshl_b32 s43, s{S_W}, 3")
    c("s_add_u32 s42, s42, s43")
    c(f"v_lshrrev_b32 v{a}, 3, v{L}")
    c(f"v_add_u32 v{a}, s42, v{a}")
    c(f"v_mul_u32_u24 v{a}, 1152, v{a}")
    c(f"v_and_b32 v{b}, 7, v{L}")
    c(f"v_lshl_add_u32 v{a}, v{b}, 4, v{a}")
    c(f"v_add_u32 v{BV_XO}, s{B_WDB}, v{a}")
    c(f"v_add_u32 v{BV_XO+1}, {32*1152}, v{BV_XO}")
    c(f"s_lshr_b32 s42, s{S_W}, 1")
    c(f"s_mul_i32 s42, s42, {OOB}")
    c(f"s_add_u32 s42, s42, {64*1152}")
    c(f"v_add_u32 v{BV_XO+2}, s42, v{BV_XO}")
    c(f"s_mul_i32 s{Q_PX}, s{B_M}, 3")
    c(f"s_add_u32 s{Q_PX}, s{Q_PX}, s{B_N3}")
    c(f"s_mul_i32 s{Q_PX}, s{Q_PX}, {3*40960}")
    c(f"s_mul_i32 s{Q_RO}, s{B_M}, {80*128}")
    c(f"s_add_u32 s{Q_RO}, s{Q_RO}, s{Q_MH}")
    c(f"s_add_u32 s{Q_RO}, s{Q_RO}, {OM_SZ}")
    c(f"s_lshl_b32 s{Q_RM}, s{S_W}, 11")
    c(f"s_add_u32 s{Q_RM}, s{Q_RM}, {SWO}")
    c(f"s_mul_i32 s{Q_RW}, s{S_W}, {144*1152}")
    c(f"s_add_u32 s{Q_RW}, s{Q_RW}, s{B_WDB}")
    c(f"s_add_u32 s{Q_RW}, s{Q_RW}, {16*1152}")
    for i in range(3):
        c(f"s_mul_i32 s42, s{S_W}, 3")
        c(f"s_add_u32 s42, s42, {i}")
        c("s_and_b32 s43, s42, 3")
        c("s_lshr_b32 s42, s42, 2")
        c("s_lshl_b32 s43, s43, 10")
        c(f"s_sub_u32 s57, s{S_KT}, s42")
        c("s_add_u32 s57, s57, 2")
        c("s_mul_i32 s63, s57, 43")
        c("s_lshr_b32 s63, s63, 7")
        c("s_mul_i32 s63, s63, 3")
        c("s_sub_u32 s57, s57, s63")
        c("s_lshr_b32 s63, s57, 1")
        c(f"s_mul_i32 s63, s63, {OOB}")
        c("s_mul_i32 s57, s57, 20480")
        c("s_mul_i32 s42, s42, 40960")
        c("s_add_u32 s57, s57, s42")
        c(f"s_add_u32 s57, s57, s{Q_PX}")
        c("s_add_u32 s57, s57, s43")
        c(f"s_add_u32 s{PXS[i]}, s57, s63")

PXS = (60, 62, 64)
def a_tail_and_b(p, area8):
    L = V_LANE
    p.add(cs_write(CSACC, area8))
    p(f"s_add_u32 s{S_WFB}, s{S_FI}, s{S_W0}")
    p(f"s_add_u32 s{S_WFB}, s{S_WFB}, {FL_2}")
    p(f"s_mul_i32 s43, s{S_BT}, 21846")
    p("s_lshr_b32 s43, s43, 16")
    p("s_mul_i32 s42, s43, 3")
    p(f"s_sub_u32 s{B_N3}, s{S_BT}, s42")
    p(f"s_mul_i32 s42, s{S_KT}, 26")
    p(f"s_sub_u32 s{B_M}, s43, s42")
    srd(p, B_WD, P_WD, 0, WG_SZ)
    a, b = BT0, BT1
    p(f"s_lshr_b32 s40, s{S_W}, 1")
    p(f"s_and_b32 s41, s{S_W}, 1")
    p("s_mul_i32 s42, s40, 147456")
    p(f"v_lshl_add_u32 v{BV_H}, v{L}, 4, s42")
    p(f"v_add_u32 v{BV_H+1}, {2*147456}, v{BV_H}")
    p("s_cmp_eq_u32 s40, 0")
    p(f"s_cselect_b32 s42, 0, {OOB}")
    p(f"s_add_u32 s42, s42, {4*147456}")
    p(f"v_add_u32 v{BV_H+2}, s42, v{BV_H}")
    p("s_lshl_b32 s42, s40, 11")
    p(f"s_lshl_b32 s{B_MH}, s41, 10")
    p(f"s_add_u32 s{B_MH}, s{B_MH}, s42")
    p(f"s_mov_b32 s{B_IH}, s41")
    p(f"s_mov_b32 s{B_IW}, s40")
    p(f"s_mul_i32 s{B_MW}, s40, {BWD}")
    p("s_lshl_b32 s42, s41, 11")
    p(f"s_add_u32 s{B_MW}, s{B_MW}, s42")
    p(f"s_add_u32 s{B_MW}, s{B_MW}, {BWD}")
    p(f"v_lshrrev_b32 v{a}, 3, v{L}")
    p(f"v_mul_u32_u24 v{a}, 1152, v{a}")
    p(f"v_bfe_u32 v{b}, v{L}, 4, 2")
    p(f"v_lshlrev_b32 v{b}, 1, v{b}")
    p(f"v_and_b32 v{BV_D}, 7, v{L}")
    p(f"v_xor_b32 v{b}, v{b}, v{BV_D}")
    p(f"v_lshl_add_u32 v{a}, v{b}, 4, v{a}")
    p(f"s_mul_i32 s41, s41, {16*1152}")
    p(f"s_mul_i32 s{B_WDB}, s{B_N3}, 384")
    p(f"s_add_u32 s41, s41, s{B_WDB}")
    p(f"v_add_u32 v{BV_D}, s41, v{a}")
    for i in range(3):
        for blk in range(2):
            if i or blk: p(f"v_add_u32 v{BV_D+2*i+blk}, {i*128 + blk*9216}, v{BV_D}")
    p(f"s_mul_i32 s{B_HB}, s{B_M}, {5*147456}")
    check_tokens(p, "F1", [f"buffer_load_dwordx2 {vr(T1,2)}, v{BV_FA}, {sr(S_FL)}, 0 offen sc1"], [T1])
    p(f"v_mov_b32 v{BV_TAB}, v{BV_TAB}")
    p("s_waitcnt lgkmcnt(0)")
    p("s_barrier")
    p.add(stamp(2))
    p(f"s_cmp_eq_u32 s{S_BT}, 255")
    p("s_cbranch_scc1 LB_spare")
    epi = Prog(); mean_fix(epi, 3, area8)
    k = len(epi.l)
    ffn_epi(3, 8, epi)
    iss = Prog()
    for s_ in range(3): b_issue(iss, s_, f"D{s_}")
    srd(epi, B_X, P_X, 0, X_SZ)
    s_setup(epi)
    for r in range(60): epi(f"v_mov_b32 v{ACC1+r}, 0")
    for k in range(15):
        epi(f"v_mov_b32 v{PIN+4*k+2}, s{S_TOK}")
        epi(f"v_mov_b32 v{PIN+4*k+3}, s{S_TOK+1}")
    p.add(zipweave(epi.l, iss.l))
    srd(p, B_WO, P_WO, 0, WOIN_SZ)
    srd(p, B_OUT, P_OUT, 0, X_SZ)
    srd(p, B_PX, P_WS, PX_OFF, PX_SZ)
    p(f"v_add_u32 v{BV_FA}, {FL_M - FL_1}, v{BV_FA}")
    p(f"v_lshlrev_b32 v{BV_HR}, 4, v{L}")
    p(f"v_lshrrev_b32 v{a}, 5, v{L}")
    p(f"v_lshlrev_b32 v{a}, 11, v{a}")
    p(f"v_bfe_u32 v{b}, v{L}, 2, 3")
    p(f"v_lshl_add_u32 v{a}, v{b}, 7, v{a}")
    p(f"v_and_b32 v{BV_T}, 3, v{L}")
    p(f"v_lshl_add_u32 v{BV_O}, v{BV_T}, 3, v{a}")
    p(f"v_lshrrev_b32 v{b}, 1, v{b}")
    for i in range(3):
        p(f"s_mul_i32 s40, s{S_W}, 3")
        p(f"s_add_u32 s40, s40, {i}")
        p("s_and_b32 s41, s40, 3")
        p("s_lshr_b32 s40, s40, 2")
        p("s_lshl_b32 s40, s40, 12")
        p(f"s_add_u32 s40, s40, {BWD}")
        p(f"v_xor_b32 v{a}, s41, v{b}")
        p(f"v_lshl_add_u32 v{a}, v{a}, 5, v{BV_O}")
        p(f"v_add_u32 v{BV_TR+i}, s40, v{a}")
    p(f"v_xor_b32 v{a}, s{S_W}, v{b}")
    p(f"v_lshl_add_u32 v{BV_T}, v{a}, 5, v{BV_O}")
    p(f"v_mov_b32 v{BV_O}, v{BV_HR}")
    p.wait(vm=["D0"])
    p("s_barrier")
    b_issue(p, 3, "D3")
    b_reads(p, 0, 0)
    p.add(st3(5))
    p(f"s_mov_b32 s{B_IT}, 0")

def stage_b():
    out = ""
    L = V_LANE
    fl = f"buffer_load_dwordx2 {vr(BV_FD,2)}, v{BV_FA}, {sr(S_FL)}, 0 offen sc1"
    p = Prog()
    p("LB_loop:")
    for s in range(4):
        p(f"s_waitcnt vmcnt({19 if s else 18}) lgkmcnt(0)")
        p("s_barrier")
        if s == 0:
            p(f"s_and_b32 s40, s{B_IT}, 1")
            p("s_cbranch_scc0 LF2_ok")
            check_tokens(p, "F2", [fl], [BV_FD])
            p(f"s_cmp_eq_u32 s{B_IT}, 1")
            p(f"s_cselect_b32 s40, {FL_2 - FL_M}, 0")
            p(f"v_add_u32 v{BV_FA}, s40, v{BV_FA}")
        if s == 2:
            p(f"s_cmp_eq_u32 s{B_IT}, 0")
            p("s_cbranch_scc0 LB_pub")
            flag_store(p, S_WFB, BT0)
            p("LB_pub:")
        r = Prog(); b_reads(r, (s + 1) % 4, (s + 1) & 1)
        i_ = Prog(); b_issue(i_, s, "D")
        if s == 0: i_(fl)
        p.add(b_stage(b_mfma(s & 1), r.l, [i_.l]))
    p(f"s_add_u32 s{B_IT}, s{B_IT}, 1")
    p(f"s_cmp_lt_u32 s{B_IT}, 5")
    p("s_cbranch_scc1 LB_loop")
    out += render(pad_hazards(flat(p.l)))
    seed = Prog()
    for s in (1, 2, 3): b_issue(seed, s, f"D{s}")
    vm0 = [(set(i.wr), i.tag, i.kind) for i in seed.l if i.kind in VMK]
    p = Prog()
    p.add(st3(6))
    a, b = BT0, BT1
    d = Prog()
    for tt in range(5): d(f"buffer_load_dword v{BV_RS+tt}, v{SRS}, {sr(S_FL)}, 0 offen offset:{256*tt} sc1")
    for k in range(3): d(f"buffer_load_dwordx4 {vr(XR+4*k,4)}, v{BV_XO+k}, {sr(B_X)}, 0 offen")
    g = Prog(); s_issue(g, 4)
    extra = {1: d}
    def px(i):
        x = Prog()
        for tt in range(5):
            t = PIN + 20*i + 4*tt
            x(f"v_cvt_pk_bf16_f32 v{t}, v{acc1(i,tt)}, v{acc1(i,tt)+1}")
            x(f"v_cvt_pk_bf16_f32 v{t+1}, v{acc1(i,tt)+2}, v{acc1(i,tt)+3}")
            x(f"buffer_store_dwordx4 {vr(t,4)}, v{BV_O}, {sr(B_PX)}, s{PXS[i]} offen sc1")
            if tt < 4: x(f"s_addk_i32 s{PXS[i]}, 4096")
        return x.l
    for s in range(4):
        p.wait(vm=[f"D{s+1}" if s < 3 else "S0"])
        p("s_waitcnt lgkmcnt(0)")
        p("s_barrier")
        r = Prog()
        if s < 3: b_reads(r, s + 1, (s + 1) & 1)
        else: s_reads(r, 0)
        i_ = Prog()
        if s in extra: i_.add(extra[s])
        s_issue(i_, s)
        p.add(b_stage(b_mfma(s & 1), r.l, [i_.l], late=[(12, px(0)), (22, px(1))] if s == 3 else []))
    p.add(st3(7)); p.add(st6(0))
    OWN = BSLOT
    pxl = [f"buffer_load_dwordx4 {vr(PIN+20*src+4*tt,4)}, v{BV_H + src}, {sr(B_PX)}, s{40+tt if tt < 4 else 54} offen sc1"
           for src in range(2) for tt in range(5)]
    F_ = PIN + 40; T = ACC1
    silu = Prog()
    for tt in range(5): silu(f"v_mul_f32 v{BV_RS+tt}, v{BV_RS+tt}, v{BV_RS+tt}")
    for src in range(2):
        for tt in range(5):
            t = PIN + 20*src + 4*tt
            for k in range(2):
                silu(f"v_lshlrev_b32 v{t+2}, 16, v{t+k}")
                silu(f"v_and_b32 v{t+3}, 0xffff0000, v{t+k}")
                silu(f"v_add_f32 v{F_+4*tt+2*k}, v{F_+4*tt+2*k}, v{t+2}")
                silu(f"v_add_f32 v{F_+4*tt+2*k+1}, v{F_+4*tt+2*k+1}, v{t+3}")
    for r in range(20): silu(f"v_mul_f32 v{F_+r}, v{BV_RS+r//4}, v{F_+r}")
    for r in range(20): silu(f"v_mul_f32 v{T+r}, s{S_NL2E}, v{F_+r}")
    for r in range(20): silu(f"v_exp_f32 v{T+r}, v{T+r}")
    for r in range(20): silu(f"v_add_f32 v{T+r}, 1.0, v{T+r}")
    for r in range(20): silu(f"v_rcp_f32 v{T+r}, v{T+r}")
    for r in range(20): silu(f"v_mul_f32 v{F_+r}, v{F_+r}, v{T+r}")
    cutk = 70
    for i in range(5):
        if i < 4: p.wait(vm=[f"S{i+1}"])
        p("s_waitcnt lgkmcnt(0)")
        if i < 4: p("s_barrier")
        r = Prog()
        if i < 4: s_reads(r, i + 1)
        o = []
        if i == 0: o = [px(2), g.l]
        if i == 1:
            for k in range(3):
                p(f"s_cmp_lt_u32 s{PXS[k]}, {OOB}")
                p(f"s_cbranch_scc1 LB_x{k}")
                p(f"s_mul_i32 s40, s{S_W}, 3")
                p(f"s_add_u32 s40, s40, {k}")
                p("s_and_b32 s40, s40, 3")
                p("s_lshl_b32 s40, s40, 10")
                p(f"s_add_u32 s40, s40, {OWN}")
                p(f"v_add_u32 v{a}, s40, v{BV_O}")
                for tt in range(5): p.l.append(Raw(f"    ds_write_b128 v{a}, {vr(acc1(k,tt),4)} offset:{tt*4096}"))
                p(f"LB_x{k}:")
        if i == OPTS.get("pxi", 2):
            x = Prog()
            x(f"s_mul_i32 s40, s{S_KT}, 40960")
            x(f"s_add_u32 s40, s40, s{Q_PX}")
            x(f"s_add_u32 s40, s40, s{Q_MH}")
            for k in (1, 2, 3): x(f"s_add_u32 s{40+k}, s40, {4096*k}")
            x("s_add_u32 s54, s40, 16384")
            x(f"v_mov_b32 v{BV_H}, v{BV_O}")
            x(f"v_add_u32 v{BV_H+1}, 20480, v{BV_O}")
            for l in pxl: x(l)
            o = [x.l]
        if i == 2:
            r(f"s_add_u32 s57, s{Q_MH}, {OWN}")
            r(f"v_add_u32 v{BV_H+2}, s57, v{BV_O}")
        if i == 2:
            for tt in range(5): r(f"ds_read_b128 {vr(F_+4*tt,4)}, v{BV_H+2} offset:{tt*4096}")
        if i == OPTS.get("pxc", 4):
            check_tokens(p, "FX", pxl, [PIN + 20*src + 4*tt + 2 for src in range(2) for tt in range(5)], "s[60:61]")
            o = [silu.l[:cutk]] if i == 3 else [silu.l]
        elif i == 4: o = [silu.l[cutk:]]
        p.add(b_stage(s_mfma(i), r.l, o))
        p.add(st6(1 + i))
    if OPTS.get("time") in (1, 3): p.add(stamp(3))
    p(f"v_and_b32 v{a}, 15, v{L}")
    p(f"v_mul_u32_u24 v{a}, 272, v{a}")
    p(f"v_and_b32 v{b}, 48, v{L}")
    p(f"s_lshl_b32 s40, s{S_W}, 6")
    p(f"s_add_u32 s40, s40, {2*BSLOT}")
    p(f"v_add3_u32 v{BV_TR}, v{a}, v{b}, s40")
    p(f"v_lshrrev_b32 v{a}, 3, v{L}")
    p(f"v_mul_u32_u24 v{a}, 272, v{a}")
    p(f"v_and_b32 v{b}, 7, v{L}")
    p(f"v_lshl_add_u32 v{a}, v{b}, 5, v{a}")
    p(f"s_mul_i32 s40, s{S_W}, {8*272}")
    p(f"s_add_u32 s40, s40, {2*BSLOT}")
    p(f"v_add_u32 v{BV_TR+1}, s40, v{a}")
    for tt in range(5):
        for r in range(4): p(f"v_mul_f32 v{F_+4*tt+r}, v{F_+4*tt+r}, v{ACC2+4*tt+r}")
        p(f"ds_write_b128 v{BV_TR}, {vr(F_+4*tt,4)} offset:{tt*16*272}")
    for k in range(3):
        for r in range(4):
            p(f"v_lshlrev_b32 v{T+8*k+2*r}, 16, v{XR+4*k+r}")
            p(f"v_and_b32 v{T+8*k+2*r+1}, 0xffff0000, v{XR+4*k+r}")
    p("s_waitcnt lgkmcnt(0)")
    p("s_barrier")
    for k in range(3):
        for h_ in range(2): p(f"ds_read_b128 {vr(PIN+8*k+4*h_,4)}, v{BV_TR+1} offset:{k*32*272 + h_*16}")
    for k in range(3):
        for r in range(8): p(f"v_add_f32 v{T+8*k+r}, v{T+8*k+r}, v{PIN+8*k+r}")
        for r in range(4): p(f"v_cvt_pk_bf16_f32 v{XR+4*k+r}, v{T+8*k+2*r}, v{T+8*k+2*r+1}")
        p(f"buffer_store_dwordx4 {vr(XR+4*k,4)}, v{BV_XO+k}, {sr(B_OUT)}, 0 offen")
    p.add(st6(7))
    time_out(p)
    p("s_endpgm")
    out += render(pad_hazards(insert_waits(flat(p.l), vm0=vm0)))
    p = Prog()
    p("LB_spare:")
    mean_fix(p, 3, AREA8[0]); ffn_epi(3, 8, p)
    p("s_waitcnt vmcnt(0)")
    p("s_barrier")
    flag_store(p, S_WFB, BT0)
    p("s_endpgm")
    out += finalize(p.l)
    return out
AREA8 = [0]

def ktable():
    lv = [[], [], []]
    for j in range(32):
        order = (0, 1, 2, 3) if j % 4 in (0, 3) else (1, 2, 0, 3)
        ks = lambda u: 9*(j >> 1) + (5 if j & 1 else 0) + u
        lv[0] += [ks(order[0]), ks(order[1])]; lv[1].append(ks(order[2])); lv[2].append(ks(3))
        if not j & 1: lv[2].append(9*(j >> 1) + 4)
    out = "LK_tab:\n"
    for kt in range(3):
        part = [sorted(lv[0])[kt::3], sorted(lv[1])[(kt + 2) % 3::3], sorted(lv[2])[kt::3]]
        assert sum(map(len, part)) == 48
        assert len(part[0]) >= 16 and len(part[0]) + len(part[1]) >= 32, [len(x) for x in part]
        for mm in range(10):
            for n3 in range(3):
                row = []
                for l in part:
                    off = (OPTS.get("rm", 0)*mm + (n3 * len(l)) // 3 * OPTS.get("rn", 0)) % len(l)
                    row += l[off:] + l[:off]
                out += ".byte " + ", ".join(map(str, row)) + "\n"
    return out + ".p2align 2\n"

def gen(name, opts):
    OPTS.clear(); OPTS.update(opts); SLOW.clear()
    out = entry(name)
    p = Prog()
    prologue(p)
    stage_a(p)
    out += finalize(p.l)
    out += stage_b()
    for s in SLOW: out += finalize(s.l)
    out += "LK_end:\n    s_endpgm\n"
    out += ktable()
    out += kd(name, 512, 102, 256)
    return out

if __name__ == "__main__":
    NAME = "recurrent_scan__linear_kernel_hedgehog__swiglu_ffn__prompt"
    HDR = open(f"cdna_kernels/{NAME}.s.ref").read().split("; Override launch geometry")[0]
    opts = {}
    for a in sys.argv[2:]:
        k, v = a.split("=")
        opts[k] = int(v) if v.lstrip("-").isdigit() else v
    txt = HDR + f"; @launch grid=(256,1,1) block=(256,1,1) lds={LDS_BYTES}\n" + '.amdgcn_target "amdgcn-amd-amdhsa--gfx950"\n.text\n' + gen(NAME + "_kernel", opts)
    open(sys.argv[1], "w").write(txt)
```
